```python
import torch

def _softmax(x, axis=-1):
    return torch.softmax(x, dim=axis)
def _gelu(x):
    return torch.nn.functional.gelu(x, approximate="tanh")
def _silu(x):
    return torch.nn.functional.silu(x)
def _sigmoid(x):
    return torch.sigmoid(x)
def _layernorm(x, axis=-1, eps=1e-5):
    m = x.mean(dim=axis, keepdim=True)
    v = x.var(dim=axis, keepdim=True, unbiased=False)
    return (x - m) / torch.sqrt(v + eps)
def _scatter_add(tgt, idx, src, axis=0):
    return tgt.clone().index_add_(axis, idx, src)
def _segment_sum(src, seg, n):
    out = torch.zeros((n,) + src.shape[1:], dtype=src.dtype)
    return out.index_add_(0, seg, src)
def _pad(x, pw):
    flat = tuple(v for pair in reversed(pw) for v in pair)
    return torch.nn.functional.pad(x, flat)

kernel_name = 'gated_mix__linear_kernel_hedgehog__mixer_s_mlp__prompt'

def setup_inputs():

    _w = (lambda a: (lambda t: t.to(torch.bfloat16) if t.is_floating_point() else t)(torch.as_tensor(a)))
    def _A_setup():
        B, S, D, H = 1, 2048, 1024, 32
        Dh = D // H
        return {
            "x": _w((lambda *s: torch.randn(*s, dtype=torch.bfloat16) * 0.05)(B, S, D)),
            "wqkv": _w((lambda *s: torch.randn(*s, dtype=torch.bfloat16) * 1.6)(D, 3 * D)),
            "w_phi": _w((lambda *s: torch.randn(*s, dtype=torch.bfloat16) * 1.6)(H, Dh, Dh) * (Dh ** -0.5)),
            "wo": _w((lambda *s: torch.randn(*s, dtype=torch.bfloat16) * 0.8)(D, D)),
        }
    _A_in = _A_setup()

    def _B_setup():
        B, S, D, F = 1, 2048, 1024, 3584
        return {
            "x":  _w((lambda *s: torch.randn(*s, dtype=torch.bfloat16) * 0.05)(B, S, D)),
            "w1": _w((lambda *s: torch.randn(*s, dtype=torch.bfloat16) * 3.2)(D, D) * (D ** -0.5)),
            "w2": _w((lambda *s: torch.randn(*s, dtype=torch.bfloat16) * 3.2)(D, D) * (D ** -0.5)),
            "w3": _w((lambda *s: torch.randn(*s, dtype=torch.bfloat16) * 3.2)(D, F) * (D ** -0.5)),
            "w4": _w((lambda *s: torch.randn(*s, dtype=torch.bfloat16) * 1.6)(F, D) * (F ** -0.5)),
        }
    _B_in = _B_setup()

    return {
        "A_x": _A_in["x"],
        "A_wqkv": _A_in["wqkv"],
        "A_w_phi": _A_in["w_phi"],
        "A_wo": _A_in["wo"],
        "B_x": _B_in["x"],
        "B_w1": _B_in["w1"],
        "B_w2": _B_in["w2"],
        "B_w3": _B_in["w3"],
        "B_w4": _B_in["w4"],
        "gate_w": _w((lambda *s: torch.randn(*s, dtype=torch.bfloat16) * 0.05)(1024) * 16.0),
    }

def reference(A_x, A_wqkv, A_w_phi, A_wo, B_x, B_w1, B_w2, B_w3, B_w4, gate_w):
    def _A_ref(x, wqkv, w_phi, wo):
        B, S, D = x.shape
        H = 32; Dh = D // H
        qkv = (lambda x, *d: x.permute(*d))((x @ wqkv).reshape(B, S, 3, H, Dh), 2, 0, 3, 1, 4)
        q, k, v = qkv[0], qkv[1], qkv[2]
        pq = torch.einsum("bhsd,hdf->bhsf", q, w_phi)
        pk = torch.einsum("bhsd,hdf->bhsf", k, w_phi)
        phi_q = torch.concatenate([_softmax(pq, axis=-1), _softmax(-pq, axis=-1)], axis=-1)
        phi_k = torch.concatenate([_softmax(pk, axis=-1), _softmax(-pk, axis=-1)], axis=-1)
        kv = torch.einsum("bhsf,bhsd->bhfd", phi_k, v)
        z  = torch.einsum("bhsf->bhf", phi_k)
        num = torch.einsum("bhqf,bhfd->bhqd", phi_q, kv)
        den = torch.einsum("bhqf,bhf->bhq", phi_q, z)[..., None] + 1e-6
        o = num / den
        return (lambda x, *d: x.permute(*d))(o, 0, 2, 1, 3).reshape(B, S, D) @ wo

    def _B_ref(x, w1, w2, w3, w4):
        B, S, D = x.shape
        h = _gelu(_layernorm(x, axis=-1) @ w1)
        c = D // 4
        g0 = _pad(h[:, :, 0*c:1*c], ((0, 0), (1, 0), (0, 0)))[:, :S, :]
        g1 = _pad(h[:, :, 1*c:2*c], ((0, 0), (0, 1), (0, 0)))[:, 1:, :]
        g2 = _pad(h[:, :, 2*c:3*c], ((0, 0), (2, 0), (0, 0)))[:, :S, :]
        g3 = _pad(h[:, :, 3*c:   ], ((0, 0), (0, 2), (0, 0)))[:, 2:, :]
        hs = torch.concatenate([g0, g1, g2, g3], axis=-1) @ w2
        x1 = x + hs
        h2 = _gelu(_layernorm(x1, axis=-1) @ w3) @ w4
        return x1 + h2

    x = A_x
    g = _sigmoid((x * gate_w).sum(-1, keepdims=True))
    a = _A_ref(x, A_wqkv, A_w_phi, A_wo)
    b = _B_ref(x, B_w1, B_w2, B_w3, B_w4)
    return g * a + (1 - g) * b
```

```python
import sys, re

MB = 1 << 20
WS_LNX = 0
WS_QKV = 4 * MB
WS_H = 16 * MB
WS_X1 = 20 * MB
WS_LNX1 = 24 * MB
WS_H3 = 28 * MB
WS_O = 44 * MB
WS_KVP = 48 * MB
WS_G = 52 * MB

KA = dict(A_x=0, wqkv=8, w_phi=16, wo=24, B_x=32, w1=40, w2=48, w3=56, w4=64, gate_w=72, out=80, dbg=88, ws=96)
SZ_ACT = 2048 * 1024 * 2
SZ_QKV = 2048 * 3072 * 2
SZ_H3 = 2048 * 3584 * 2
KVP_STRIDE = (64 * 32 + 64) * 4


class K:
    def __init__(self, name):
        self.name = name
        self.lines = []
        self.nlab = 0
        self.max_v = 0
        self.max_s = 0

    def e(self, s):
        if s.startswith("buffer_"):
            m = re.search(r"offset:(\d+)", s)
            assert not m or int(m.group(1)) < 4096, s
        if s.startswith("ds_"):
            m = re.search(r"offset:(\d+)", s)
            assert not m or int(m.group(1)) < 65536, s
        self.lines.append("    " + s)

    def c(self, s):
        self.lines.append("    ; " + s)

    def lab(self, base="L"):
        self.nlab += 1
        return "%s_%s_%d" % (base, self.name, self.nlab)

    def L(self, l):
        self.lines.append(l + ":")

    def nop(self, n=0):
        self.e("s_nop %d" % n)

    def text(self, vgprs, sgprs=102, lds=0):
        v = (vgprs + 7) // 8 * 8
        acc = (vgprs + 3) // 4 * 4
        hdr = [
            ".globl %s" % self.name,
            ".p2align 8",
            ".type %s,@function" % self.name,
            "%s:" % self.name,
        ]
        return hdr + self.lines


def desc(name, vgprs, sgprs=104):
    v = (vgprs + 7) // 8 * 8
    return [
        ".amdhsa_kernel %s" % name,
        "  .amdhsa_next_free_vgpr %d" % v,
        "  .amdhsa_next_free_sgpr %d" % min(sgprs, 102),
        "  .amdhsa_accum_offset %d" % v,
        "  .amdhsa_group_segment_fixed_size 0",
        "  .amdhsa_kernarg_size 104",
        "  .amdhsa_user_sgpr_count 2",
        "  .amdhsa_user_sgpr_kernarg_segment_ptr 1",
        "  .amdhsa_system_sgpr_workgroup_id_x 1",
        ".end_amdhsa_kernel",
    ]


def vr(a, n=1):
    return "v%d" % a if n == 1 else "v[%d:%d]" % (a, a + n - 1)


def sr(a, n=1):
    return "s%d" % a if n == 1 else "s[%d:%d]" % (a, a + n - 1)


def load_ptr(k, dst, key):
    k.e("s_load_dwordx2 %s, s[0:1], %d" % (sr(dst, 2), KA[key]))


def make_srd(k, dst, ptr, off, size):
    k.e("s_add_u32 s%d, s%d, 0x%x" % (dst, ptr, off))
    k.e("s_addc_u32 s%d, s%d, 0" % (dst + 1, ptr + 1))
    k.e("s_mov_b32 s%d, 0x%x" % (dst + 2, size))
    k.e("s_mov_b32 s%d, 0x00020000" % (dst + 3))


LOG2E = 0x3FB8AA3B


def rnd_bf16(k, v, tmp=None):
    k.e("v_cvt_pk_bf16_f32 %s, %s, %s" % (vr(v), vr(v), vr(v)))
    k.e("v_lshlrev_b32 %s, 16, %s" % (vr(v), vr(v)))


def wave_reduce(k, v, vaddr, vtmp, op="v_add_f32"):
    for m in (1, 2, 4, 8, 16, 32):
        k.e("v_xor_b32 %s, %d, %s" % (vr(vtmp), m * 4, vr(vaddr)))
        k.e("ds_bpermute_b32 %s, %s, %s" % (vr(vtmp), vr(vtmp), vr(v)))
        k.e("s_waitcnt lgkmcnt(0)")
        k.e("%s %s, %s, %s" % (op, vr(v), vr(v), vr(vtmp)))


def emit_ln(k, s_row, srd_in, srd_out):
    k.e("v_and_b32 v1, 63, v0")
    k.e("v_lshlrev_b32 v2, 4, v1")
    k.e("s_lshl_b32 s40, s%d, 11" % s_row)
    k.e("v_add_u32 v2, s40, v2")
    k.e("buffer_load_dwordx4 v[8:11], v2, %s, 0 offen" % sr(srd_in, 4))
    k.e("buffer_load_dwordx4 v[12:15], v2, %s, 0 offen offset:1024" % sr(srd_in, 4))
    k.e("v_lshlrev_b32 v3, 2, v1")
    k.e("s_waitcnt vmcnt(0)")
    for i in range(8):
        k.e("v_lshlrev_b32 v%d, 16, v%d" % (16 + 2 * i, 8 + i))
        k.e("v_and_b32 v%d, 0xffff0000, v%d" % (17 + 2 * i, 8 + i))
    k.e("v_add_f32 v4, v16, v17")
    for i in range(2, 16):
        k.e("v_add_f32 v4, v4, v%d" % (16 + i))
    wave_reduce(k, 4, 3, 5)
    k.e("v_mul_f32 v4, 0x3a800000, v4")
    k.e("v_sub_f32 v5, v16, v4")
    k.e("v_mul_f32 v6, v5, v5")
    for i in range(1, 16):
        k.e("v_sub_f32 v5, v%d, v4" % (16 + i))
        k.e("v_fmac_f32 v6, v5, v5")
    wave_reduce(k, 6, 3, 5)
    k.e("v_mul_f32 v6, 0x3a800000, v6")
    rnd_bf16(k, 4)
    rnd_bf16(k, 6)
    k.e("v_add_f32 v6, 0x3727c5ac, v6")
    rnd_bf16(k, 6)
    k.e("v_sqrt_f32 v6, v6")
    k.nop(0)
    rnd_bf16(k, 6)
    k.e("v_rcp_f32 v7, v6")
    k.nop(0)
    for i in range(16):
        x = 16 + i
        k.e("v_sub_f32 v%d, v%d, v4" % (x, x))
        rnd_bf16(k, x)
        k.e("v_mul_f32 v5, v%d, v7" % x)
        k.e("v_fma_f32 v32, -v5, v6, v%d" % x)
        k.e("v_fma_f32 v%d, v32, v7, v5" % x)
    for i in range(8):
        k.e("v_cvt_pk_bf16_f32 v%d, v%d, v%d" % (8 + i, 16 + 2 * i, 17 + 2 * i))
    k.e("buffer_store_dwordx4 v[8:11], v2, %s, 0 offen" % sr(srd_out, 4))
    k.e("buffer_store_dwordx4 v[12:15], v2, %s, 0 offen offset:1024" % sr(srd_out, 4))


def gen_prep():
    k = K("prep_kernel")
    k.e("s_cmp_ge_u32 s2, 1024")
    end = k.lab("END")
    k.e("s_cbranch_scc1 %s" % end)
    load_ptr(k, 4, "A_x")
    load_ptr(k, 6, "ws")
    load_ptr(k, 8, "A_x")
    load_ptr(k, 10, "gate_w")
    k.e("v_lshrrev_b32 v1, 6, v0")
    k.nop(0)
    k.e("v_readfirstlane_b32 s12, v1")
    k.e("s_waitcnt lgkmcnt(0)")
    gate = k.lab("GATE")
    k.e("s_cmp_ge_u32 s2, 512")
    k.e("s_cbranch_scc1 %s" % gate)
    k.e("s_lshl_b32 s13, s2, 2")
    k.e("s_add_u32 s13, s13, s12")
    make_srd(k, 16, 4, 0, SZ_ACT)
    make_srd(k, 20, 6, WS_LNX, SZ_ACT)
    emit_ln(k, 13, 16, 20)
    k.e("s_endpgm")
    k.L(gate)
    k.e("s_sub_u32 s13, s2, 512")
    k.e("s_lshl_b32 s13, s13, 2")
    k.e("s_add_u32 s13, s13, s12")
    make_srd(k, 16, 8, 0, SZ_ACT)
    make_srd(k, 20, 10, 0, 2048)
    make_srd(k, 24, 6, WS_G, 2048 * 4)
    k.e("v_and_b32 v1, 63, v0")
    k.e("v_lshlrev_b32 v2, 4, v1")
    k.e("s_lshl_b32 s40, s13, 11")
    k.e("v_add_u32 v3, s40, v2")
    k.e("buffer_load_dwordx4 v[8:11], v3, s[16:19], 0 offen")
    k.e("buffer_load_dwordx4 v[12:15], v3, s[16:19], 0 offen offset:1024")
    k.e("buffer_load_dwordx4 v[32:35], v2, s[20:23], 0 offen")
    k.e("buffer_load_dwordx4 v[36:39], v2, s[20:23], 0 offen offset:1024")
    k.e("v_lshlrev_b32 v3, 2, v1")
    k.e("s_waitcnt vmcnt(0)")
    for i in range(8):
        k.e("v_lshlrev_b32 v%d, 16, v%d" % (16 + 2 * i, 8 + i))
        k.e("v_and_b32 v%d, 0xffff0000, v%d" % (17 + 2 * i, 8 + i))
        k.e("v_lshlrev_b32 v4, 16, v%d" % (32 + i))
        k.e("v_and_b32 v5, 0xffff0000, v%d" % (32 + i))
        k.e("v_mul_f32 v%d, v%d, v4" % (16 + 2 * i, 16 + 2 * i))
        k.e("v_mul_f32 v%d, v%d, v5" % (17 + 2 * i, 17 + 2 * i))
        k.e("v_cvt_pk_bf16_f32 v4, v%d, v%d" % (16 + 2 * i, 17 + 2 * i))
        k.e("v_lshlrev_b32 v%d, 16, v4" % (16 + 2 * i))
        k.e("v_and_b32 v%d, 0xffff0000, v4" % (17 + 2 * i))
    k.e("v_add_f32 v4, v16, v17")
    for i in range(2, 16):
        k.e("v_add_f32 v4, v4, v%d" % (16 + i))
    wave_reduce(k, 4, 3, 5)
    rnd_bf16(k, 4)
    k.e("v_mul_f32 v4, 0xbfb8aa3b, v4")
    k.e("v_exp_f32 v4, v4")
    k.nop(0)
    k.e("v_add_f32 v4, 1.0, v4")
    k.e("v_rcp_f32 v4, v4")
    k.nop(0)
    rnd_bf16(k, 4)
    k.e("v_cmp_eq_u32 vcc, 0, v1")
    k.e("s_and_saveexec_b64 s[42:43], vcc")
    k.e("s_lshl_b32 s40, s13, 2")
    k.e("v_mov_b32 v5, s40")
    k.e("buffer_store_dword v4, v5, s[24:27], 0 offen")
    k.L(end)
    k.e("s_endpgm")
    return k, 48


def gen_ln1():
    k = K("ln1_kernel")
    end = k.lab("END")
    k.e("s_cmp_ge_u32 s2, 512")
    k.e("s_cbranch_scc1 %s" % end)
    load_ptr(k, 6, "ws")
    k.e("v_lshrrev_b32 v1, 6, v0")
    k.nop(0)
    k.e("v_readfirstlane_b32 s12, v1")
    k.e("s_waitcnt lgkmcnt(0)")
    k.e("s_lshl_b32 s13, s2, 2")
    k.e("s_add_u32 s13, s13, s12")
    make_srd(k, 16, 6, WS_X1, SZ_ACT)
    make_srd(k, 20, 6, WS_LNX1, SZ_ACT)
    emit_ln(k, 13, 16, 20)
    k.L(end)
    k.e("s_endpgm")
    return k, 48


class GemmCfg:
    def __init__(self, WM, WN, TM, TN, NS=3):
        self.WM, self.WN, self.TM, self.TN, self.NS = WM, WN, TM, TN, NS
        self.BM = WM * TM * 32
        self.BN = WN * TN * 32
        self.NW = WM * WN
        self.XB = self.BM * 128
        self.RB = self.BN * 2
        self.WB = 64 * self.RB
        self.STAGE = self.XB + self.WB
        self.XI = self.XB // 1024 // self.NW
        self.WI = self.WB // 1024 // self.NW
        assert self.XI * 1024 * self.NW == self.XB and self.WI * 1024 * self.NW == self.WB
        self.D = self.XI + self.WI
        self.R = TM + 2 * TN
        self.LDS = self.STAGE * NS


S_SRDX, S_SRDW, S_SRDC, S_SRDR, S_SRDG = 4, 8, 12, 16, 20
S_LDX, S_LDW, S_LDC, S_NK, S_M0, S_N0, S_WAVE, S_KT = 24, 25, 26, 27, 28, 29, 30, 31
S_KX, S_KW, S_CUR, S_OLD, S_DMX, S_DMW, S_T0, S_T1 = 32, 33, 34, 35, 36, 37, 38, 39
S_SHIFT, S_FLAG, S_T2, S_T3 = 40, 41, 42, 43


class GemmRegs:
    def __init__(self, cfg, shifted=False):
        c = cfg
        self.vt = list(range(1, 8))
        p = 8
        self.vxa = list(range(p, p + 4)); p += 4
        self.vwa = list(range(p, p + c.TN)); p += c.TN
        self.vxo = list(range(p, p + c.XI)); p += c.XI
        self.vwo = list(range(p, p + c.WI)); p += c.WI
        self.vxs = list(range(p, p + c.XI)) if shifted else None
        if shifted:
            p += c.XI
        p = (p + 3) // 4 * 4
        self.F = []
        for s in range(2):
            X = [p + 4 * i for i in range(c.TM)]; p += 4 * c.TM
            W = [p + 4 * i for i in range(c.TN)]; p += 4 * c.TN
            self.F.append((X, W))
        p = (p + 15) // 16 * 16
        self.acc = {}
        for tn in range(c.TN):
            for tm in range(c.TM):
                self.acc[(tn, tm)] = p; p += 16
        self.acc_base = self.acc[(0, 0)]
        self.nacc = 16 * c.TM * c.TN
        self.save = p
        self.end = p
        self.ep = None


def gemm_lane_setup(k, c, r):
    t0, t1, t2, t3 = r.vt[0:4]
    k.c("lane setup")
    k.e("v_and_b32 v%d, 63, v0" % t0)
    k.e("v_lshrrev_b32 v%d, 3, v%d" % (t1, t0))
    k.e("s_mul_i32 s%d, s%d, %d" % (S_T0, S_WAVE, c.XI * 8))
    k.e("v_add_u32 v%d, s%d, v%d" % (t1, S_T0, t1))
    k.e("v_mul_lo_u32 v%d, v%d, s%d" % (t1, t1, S_LDX))
    k.e("v_and_b32 v%d, 7, v%d" % (t2, t0))
    k.e("v_lshrrev_b32 v%d, 4, v%d" % (t3, t0))
    k.e("v_xor_b32 v%d, v%d, v%d" % (t2, t2, t3))
    for i in range(c.XI):
        k.e("s_mul_i32 s%d, s%d, %d" % (S_T0, S_WAVE, c.XI))
        k.e("s_add_u32 s%d, s%d, %d" % (S_T0, S_T0, i))
        k.e("s_and_b32 s%d, s%d, 1" % (S_T0, S_T0))
        k.e("s_lshl_b32 s%d, s%d, 2" % (S_T0, S_T0))
        k.e("v_xor_b32 v%d, s%d, v%d" % (t3, S_T0, t2))
        k.e("v_lshl_add_u32 v%d, v%d, 4, v%d" % (r.vxo[i], t3, t1))
        if i + 1 < c.XI:
            k.e("s_lshl_b32 s%d, s%d, 3" % (S_T0, S_LDX))
            k.e("v_add_u32 v%d, s%d, v%d" % (t1, S_T0, t1))
    if c.RB == 256:
        k.e("v_lshrrev_b32 v%d, 4, v%d" % (t1, t0))
        k.e("s_mul_i32 s%d, s%d, %d" % (S_T0, S_WAVE, c.WI * 4))
        k.e("v_add_u32 v%d, s%d, v%d" % (t2, S_T0, t1))
        k.e("v_mul_lo_u32 v%d, v%d, s%d" % (t2, t2, S_LDW))
        k.e("v_lshlrev_b32 v%d, 2, v%d" % (t1, t1))
        k.e("v_and_b32 v%d, 15, v%d" % (t3, t0))
        k.e("v_xor_b32 v%d, v%d, v%d" % (t3, t3, t1))
        for j in range(c.WI):
            k.e("v_lshl_add_u32 v%d, v%d, 4, v%d" % (r.vwo[j], t3, t2))
            if j + 1 < c.WI:
                k.e("s_lshl_b32 s%d, s%d, 2" % (S_T0, S_LDW))
                k.e("v_add_u32 v%d, s%d, v%d" % (t2, S_T0, t2))
    elif c.RB == 128:
        k.e("v_lshrrev_b32 v%d, 3, v%d" % (t1, t0))
        k.e("s_mul_i32 s%d, s%d, %d" % (S_T0, S_WAVE, c.WI * 8))
        k.e("v_add_u32 v%d, s%d, v%d" % (t2, S_T0, t1))
        k.e("v_mul_lo_u32 v%d, v%d, s%d" % (t2, t2, S_LDW))
        k.e("v_lshrrev_b32 v%d, 4, v%d" % (t1, t0))
        k.e("v_and_b32 v%d, 1, v%d" % (t1, t1))
        k.e("v_lshlrev_b32 v%d, 2, v%d" % (t1, t1))
        k.e("v_and_b32 v%d, 7, v%d" % (t3, t0))
        k.e("v_xor_b32 v%d, v%d, v%d" % (t3, t3, t1))
        for j in range(c.WI):
            k.e("v_lshl_add_u32 v%d, v%d, 4, v%d" % (r.vwo[j], t3, t2))
            if j + 1 < c.WI:
                k.e("s_lshl_b32 s%d, s%d, 3" % (S_T0, S_LDW))
                k.e("v_add_u32 v%d, s%d, v%d" % (t2, S_T0, t2))
    else:
        raise ValueError("RB")
    k.e("s_and_b32 s%d, s%d, %d" % (S_T2, S_WAVE, c.WM - 1))
    k.e("s_lshr_b32 s%d, s%d, %d" % (S_T3, S_WAVE, c.WM.bit_length() - 1))
    k.e("v_and_b32 v%d, 31, v%d" % (t1, t0))
    k.e("s_mul_i32 s%d, s%d, %d" % (S_T0, S_T2, c.TM * 32))
    k.e("v_add_u32 v%d, s%d, v%d" % (t1, S_T0, t1))
    k.e("v_lshlrev_b32 v%d, 7, v%d" % (t1, t1))
    k.e("v_lshrrev_b32 v%d, 5, v%d" % (t2, t0))
    k.e("v_bfe_u32 v%d, v%d, 1, 3" % (t3, t0))
    k.e("v_xor_b32 v%d, v%d, v%d" % (t2, t2, t3))
    for t in range(4):
        k.e("v_xor_b32 v%d, %d, v%d" % (t3, 2 * t, t2))
        k.e("v_lshl_add_u32 v%d, v%d, 4, v%d" % (r.vxa[t], t3, t1))
    k.e("v_bfe_u32 v%d, v%d, 2, 2" % (t1, t0))
    k.e("v_lshrrev_b32 v%d, 5, v%d" % (t2, t0))
    k.e("v_lshl_add_u32 v%d, v%d, 3, v%d" % (t2, t2, t1))
    k.e("v_mul_u32_u24 v%d, %d, v%d" % (t2, c.RB, t2))
    k.e("v_bfe_u32 v%d, v%d, 4, 1" % (t3, t0))
    k.e("v_lshl_add_u32 v%d, v%d, 5, v%d" % (t2, t3, t2))
    k.e("v_and_b32 v%d, 3, v%d" % (t3, t0))
    k.e("v_lshl_add_u32 v%d, v%d, 3, v%d" % (t2, t3, t2))
    k.e("v_add_u32 v%d, %d, v%d" % (t2, c.XB, t2))
    if c.RB == 128:
        k.e("v_lshrrev_b32 v%d, 1, v%d" % (t1, t1))
    for tn in range(c.TN):
        k.e("s_mul_i32 s%d, s%d, %d" % (S_T0, S_T3, c.TN))
        k.e("s_add_u32 s%d, s%d, %d" % (S_T0, S_T0, tn))
        k.e("v_xor_b32 v%d, s%d, v%d" % (t3, S_T0, t1))
        k.e("v_lshl_add_u32 v%d, v%d, 6, v%d" % (r.vwa[tn], t3, t2))
    k.e("s_mul_i32 s%d, s%d, %d" % (S_DMX, S_WAVE, c.XI * 1024))
    k.e("s_mul_i32 s%d, s%d, %d" % (S_DMW, S_WAVE, c.WI * 1024))
    k.e("s_add_u32 s%d, s%d, %d" % (S_DMW, S_DMW, c.XB))


def gemm_dma(k, c, r, s_stage, shifted):
    xo = r.vxs if shifted else r.vxo
    k.e("s_add_u32 m0, s%d, s%d" % (s_stage, S_DMX))
    for i in range(c.XI):
        if i:
            k.e("s_add_u32 m0, m0, 1024")
        k.nop(0)
        k.e("buffer_load_dwordx4 v%d, %s, s%d offen lds" % (xo[i], sr(S_SRDX, 4), S_KX))
    k.e("s_add_u32 m0, s%d, s%d" % (s_stage, S_DMW))
    for j in range(c.WI):
        if j:
            k.e("s_add_u32 m0, m0, 1024")
        k.nop(0)
        k.e("buffer_load_dwordx4 v%d, %s, s%d offen lds" % (r.vwo[j], sr(S_SRDW, 4), S_KW))


def gemm_shift_update(k, c, r, s_kidx):
    k.e("s_lshr_b32 s%d, s%d, 2" % (S_T0, s_kidx))
    k.e("s_and_b32 s%d, s%d, 1" % (S_T1, S_T0))
    k.e("s_lshr_b32 s%d, s%d, 1" % (S_T0, S_T0))
    k.e("s_lshl_b32 s%d, 2048, s%d" % (S_SHIFT, S_T0))
    k.e("s_sub_u32 s%d, 0, s%d" % (S_T0, S_SHIFT))
    k.e("s_cmp_eq_u32 s%d, 1" % S_T1)
    k.e("s_cselect_b32 s%d, s%d, s%d" % (S_SHIFT, S_SHIFT, S_T0))
    k.e("s_lshl_b32 s%d, s%d, 11" % (S_T0, S_M0))
    k.e("s_add_u32 s%d, s%d, s%d" % (S_SHIFT, S_SHIFT, S_T0))
    for i in range(c.XI):
        k.e("v_add_u32 v%d, s%d, v%d" % (r.vxs[i], S_SHIFT, r.vxo[i]))


def gemm_reads(k, c, r, t, fs):
    X, W = r.F[fs]
    for tm in range(c.TM):
        k.e("ds_read_b128 %s, v%d offset:%d" % (vr(X[tm], 4), r.vxa[t], tm * 4096))
    for tn in range(c.TN):
        for u in range(2):
            k.e("ds_read_b64_tr_b16 %s, v%d offset:%d" % (vr(W[tn] + 2 * u, 2), r.vwa[tn], (16 * t + 4 * u) * c.RB))


def gemm_mfma(k, c, r, fs, accmap=None):
    X, W = r.F[fs]
    for tn in range(c.TN):
        for tm in range(c.TM):
            a = r.acc[(tn, tm)]
            k.e("v_mfma_f32_32x32x16_bf16 %s, %s, %s, %s" % (vr(a, 16), vr(W[tn], 4), vr(X[tm], 4), vr(a, 16)))


def gemm_kloop(k, c, r, shifted=False):
    D, R, NS = c.D, c.R, c.NS
    k.c("K loop prologue")
    k.e("s_mov_b32 s%d, 0" % S_CUR)
    k.e("s_lshl_b32 s%d, s%d, 6" % (S_T2, S_LDW))
    for i in range(r.nacc):
        k.e("v_mov_b32 v%d, 0" % (r.acc_base + i))
    k.e("s_mov_b32 s%d, 0" % S_KT)
    for s in range(NS):
        if shifted:
            gemm_shift_update(k, c, r, S_KT)
        k.e("s_mov_b32 s%d, %d" % (S_OLD, s * c.STAGE))
        gemm_dma(k, c, r, S_OLD, shifted)
        k.e("s_add_u32 s%d, s%d, 128" % (S_KX, S_KX))
        k.e("s_add_u32 s%d, s%d, s%d" % (S_KW, S_KW, S_T2))
        k.e("s_add_u32 s%d, s%d, 1" % (S_KT, S_KT))
    k.e("s_waitcnt vmcnt(%d)" % ((NS - 1) * D))
    k.e("s_barrier")
    gemm_reads(k, c, r, 0, 0)
    k.e("s_mov_b32 s%d, 0" % S_T3)
    loop = k.lab("KLOOP")
    last = k.lab("KLAST")
    nod = k.lab("NODMA")
    w0 = k.lab("W0")
    w1 = k.lab("W1")
    done = k.lab("KDONE")
    k.L(loop)
    for t in range(3):
        gemm_reads(k, c, r, t + 1, (t + 1) & 1)
        k.e("s_waitcnt lgkmcnt(%d)" % R)
        gemm_mfma(k, c, r, t & 1)
    k.e("s_add_u32 s%d, s%d, 1" % (S_T3, S_T3))
    k.e("s_cmp_ge_u32 s%d, s%d" % (S_T3, S_NK))
    k.e("s_cbranch_scc1 %s" % last)
    k.e("s_add_u32 s%d, s%d, %d" % (S_T0, S_T3, NS - 1))
    k.e("s_cmp_eq_u32 s%d, s%d" % (S_T0, S_KT))
    k.e("s_cbranch_scc1 %s" % w0)
    k.e("s_waitcnt vmcnt(0) lgkmcnt(0)")
    k.e("s_branch %s" % w1)
    k.L(w0)
    k.e("s_waitcnt vmcnt(%d) lgkmcnt(0)" % ((NS - 2) * D))
    k.L(w1)
    k.e("s_barrier")
    k.e("s_mov_b32 s%d, s%d" % (S_OLD, S_CUR))
    k.e("s_add_u32 s%d, s%d, %d" % (S_CUR, S_CUR, c.STAGE))
    k.e("s_cmp_eq_u32 s%d, %d" % (S_CUR, c.STAGE * NS))
    k.e("s_cselect_b32 s%d, 0, s%d" % (S_CUR, S_CUR))
    k.e("s_sub_u32 s%d, s%d, s%d" % (S_T0, S_CUR, S_OLD))
    for v in r.vxa + r.vwa:
        k.e("v_add_u32 v%d, s%d, v%d" % (v, S_T0, v))
    gemm_reads(k, c, r, 0, 0)
    k.e("s_cmp_ge_u32 s%d, s%d" % (S_KT, S_NK))
    k.e("s_cbranch_scc1 %s" % nod)
    if shifted:
        gemm_shift_update(k, c, r, S_KT)
    gemm_dma(k, c, r, S_OLD, shifted)
    k.e("s_add_u32 s%d, s%d, 128" % (S_KX, S_KX))
    k.e("s_add_u32 s%d, s%d, s%d" % (S_KW, S_KW, S_T2))
    k.e("s_add_u32 s%d, s%d, 1" % (S_KT, S_KT))
    k.L(nod)
    gemm_mfma(k, c, r, 1)
    k.e("s_branch %s" % loop)
    k.L(last)
    k.e("s_waitcnt lgkmcnt(0)")
    gemm_mfma(k, c, r, 1)
    k.L(done)
    k.e("s_sub_u32 s%d, 0, s%d" % (S_T0, S_CUR))
    for v in r.vxa + r.vwa:
        k.e("v_add_u32 v%d, s%d, v%d" % (v, S_T0, v))


def emit_gelu(k, x, t0, t1):
    k.e("v_mul_f32 v%d, v%d, v%d" % (t0, x, x))
    k.e("v_mov_b32 v%d, 0x3d372713" % t1)
    k.e("v_fma_f32 v%d, v%d, v%d, 1.0" % (t0, t0, t1))
    k.e("v_mul_f32 v%d, v%d, v%d" % (t0, t0, x))
    k.e("v_mul_f32 v%d, 0xc0135761, v%d" % (t0, t0))
    k.e("v_exp_f32 v%d, v%d" % (t0, t0))
    k.nop(0)
    k.e("v_add_f32 v%d, 1.0, v%d" % (t0, t0))
    k.e("v_rcp_f32 v%d, v%d" % (t0, t0))
    k.nop(0)
    k.e("v_mul_f32 v%d, v%d, v%d" % (x, x, t0))


def gemm_epilogue(k, c, r, mode):
    t0, t1, t2, t3, t4, t5, t6 = r.vt
    k.c("epilogue " + mode)
    k.nop(15)
    k.nop(7)
    k.e("s_and_b32 s%d, s%d, %d" % (S_T2, S_WAVE, c.WM - 1))
    k.e("s_lshr_b32 s%d, s%d, %d" % (S_T3, S_WAVE, c.WM.bit_length() - 1))
    k.e("s_mul_i32 s%d, s%d, %d" % (S_T0, S_T2, c.TM * 32))
    k.e("s_add_u32 s%d, s%d, s%d" % (S_T0, S_T0, S_M0))
    k.e("s_mul_i32 s%d, s%d, %d" % (S_T1, S_T3, c.TN * 32))
    k.e("s_add_u32 s%d, s%d, s%d" % (S_T1, S_T1, S_N0))
    k.e("s_lshl_b32 s%d, s%d, 1" % (S_T1, S_T1))
    k.e("v_and_b32 v%d, 31, v0" % t0)
    k.e("v_add_u32 v%d, s%d, v%d" % (t0, S_T0, t0))
    k.e("v_bfe_u32 v%d, v0, 5, 1" % t1)
    k.e("v_mul_lo_u32 v%d, v%d, s%d" % (t2, t0, S_LDC))
    k.e("v_add_u32 v%d, s%d, v%d" % (t2, S_T1, t2))
    k.e("v_lshl_add_u32 v%d, v%d, 4, v%d" % (t3, t1, t2))
    k.e("v_lshl_add_u32 v%d, v%d, 3, v%d" % (t4, t1, t2))
    k.e("v_lshlrev_b32 v%d, 2, v%d" % (t5, t0))
    ep = r.ep
    P = [ep + i for i in range(8)]
    RS = [ep + 8 + i for i in range(8)]
    a0, a1, a2, a3 = ep + 16, ep + 17, ep + 18, ep + 19
    for tm in range(c.TM):
        k.e("s_lshl_b32 s%d, s%d, 5" % (S_T0, S_LDC))
        k.e("s_mul_i32 s%d, s%d, %d" % (S_T0, S_T0, tm))
        if mode == 'final':
            k.e("buffer_load_dword v%d, v%d, %s, 0 offen offset:%d" % (a3, t5, sr(S_SRDG, 4), tm * 128))
        for tn in range(c.TN):
            a = r.acc[(tn, tm)]
            if mode in ('resid', 'final'):
                for q in range(4):
                    k.e("buffer_load_dwordx2 %s, v%d, %s, s%d offen offset:%d" %
                        (vr(RS[2 * q], 2), t4, sr(S_SRDR, 4), S_T0, tn * 64 + q * 16))
                k.e("s_waitcnt vmcnt(0)")
            for q in range(4):
                lo, hi = P[2 * q], P[2 * q + 1]
                k.e("v_cvt_pk_bf16_f32 v%d, v%d, v%d" % (lo, a + 4 * q, a + 4 * q + 1))
                k.e("v_cvt_pk_bf16_f32 v%d, v%d, v%d" % (hi, a + 4 * q + 2, a + 4 * q + 3))
                if mode == 'store':
                    continue
                for (pk, rs) in ((lo, RS[2 * q]), (hi, RS[2 * q + 1])):
                    k.e("v_lshlrev_b32 v%d, 16, v%d" % (a0, pk))
                    k.e("v_and_b32 v%d, 0xffff0000, v%d" % (a1, pk))
                    if mode == 'gelu':
                        emit_gelu(k, a0, a2, t6)
                        emit_gelu(k, a1, a2, t6)
                    else:
                        k.e("v_lshlrev_b32 v%d, 16, v%d" % (a2, rs))
                        k.e("v_add_f32 v%d, v%d, v%d" % (a0, a0, a2))
                        k.e("v_and_b32 v%d, 0xffff0000, v%d" % (a2, rs))
                        k.e("v_add_f32 v%d, v%d, v%d" % (a1, a1, a2))
                        if mode == 'final':
                            k.e("v_cvt_pk_bf16_f32 v%d, v%d, v%d" % (a2, a0, a1))
                            k.e("v_lshlrev_b32 v%d, 16, v%d" % (a0, a2))
                            k.e("v_and_b32 v%d, 0xffff0000, v%d" % (a1, a2))
                            k.e("v_sub_f32 v%d, 1.0, v%d" % (a2, a3))
                            rnd_bf16(k, a2)
                            k.e("v_mul_f32 v%d, v%d, v%d" % (a0, a0, a2))
                            k.e("v_mul_f32 v%d, v%d, v%d" % (a1, a1, a2))
                            k.e("v_cvt_pk_bf16_f32 v%d, v%d, v%d" % (a2, a0, a1))
                            k.e("v_lshlrev_b32 v%d, 16, v%d" % (a0, a2))
                            k.e("v_and_b32 v%d, 0xffff0000, v%d" % (a1, a2))
                            sa = r.save + (a - r.acc_base) + 4 * q + (0 if pk == lo else 2)
                            k.e("v_cvt_pk_bf16_f32 v%d, v%d, v%d" % (a2, sa, sa + 1))
                            k.e("v_lshlrev_b32 v%d, 16, v%d" % (t6, a2))
                            k.e("v_and_b32 v%d, 0xffff0000, v%d" % (a2, a2))
                            k.e("v_mul_f32 v%d, v%d, v%d" % (t6, t6, a3))
                            k.e("v_mul_f32 v%d, v%d, v%d" % (a2, a2, a3))
                            k.e("v_cvt_pk_bf16_f32 v%d, v%d, v%d" % (a2, t6, a2))
                            k.e("v_lshlrev_b32 v%d, 16, v%d" % (t6, a2))
                            k.e("v_and_b32 v%d, 0xffff0000, v%d" % (a2, a2))
                            k.e("v_add_f32 v%d, v%d, v%d" % (a0, a0, t6))
                            k.e("v_add_f32 v%d, v%d, v%d" % (a1, a1, a2))
                    k.e("v_cvt_pk_bf16_f32 v%d, v%d, v%d" % (pk, a0, a1))
            k.nop(1)
            for p in range(2):
                k.e("v_permlane32_swap_b32 v%d, v%d" % (P[4 * p], P[4 * p + 2]))
                k.e("v_permlane32_swap_b32 v%d, v%d" % (P[4 * p + 1], P[4 * p + 3]))
            k.nop(1)
            for p in range(2):
                k.e("buffer_store_dwordx4 %s, v%d, %s, s%d offen offset:%d" %
                    (vr(P[4 * p], 4), t3, sr(S_SRDC, 4), S_T0, tn * 64 + p * 32))
            k.nop(3)


def gemm_head(k, nwg):
    end = k.lab("END")
    k.e("s_cmp_ge_u32 s2, %d" % nwg)
    k.e("s_cbranch_scc1 %s" % end)
    k.e("v_lshrrev_b32 v1, 6, v0")
    k.nop(0)
    k.e("v_readfirstlane_b32 s%d, v1" % S_WAVE)
    return end


def gen_gemm1():
    c = GemmCfg(4, 2, 2, 2)
    r = GemmRegs(c)
    r.ep = r.end
    k = K("gemm1_kernel")
    end = gemm_head(k, 256)
    load_ptr(k, 44, "A_x"); load_ptr(k, 46, "wqkv"); load_ptr(k, 48, "ws"); load_ptr(k, 50, "w1")
    k.e("s_waitcnt lgkmcnt(0)")
    pb = k.lab("PB"); go = k.lab("GO")
    k.e("s_cmp_ge_u32 s2, 192")
    k.e("s_cbranch_scc1 %s" % pb)
    make_srd(k, S_SRDX, 44, 0, SZ_ACT)
    make_srd(k, S_SRDW, 46, 0, 1024 * 3072 * 2)
    make_srd(k, S_SRDC, 48, WS_QKV, SZ_QKV)
    k.e("s_mov_b32 s%d, 2048" % S_LDX); k.e("s_mov_b32 s%d, 6144" % S_LDW); k.e("s_mov_b32 s%d, 6144" % S_LDC)
    k.e("s_mov_b32 s%d, 0" % S_FLAG)
    k.e("s_mov_b32 s%d, s2" % S_T1)
    k.e("s_branch %s" % go)
    k.L(pb)
    make_srd(k, S_SRDX, 48, WS_LNX, SZ_ACT)
    make_srd(k, S_SRDW, 50, 0, 1024 * 1024 * 2)
    make_srd(k, S_SRDC, 48, WS_H, SZ_ACT)
    k.e("s_mov_b32 s%d, 2048" % S_LDX); k.e("s_mov_b32 s%d, 2048" % S_LDW); k.e("s_mov_b32 s%d, 2048" % S_LDC)
    k.e("s_mov_b32 s%d, 1" % S_FLAG)
    k.e("s_sub_u32 s%d, s2, 192" % S_T1)
    k.L(go)
    k.e("s_mov_b32 s%d, 16" % S_NK)
    k.e("s_and_b32 s%d, s%d, 7" % (S_M0, S_T1))
    k.e("s_lshl_b32 s%d, s%d, 8" % (S_M0, S_M0))
    k.e("s_lshr_b32 s%d, s%d, 3" % (S_N0, S_T1))
    k.e("s_lshl_b32 s%d, s%d, 7" % (S_N0, S_N0))
    gemm_lane_setup(k, c, r)
    k.e("s_mul_i32 s%d, s%d, s%d" % (S_KX, S_M0, S_LDX))
    k.e("s_lshl_b32 s%d, s%d, 1" % (S_KW, S_N0))
    gemm_kloop(k, c, r)
    eg = k.lab("EG")
    k.e("s_cmp_eq_u32 s%d, 1" % S_FLAG)
    k.e("s_cbranch_scc1 %s" % eg)
    gemm_epilogue(k, c, r, 'store')
    k.e("s_endpgm")
    k.L(eg)
    gemm_epilogue(k, c, r, 'gelu')
    k.L(end)
    k.e("s_endpgm")
    return k, r.ep + 20, c.LDS, 512


def gen_gemm2():
    c = GemmCfg(2, 2, 2, 1)
    r = GemmRegs(c, shifted=True)
    r.ep = r.end
    k = K("gemm2_kernel")
    end = gemm_head(k, 256)
    load_ptr(k, 44, "A_x"); load_ptr(k, 46, "w2"); load_ptr(k, 48, "ws")
    k.e("s_waitcnt lgkmcnt(0)")
    make_srd(k, S_SRDX, 48, WS_H, SZ_ACT)
    make_srd(k, S_SRDW, 46, 0, 1024 * 1024 * 2)
    make_srd(k, S_SRDC, 48, WS_X1, SZ_ACT)
    make_srd(k, S_SRDR, 44, 0, SZ_ACT)
    k.e("s_mov_b32 s%d, 2048" % S_LDX); k.e("s_mov_b32 s%d, 2048" % S_LDW); k.e("s_mov_b32 s%d, 2048" % S_LDC)
    k.e("s_mov_b32 s%d, 16" % S_NK)
    k.e("s_and_b32 s%d, s2, 15" % S_M0)
    k.e("s_lshl_b32 s%d, s%d, 7" % (S_M0, S_M0))
    k.e("s_lshr_b32 s%d, s2, 4" % S_N0)
    k.e("s_lshl_b32 s%d, s%d, 6" % (S_N0, S_N0))
    gemm_lane_setup(k, c, r)
    k.e("s_mov_b32 s%d, 0" % S_KX)
    k.e("s_lshl_b32 s%d, s%d, 1" % (S_KW, S_N0))
    gemm_kloop(k, c, r, shifted=True)
    gemm_epilogue(k, c, r, 'resid')
    k.L(end)
    k.e("s_endpgm")
    return k, r.ep + 20, c.LDS, 256


def gen_gemm4():
    c = GemmCfg(4, 2, 2, 2)
    r = GemmRegs(c)
    r.ep = r.end
    k = K("gemm4_kernel")
    end = gemm_head(k, 224)
    load_ptr(k, 46, "w3"); load_ptr(k, 48, "ws")
    k.e("s_waitcnt lgkmcnt(0)")
    make_srd(k, S_SRDX, 48, WS_LNX1, SZ_ACT)
    make_srd(k, S_SRDW, 46, 0, 1024 * 3584 * 2)
    make_srd(k, S_SRDC, 48, WS_H3, SZ_H3)
    k.e("s_mov_b32 s%d, 2048" % S_LDX); k.e("s_mov_b32 s%d, 7168" % S_LDW); k.e("s_mov_b32 s%d, 7168" % S_LDC)
    k.e("s_mov_b32 s%d, 16" % S_NK)
    k.e("s_and_b32 s%d, s2, 7" % S_M0)
    k.e("s_lshl_b32 s%d, s%d, 8" % (S_M0, S_M0))
    k.e("s_lshr_b32 s%d, s2, 3" % S_N0)
    k.e("s_lshl_b32 s%d, s%d, 7" % (S_N0, S_N0))
    gemm_lane_setup(k, c, r)
    k.e("s_mul_i32 s%d, s%d, s%d" % (S_KX, S_M0, S_LDX))
    k.e("s_lshl_b32 s%d, s%d, 1" % (S_KW, S_N0))
    gemm_kloop(k, c, r)
    gemm_epilogue(k, c, r, 'gelu')
    k.L(end)
    k.e("s_endpgm")
    return k, r.ep + 20, c.LDS, 512


def gen_gemm5():
    c = GemmCfg(2, 2, 2, 1)
    r = GemmRegs(c)
    r.save = r.end
    r.ep = r.save + r.nacc
    k = K("gemm5_kernel")
    end = gemm_head(k, 256)
    load_ptr(k, 44, "wo"); load_ptr(k, 46, "w4"); load_ptr(k, 48, "ws"); load_ptr(k, 50, "out")
    k.e("s_waitcnt lgkmcnt(0)")
    make_srd(k, S_SRDX, 48, WS_O, SZ_ACT)
    make_srd(k, S_SRDW, 44, 0, 1024 * 1024 * 2)
    make_srd(k, S_SRDC, 50, 0, SZ_ACT)
    make_srd(k, S_SRDR, 48, WS_X1, SZ_ACT)
    make_srd(k, S_SRDG, 48, WS_G, 2048 * 4)
    k.e("s_mov_b32 s%d, 2048" % S_LDX); k.e("s_mov_b32 s%d, 2048" % S_LDW); k.e("s_mov_b32 s%d, 2048" % S_LDC)
    k.e("s_mov_b32 s%d, 16" % S_NK)
    k.e("s_and_b32 s%d, s2, 15" % S_M0)
    k.e("s_lshl_b32 s%d, s%d, 7" % (S_M0, S_M0))
    k.e("s_lshr_b32 s%d, s2, 4" % S_N0)
    k.e("s_lshl_b32 s%d, s%d, 6" % (S_N0, S_N0))
    gemm_lane_setup(k, c, r)
    k.e("s_mul_i32 s%d, s%d, s%d" % (S_KX, S_M0, S_LDX))
    k.e("s_lshl_b32 s%d, s%d, 1" % (S_KW, S_N0))
    gemm_kloop(k, c, r)
    k.nop(15); k.nop(7)
    for i in range(r.nacc):
        k.e("v_mov_b32 v%d, v%d" % (r.save + i, r.acc_base + i))
    k.e("s_barrier")
    make_srd(k, S_SRDX, 48, WS_H3, SZ_H3)
    make_srd(k, S_SRDW, 46, 0, 3584 * 1024 * 2)
    k.e("s_mov_b32 s%d, 7168" % S_LDX)
    k.e("s_mov_b32 s%d, 56" % S_NK)
    gemm_lane_setup(k, c, r)
    k.e("s_mul_i32 s%d, s%d, s%d" % (S_KX, S_M0, S_LDX))
    k.e("s_lshl_b32 s%d, s%d, 1" % (S_KW, S_N0))
    gemm_kloop(k, c, r)
    gemm_epilogue(k, c, r, 'final')
    k.L(end)
    k.e("s_endpgm")
    return k, r.ep + 20, c.LDS, 256


def emit_softmax_pm(k, d, ep_, em_, tmp, vperm):
    mx, mn, t0, t1, sp, sm = tmp, tmp + 1, tmp + 2, tmp + 3, tmp + 4, tmp + 5
    E = tmp + 6
    for i in range(8):
        k.e("v_cvt_pk_bf16_f32 v%d, v%d, v%d" % (t0, d + 2 * i, d + 2 * i + 1))
        k.e("v_lshlrev_b32 v%d, 16, v%d" % (d + 2 * i, t0))
        k.e("v_and_b32 v%d, 0xffff0000, v%d" % (d + 2 * i + 1, t0))
    k.e("v_max_f32 v%d, v%d, v%d" % (mx, d, d + 1))
    k.e("v_min_f32 v%d, v%d, v%d" % (mn, d, d + 1))
    for i in range(1, 8):
        k.e("v_max3_f32 v%d, v%d, v%d, v%d" % (mx, mx, d + 2 * i, d + 2 * i + 1))
        k.e("v_min3_f32 v%d, v%d, v%d, v%d" % (mn, mn, d + 2 * i, d + 2 * i + 1))
    k.e("ds_bpermute_b32 v%d, v%d, v%d" % (t0, vperm, mx))
    k.e("ds_bpermute_b32 v%d, v%d, v%d" % (t1, vperm, mn))
    k.e("s_waitcnt lgkmcnt(0)")
    k.e("v_max_f32 v%d, v%d, v%d" % (mx, mx, t0))
    k.e("v_min_f32 v%d, v%d, v%d" % (mn, mn, t1))
    k.e("v_mul_f32 v%d, 0x%x, v%d" % (mx, LOG2E ^ 0x80000000, mx))
    k.e("v_mul_f32 v%d, 0x%x, v%d" % (mn, LOG2E, mn))
    k.e("v_mov_b32 v%d, 0x%x" % (t0, LOG2E))
    for i in range(16):
        k.e("v_fma_f32 v%d, v%d, v%d, v%d" % (E + i, d + i, t0, mx))
        k.e("v_fma_f32 v%d, -v%d, v%d, v%d" % (E + 16 + i, d + i, t0, mn))
        k.e("v_exp_f32 v%d, v%d" % (E + i, E + i))
        k.e("v_exp_f32 v%d, v%d" % (E + 16 + i, E + 16 + i))
    k.nop(0)
    k.e("v_add_f32 v%d, v%d, v%d" % (sp, E, E + 1))
    k.e("v_add_f32 v%d, v%d, v%d" % (sm, E + 16, E + 17))
    for i in range(2, 16):
        k.e("v_add_f32 v%d, v%d, v%d" % (sp, sp, E + i))
        k.e("v_add_f32 v%d, v%d, v%d" % (sm, sm, E + 16 + i))
    k.e("ds_bpermute_b32 v%d, v%d, v%d" % (t0, vperm, sp))
    k.e("ds_bpermute_b32 v%d, v%d, v%d" % (t1, vperm, sm))
    k.e("s_waitcnt lgkmcnt(0)")
    k.e("v_add_f32 v%d, v%d, v%d" % (sp, sp, t0))
    k.e("v_add_f32 v%d, v%d, v%d" % (sm, sm, t1))
    k.e("v_rcp_f32 v%d, v%d" % (sp, sp))
    k.e("v_rcp_f32 v%d, v%d" % (sm, sm))
    k.nop(0)
    for i in range(8):
        k.e("v_mul_f32 v%d, v%d, v%d" % (E + 2 * i, E + 2 * i, sp))
        k.e("v_mul_f32 v%d, v%d, v%d" % (E + 2 * i + 1, E + 2 * i + 1, sp))
        k.e("v_cvt_pk_bf16_f32 v%d, v%d, v%d" % (ep_ + i, E + 2 * i, E + 2 * i + 1))
        k.e("v_mul_f32 v%d, v%d, v%d" % (E + 16 + 2 * i, E + 16 + 2 * i, sm))
        k.e("v_mul_f32 v%d, v%d, v%d" % (E + 16 + 2 * i + 1, E + 16 + 2 * i + 1, sm))
        k.e("v_cvt_pk_bf16_f32 v%d, v%d, v%d" % (em_ + i, E + 16 + 2 * i, E + 16 + 2 * i + 1))


def emit_wphi_load(k, srd, s_hd, wp, vlane31, vh, t0, tmp=144):
    k.e("v_lshlrev_b32 v%d, 9, v%d" % (t0, vh))
    k.e("v_lshl_add_u32 v%d, v%d, 1, v%d" % (t0, vlane31, t0))
    k.e("s_lshl_b32 s40, s%d, 11" % s_hd)
    for t in range(2):
        for e in range(8):
            k.e("buffer_load_ushort v%d, v%d, %s, s40 offen offset:%d" % (tmp + 8 * t + e, t0, sr(srd, 4), (16 * t + e) * 64))
    k.e("s_waitcnt vmcnt(0)")
    for t in range(2):
        for e in range(0, 8, 2):
            k.e("v_lshl_or_b32 v%d, v%d, 16, v%d" % (wp + 4 * t + e // 2, tmp + 8 * t + e + 1, tmp + 8 * t + e))


def gen_kv():
    k = K("kv_kernel")
    end = k.lab("END")
    k.e("s_cmp_ge_u32 s2, 256")
    k.e("s_cbranch_scc1 %s" % end)
    load_ptr(k, 4, "ws"); load_ptr(k, 6, "w_phi")
    k.e("v_lshrrev_b32 v1, 6, v0")
    k.nop(0)
    k.e("v_readfirstlane_b32 s12, v1")
    k.e("s_waitcnt lgkmcnt(0)")
    make_srd(k, 16, 4, WS_QKV, SZ_QKV)
    make_srd(k, 20, 6, 0, 32 * 32 * 32 * 2)
    make_srd(k, 24, 4, WS_KVP, 256 * KVP_STRIDE)
    k.e("s_and_b32 s13, s2, 31")
    k.e("s_lshr_b32 s14, s2, 5")
    k.e("v_and_b32 v1, 63, v0")
    k.e("v_and_b32 v2, 31, v0")
    k.e("v_bfe_u32 v3, v0, 5, 1")
    k.e("v_xor_b32 v4, 32, v1")
    k.e("v_lshlrev_b32 v4, 2, v4")
    WP = 8
    emit_wphi_load(k, 20, 13, WP, 2, 3, 5)
    k.e("s_mul_i32 s15, s12, 6144")
    k.e("v_lshlrev_b32 v5, 8, v3")
    k.e("v_lshl_add_u32 v5, v2, 1, v5")
    k.e("v_add_u32 v5, s15, v5")
    k.e("v_lshlrev_b32 v6, 6, v2")
    k.e("v_lshl_add_u32 v6, v3, 4, v6")
    k.e("v_add_u32 v6, s15, v6")
    k.e("v_bfe_u32 v7, v0, 2, 2")
    k.e("v_lshl_add_u32 v7, v3, 3, v7")
    k.e("v_lshlrev_b32 v7, 6, v7")
    k.e("v_bfe_u32 v16, v0, 4, 1")
    k.e("v_lshl_add_u32 v7, v16, 5, v7")
    k.e("v_and_b32 v16, 3, v0")
    k.e("v_lshl_add_u32 v7, v16, 3, v7")
    k.e("v_add_u32 v7, s15, v7")
    k.e("v_add_u32 v7, 4096, v7")
    k.e("v_lshlrev_b32 v17, 4, v1")
    k.e("v_add_u32 v17, s15, v17")
    for i in range(4):
        k.e("v_mov_b32 v%d, 0x3f803f80" % (20 + i))
    D2 = [64, 80]
    D3 = [96, 112]
    for i in range(64):
        k.e("v_mov_b32 v%d, 0" % (64 + i))
    D1 = 128
    KF = 24
    VT = 32
    PP, PM = 40, 48
    AF = 56
    BF = 60
    TMP = 144
    for tile in range(2):
        k.e("s_lshl_b32 s30, s14, 8")
        k.e("s_lshl_b32 s31, s12, 6")
        k.e("s_add_u32 s30, s30, s31")
        k.e("s_add_u32 s30, s30, %d" % (tile * 32))
        k.e("s_mul_i32 s31, s30, 6144")
        k.e("s_lshl_b32 s32, s13, 6")
        k.e("s_add_u32 s31, s31, s32")
        k.e("v_mul_u32_u24 v18, 6144, v2")
        k.e("v_lshl_add_u32 v18, v3, 4, v18")
        k.e("s_add_u32 s33, s31, 2048")
        k.e("buffer_load_dwordx4 v[%d:%d], v18, s[16:19], s33 offen" % (KF, KF + 3))
        k.e("buffer_load_dwordx4 v[%d:%d], v18, s[16:19], s33 offen offset:32" % (KF + 4, KF + 7))
        k.e("v_lshrrev_b32 v19, 2, v1")
        k.e("v_mul_u32_u24 v19, 6144, v19")
        k.e("v_and_b32 v16, 3, v1")
        k.e("v_lshl_add_u32 v19, v16, 4, v19")
        k.e("s_add_u32 s33, s31, 4096")
        k.e("buffer_load_dwordx4 v[%d:%d], v19, s[16:19], s33 offen" % (VT, VT + 3))
        k.e("s_add_u32 s33, s33, %d" % (16 * 6144))
        k.e("buffer_load_dwordx4 v[%d:%d], v19, s[16:19], s33 offen" % (VT + 4, VT + 7))
        for i in range(16):
            k.e("v_mov_b32 v%d, 0" % (D1 + i))
        k.e("s_waitcnt vmcnt(0)")
        k.e("ds_write_b128 v17, v[%d:%d] offset:4096" % (VT, VT + 3))
        k.e("ds_write_b128 v17, v[%d:%d] offset:5120" % (VT + 4, VT + 7))
        for t in range(2):
            k.e("v_mfma_f32_32x32x16_bf16 %s, %s, %s, %s" % (vr(D1, 16), vr(WP + 4 * t, 4), vr(KF + 4 * t, 4), vr(D1, 16)))
        k.nop(15); k.nop(3)
        emit_softmax_pm(k, D1, PP, PM, TMP, 4)
        for half, P in ((0, PP), (1, PM)):
            for i in range(8):
                r0 = 2 * i
                f = 8 * (r0 >> 2) + (r0 & 3)
                k.e("ds_write_b16 v5, v%d offset:%d" % (P + i, half * 2048 + f * 64))
                k.e("ds_write_b16_d16_hi v5, v%d offset:%d" % (P + i, half * 2048 + (f + 1) * 64))
        k.e("s_waitcnt lgkmcnt(0)")
        for t in range(2):
            k.e("ds_read_b64_tr_b16 %s, v7 offset:%d" % (vr(BF, 2), (16 * t) * 64))
            k.e("ds_read_b64_tr_b16 %s, v7 offset:%d" % (vr(BF + 2, 2), (16 * t + 4) * 64))
            for ft in range(2):
                k.e("ds_read_b128 %s, v6 offset:%d" % (vr(AF, 4), ft * 2048 + t * 32))
                k.e("s_waitcnt lgkmcnt(0)")
                k.e("v_mfma_f32_32x32x16_bf16 %s, %s, %s, %s" % (vr(D2[ft], 16), vr(AF, 4), vr(BF, 4), vr(D2[ft], 16)))
                k.e("v_mfma_f32_32x32x16_bf16 %s, %s, %s, %s" % (vr(D3[ft], 16), vr(AF, 4), vr(20, 4), vr(D3[ft], 16)))
                k.nop(7)
        k.nop(7)
    k.nop(15); k.nop(3)
    k.e("s_mul_i32 s15, s12, 8448")
    k.e("v_lshlrev_b32 v5, 9, v3")
    k.e("v_lshl_add_u32 v5, v2, 2, v5")
    k.e("v_add_u32 v5, s15, v5")
    k.e("v_add_u32 v5, 24576, v5")
    for ft in range(2):
        for r_ in range(16):
            f = 32 * ft + 8 * (r_ >> 2) + (r_ & 3)
            k.e("ds_write_b32 v5, v%d offset:%d" % (D2[ft] + r_, f * 128))
    k.e("v_lshlrev_b32 v6, 4, v3")
    k.e("v_add_u32 v6, s15, v6")
    k.e("v_add_u32 v6, 24576, v6")
    for ft in range(2):
        for r_ in range(16):
            f = 32 * ft + 8 * (r_ >> 2) + (r_ & 3)
            k.e("ds_write_b32 v6, v%d offset:%d" % (D3[ft] + r_, 8192 + f * 4))
    k.e("s_waitcnt lgkmcnt(0)")
    k.e("s_barrier")
    k.e("s_lshl_b32 s30, s13, 3")
    k.e("s_add_u32 s30, s30, s14")
    k.e("s_mul_i32 s30, s30, %d" % KVP_STRIDE)
    k.e("v_lshlrev_b32 v5, 2, v0")
    for j in range(9):
        if j == 8:
            k.e("v_cmp_gt_u32 vcc, 64, v0")
            k.e("s_and_saveexec_b64 s[42:43], vcc")
        for w in range(4):
            k.e("ds_read_b32 v%d, v5 offset:%d" % (8 + w, 24576 + w * 8448 + j * 1024))
        k.e("s_waitcnt lgkmcnt(0)")
        k.e("v_add_f32 v8, v8, v9")
        k.e("v_add_f32 v10, v10, v11")
        k.e("v_add_f32 v8, v8, v10")
        k.e("s_add_u32 s31, s30, %d" % (j * 1024))
        k.e("buffer_store_dword v8, v5, s[24:27], s31 offen")
    k.L(end)
    k.e("s_endpgm")
    return k, 184, 24576 + 4 * 8448, 256


def gen_attn():
    k = K("attn_kernel")
    end = k.lab("END")
    k.e("s_cmp_ge_u32 s2, 256")
    k.e("s_cbranch_scc1 %s" % end)
    load_ptr(k, 4, "ws"); load_ptr(k, 6, "w_phi")
    k.e("v_lshrrev_b32 v1, 6, v0")
    k.nop(0)
    k.e("v_readfirstlane_b32 s12, v1")
    k.e("s_waitcnt lgkmcnt(0)")
    make_srd(k, 16, 4, WS_QKV, SZ_QKV)
    make_srd(k, 20, 6, 0, 32 * 32 * 32 * 2)
    make_srd(k, 24, 4, WS_KVP, 256 * KVP_STRIDE)
    make_srd(k, 36, 4, WS_O, SZ_ACT)
    k.e("s_and_b32 s13, s2, 31")
    k.e("s_lshr_b32 s14, s2, 5")
    k.e("v_and_b32 v1, 63, v0")
    k.e("v_and_b32 v2, 31, v0")
    k.e("v_bfe_u32 v3, v0, 5, 1")
    k.e("v_xor_b32 v4, 32, v1")
    k.e("v_lshlrev_b32 v4, 2, v4")
    WP = 8
    emit_wphi_load(k, 20, 13, WP, 2, 3, 5)
    k.e("s_mul_i32 s30, s13, %d" % (8 * KVP_STRIDE))
    k.e("v_lshlrev_b32 v5, 2, v0")
    k.e("v_lshlrev_b32 v6, 7, v2")
    k.e("v_lshrrev_b32 v7, 5, v0")
    k.e("v_lshl_add_u32 v6, v7, 1, v6")
    for j in range(9):
        if j == 8:
            k.e("v_cmp_gt_u32 vcc, 64, v0")
            k.e("s_and_saveexec_b64 s[42:43], vcc")
            k.e("v_lshlrev_b32 v6, 1, v0")
            k.e("v_add_u32 v6, 4096, v6")
        for cch in range(8):
            k.e("s_add_u32 s31, s30, %d" % (cch * KVP_STRIDE + j * 1024))
            k.e("buffer_load_dword v%d, v5, s[24:27], s31 offen" % (16 + cch))
        k.e("s_waitcnt vmcnt(0)")
        for cch in range(1, 8):
            k.e("v_add_f32 v16, v16, v%d" % (16 + cch))
        k.e("v_cvt_pk_bf16_f32 v16, v16, v16")
        k.e("ds_write_b16 v6, v16 offset:%d" % (16 * j if j < 8 else 0))
    k.e("s_mov_b64 exec, -1")
    k.e("s_waitcnt lgkmcnt(0)")
    k.e("s_barrier")
    k.e("v_lshlrev_b32 v5, 7, v2")
    k.e("v_lshl_add_u32 v5, v3, 3, v5")
    k.e("v_lshlrev_b32 v6, 3, v3")
    k.e("v_add_u32 v6, 4096, v6")
    QF = 24
    PP, PM = 40, 48
    AF, ZF = 56, 60
    DN, DD = 64, 80
    D1 = 128
    TMP = 144
    for tile in range(2):
        k.e("s_lshl_b32 s30, s14, 8")
        k.e("s_lshl_b32 s31, s12, 6")
        k.e("s_add_u32 s30, s30, s31")
        k.e("s_add_u32 s30, s30, %d" % (tile * 32))
        k.e("s_mul_i32 s31, s30, 6144")
        k.e("s_lshl_b32 s32, s13, 6")
        k.e("s_add_u32 s31, s31, s32")
        k.e("v_mul_u32_u24 v18, 6144, v2")
        k.e("v_lshl_add_u32 v18, v3, 4, v18")
        k.e("buffer_load_dwordx4 v[%d:%d], v18, s[16:19], s31 offen" % (QF, QF + 3))
        k.e("buffer_load_dwordx4 v[%d:%d], v18, s[16:19], s31 offen offset:32" % (QF + 4, QF + 7))
        for i in range(16):
            k.e("v_mov_b32 v%d, 0" % (D1 + i))
        for i in range(32):
            k.e("v_mov_b32 v%d, 0" % (DN + i))
        k.e("s_waitcnt vmcnt(0)")
        for t in range(2):
            k.e("v_mfma_f32_32x32x16_bf16 %s, %s, %s, %s" % (vr(D1, 16), vr(WP + 4 * t, 4), vr(QF + 4 * t, 4), vr(D1, 16)))
        k.nop(15); k.nop(3)
        emit_softmax_pm(k, D1, PP, PM, TMP, 4)
        for tt in range(4):
            B = (PP if tt < 2 else PM) + 4 * (tt & 1)
            k.e("ds_read_b64 %s, v5 offset:%d" % (vr(AF, 2), tt * 32))
            k.e("ds_read_b64 %s, v5 offset:%d" % (vr(AF + 2, 2), tt * 32 + 16))
            k.e("ds_read_b64 %s, v6 offset:%d" % (vr(ZF, 2), tt * 32))
            k.e("ds_read_b64 %s, v6 offset:%d" % (vr(ZF + 2, 2), tt * 32 + 16))
            k.e("s_waitcnt lgkmcnt(0)")
            k.e("v_mfma_f32_32x32x16_bf16 %s, %s, %s, %s" % (vr(DN, 16), vr(AF, 4), vr(B, 4), vr(DN, 16)))
            k.e("v_mfma_f32_32x32x16_bf16 %s, %s, %s, %s" % (vr(DD, 16), vr(ZF, 4), vr(B, 4), vr(DD, 16)))
            k.nop(7)
        k.nop(15); k.nop(3)
        rnd_bf16(k, DD)
        k.e("v_add_f32 v%d, 0x358637bd, v%d" % (DD, DD))
        rnd_bf16(k, DD)
        k.e("v_rcp_f32 v%d, v%d" % (DD + 1, DD))
        k.nop(0)
        k.e("v_lshlrev_b32 v18, 11, v2")
        k.e("v_lshl_add_u32 v18, v3, 3, v18")
        k.e("s_lshl_b32 s31, s30, 11")
        k.e("s_add_u32 s31, s31, s32")
        for q in range(4):
            for i in range(4):
                x = DN + 4 * q + i
                rnd_bf16(k, x)
                k.e("v_mul_f32 v16, v%d, v%d" % (x, DD + 1))
                k.e("v_fma_f32 v17, -v16, v%d, v%d" % (DD, x))
                k.e("v_fma_f32 v%d, v17, v%d, v16" % (x, DD + 1))
            k.e("v_cvt_pk_bf16_f32 v16, v%d, v%d" % (DN + 4 * q, DN + 4 * q + 1))
            k.e("v_cvt_pk_bf16_f32 v17, v%d, v%d" % (DN + 4 * q + 2, DN + 4 * q + 3))
            k.e("buffer_store_dwordx2 v[16:17], v18, s[36:39], s31 offen offset:%d" % (q * 16))
            k.nop(1)
    k.L(end)
    k.e("s_endpgm")
    return k, 184, 8192, 256


HEADER = open("gated_mix__linear_kernel_hedgehog__mixer_s_mlp__prompt.s.ref").read().split("; Override launch")[0]


def main(out):
    kernels = []
    launches = []

    def add(gen, grid, block=None, lds=None):
        res = gen()
        k, v = res[0], res[1]
        l = res[2] if len(res) > 2 else 0
        b = res[3] if len(res) > 3 else 256
        kernels.append((k, v))
        launches.append("; @launch kernel=%s grid=(%d,1,1) block=(%d,1,1) lds=%d" % (k.name, grid, b, l))

    add(gen_prep, 1024)
    add(gen_gemm1, 256)
    add(gen_gemm2, 256)
    add(gen_kv, 256)
    add(gen_attn, 256)
    add(gen_ln1, 512)
    add(gen_gemm4, 224)
    add(gen_gemm5, 256)
    txt = [HEADER.rstrip("\n")] + launches + ['.amdgcn_target "amdgcn-amd-amdhsa--gfx950"', ".text"]
    for k, v in kernels:
        txt += k.text(v)
    txt += ['.section .rodata,"a"', ".p2align 6"]
    for k, v in kernels:
        txt += desc(k.name, v)
        txt += [".p2align 6"]
    open(out, "w").write("\n".join(txt) + "\n")


if __name__ == "__main__":
    main(sys.argv[1] if len(sys.argv) > 1 else "gated_mix__linear_kernel_hedgehog__mixer_s_mlp__prompt.s")
```

```python
import sys, re

import os
DBG = set(os.environ.get('GENDBG', '').split(','))
MB = 1 << 20
WS_LNX = 0
WS_QKV = 4 * MB
WS_H = 16 * MB
WS_X1 = 20 * MB
WS_LNX1 = 24 * MB
WS_H3 = 28 * MB
WS_O = 44 * MB
WS_KVP = 48 * MB
WS_G = 52 * MB

KA = dict(A_x=0, wqkv=8, w_phi=16, wo=24, B_x=32, w1=40, w2=48, w3=56, w4=64, gate_w=72, out=80, dbg=88, ws=96)
SZ_ACT = 2048 * 1024 * 2
SZ_QKV = 2048 * 3072 * 2
SZ_H3 = 2048 * 3584 * 2
KVP_STRIDE = (64 * 32 + 64) * 4


class K:
    def __init__(self, name):
        self.name = name
        self.lines = []
        self.nlab = 0
        self.max_v = 0
        self.max_s = 0

    def e(self, s):
        if s.startswith("buffer_"):
            m = re.search(r"offset:(\d+)", s)
            assert not m or int(m.group(1)) < 4096, s
        if s.startswith("ds_"):
            m = re.search(r"offset:(\d+)", s)
            assert not m or int(m.group(1)) < 65536, s
        self.lines.append("    " + s)

    def c(self, s):
        self.lines.append("    ; " + s)

    def lab(self, base="L"):
        self.nlab += 1
        return "%s_%s_%d" % (base, self.name, self.nlab)

    def L(self, l):
        self.lines.append(l + ":")

    def nop(self, n=0):
        self.e("s_nop %d" % n)

    def text(self, vgprs, sgprs=102, lds=0):
        v = (vgprs + 7) // 8 * 8
        acc = (vgprs + 3) // 4 * 4
        hdr = [
            ".globl %s" % self.name,
            ".p2align 8",
            ".type %s,@function" % self.name,
            "%s:" % self.name,
        ]
        return hdr + self.lines


def desc(name, vgprs, sgprs=104):
    v = (vgprs + 7) // 8 * 8
    return [
        ".amdhsa_kernel %s" % name,
        "  .amdhsa_next_free_vgpr %d" % v,
        "  .amdhsa_next_free_sgpr %d" % min(sgprs, 102),
        "  .amdhsa_accum_offset %d" % v,
        "  .amdhsa_group_segment_fixed_size 0",
        "  .amdhsa_kernarg_size 104",
        "  .amdhsa_user_sgpr_count 2",
        "  .amdhsa_user_sgpr_kernarg_segment_ptr 1",
        "  .amdhsa_system_sgpr_workgroup_id_x 1",
        ".end_amdhsa_kernel",
    ]


def vr(a, n=1):
    return "v%d" % a if n == 1 else "v[%d:%d]" % (a, a + n - 1)


def sr(a, n=1):
    return "s%d" % a if n == 1 else "s[%d:%d]" % (a, a + n - 1)


def load_ptr(k, dst, key):
    k.e("s_load_dwordx2 %s, s[0:1], %d" % (sr(dst, 2), KA[key]))


def make_srd(k, dst, ptr, off, size):
    k.e("s_add_u32 s%d, s%d, 0x%x" % (dst, ptr, off))
    k.e("s_addc_u32 s%d, s%d, 0" % (dst + 1, ptr + 1))
    k.e("s_mov_b32 s%d, 0x%x" % (dst + 2, size))
    k.e("s_mov_b32 s%d, 0x00020000" % (dst + 3))


LOG2E = 0x3FB8AA3B


def rnd_bf16(k, v, tmp=None):
    k.e("v_cvt_pk_bf16_f32 %s, %s, %s" % (vr(v), vr(v), vr(v)))
    k.e("v_lshlrev_b32 %s, 16, %s" % (vr(v), vr(v)))


def wave_reduce(k, v, vaddr, vtmp, op="v_add_f32"):
    for m in (1, 2, 4, 8, 16, 32):
        k.e("v_xor_b32 %s, %d, %s" % (vr(vtmp), m * 4, vr(vaddr)))
        k.e("ds_bpermute_b32 %s, %s, %s" % (vr(vtmp), vr(vtmp), vr(v)))
        k.e("s_waitcnt lgkmcnt(0)")
        k.e("%s %s, %s, %s" % (op, vr(v), vr(v), vr(vtmp)))


def emit_ln(k, s_row, srd_in, srd_out):
    k.e("v_and_b32 v1, 63, v0")
    k.e("v_lshlrev_b32 v2, 4, v1")
    k.e("s_lshl_b32 s40, s%d, 11" % s_row)
    k.e("v_add_u32 v2, s40, v2")
    k.e("buffer_load_dwordx4 v[8:11], v2, %s, 0 offen" % sr(srd_in, 4))
    k.e("buffer_load_dwordx4 v[12:15], v2, %s, 0 offen offset:1024" % sr(srd_in, 4))
    k.e("v_lshlrev_b32 v3, 2, v1")
    k.e("s_waitcnt vmcnt(0)")
    for i in range(8):
        k.e("v_lshlrev_b32 v%d, 16, v%d" % (16 + 2 * i, 8 + i))
        k.e("v_and_b32 v%d, 0xffff0000, v%d" % (17 + 2 * i, 8 + i))
    k.e("v_add_f32 v4, v16, v17")
    for i in range(2, 16):
        k.e("v_add_f32 v4, v4, v%d" % (16 + i))
    wave_reduce(k, 4, 3, 5)
    k.e("v_mul_f32 v4, 0x3a800000, v4")
    k.e("v_sub_f32 v5, v16, v4")
    k.e("v_mul_f32 v6, v5, v5")
    for i in range(1, 16):
        k.e("v_sub_f32 v5, v%d, v4" % (16 + i))
        k.e("v_fmac_f32 v6, v5, v5")
    wave_reduce(k, 6, 3, 5)
    k.e("v_mul_f32 v6, 0x3a800000, v6")
    rnd_bf16(k, 4)
    rnd_bf16(k, 6)
    k.e("v_add_f32 v6, 0x3727c5ac, v6")
    rnd_bf16(k, 6)
    k.e("v_sqrt_f32 v6, v6")
    k.nop(0)
    rnd_bf16(k, 6)
    k.e("v_rcp_f32 v7, v6")
    k.nop(0)
    for i in range(16):
        x = 16 + i
        k.e("v_sub_f32 v%d, v%d, v4" % (x, x))
        rnd_bf16(k, x)
        k.e("v_mul_f32 v5, v%d, v7" % x)
        k.e("v_fma_f32 v32, -v5, v6, v%d" % x)
        k.e("v_fma_f32 v%d, v32, v7, v5" % x)
    for i in range(8):
        k.e("v_cvt_pk_bf16_f32 v%d, v%d, v%d" % (8 + i, 16 + 2 * i, 17 + 2 * i))
    k.e("buffer_store_dwordx4 v[8:11], v2, %s, 0 offen" % sr(srd_out, 4))
    k.e("buffer_store_dwordx4 v[12:15], v2, %s, 0 offen offset:1024" % sr(srd_out, 4))


def gen_prep():
    k = K("prep_kernel")
    k.e("s_cmp_ge_u32 s2, 1024")
    end = k.lab("END")
    k.e("s_cbranch_scc1 %s" % end)
    load_ptr(k, 4, "A_x")
    load_ptr(k, 6, "ws")
    load_ptr(k, 8, "A_x")
    load_ptr(k, 10, "gate_w")
    k.e("v_lshrrev_b32 v1, 6, v0")
    k.nop(0)
    k.e("v_readfirstlane_b32 s12, v1")
    k.e("s_waitcnt lgkmcnt(0)")
    gate = k.lab("GATE")
    k.e("s_cmp_ge_u32 s2, 512")
    k.e("s_cbranch_scc1 %s" % gate)
    k.e("s_lshl_b32 s13, s2, 2")
    k.e("s_add_u32 s13, s13, s12")
    make_srd(k, 16, 4, 0, SZ_ACT)
    make_srd(k, 20, 6, WS_LNX, SZ_ACT)
    emit_ln(k, 13, 16, 20)
    k.e("s_endpgm")
    k.L(gate)
    k.e("s_sub_u32 s13, s2, 512")
    k.e("s_lshl_b32 s13, s13, 2")
    k.e("s_add_u32 s13, s13, s12")
    make_srd(k, 16, 8, 0, SZ_ACT)
    make_srd(k, 20, 10, 0, 2048)
    make_srd(k, 24, 6, WS_G, 2048 * 4)
    k.e("v_and_b32 v1, 63, v0")
    k.e("v_lshlrev_b32 v2, 4, v1")
    k.e("s_lshl_b32 s40, s13, 11")
    k.e("v_add_u32 v3, s40, v2")
    k.e("buffer_load_dwordx4 v[8:11], v3, s[16:19], 0 offen")
    k.e("buffer_load_dwordx4 v[12:15], v3, s[16:19], 0 offen offset:1024")
    k.e("buffer_load_dwordx4 v[32:35], v2, s[20:23], 0 offen")
    k.e("buffer_load_dwordx4 v[36:39], v2, s[20:23], 0 offen offset:1024")
    k.e("v_lshlrev_b32 v3, 2, v1")
    k.e("s_waitcnt vmcnt(0)")
    for i in range(8):
        k.e("v_lshlrev_b32 v%d, 16, v%d" % (16 + 2 * i, 8 + i))
        k.e("v_and_b32 v%d, 0xffff0000, v%d" % (17 + 2 * i, 8 + i))
        k.e("v_lshlrev_b32 v4, 16, v%d" % (32 + i))
        k.e("v_and_b32 v5, 0xffff0000, v%d" % (32 + i))
        k.e("v_mul_f32 v%d, v%d, v4" % (16 + 2 * i, 16 + 2 * i))
        k.e("v_mul_f32 v%d, v%d, v5" % (17 + 2 * i, 17 + 2 * i))
        k.e("v_cvt_pk_bf16_f32 v4, v%d, v%d" % (16 + 2 * i, 17 + 2 * i))
        k.e("v_lshlrev_b32 v%d, 16, v4" % (16 + 2 * i))
        k.e("v_and_b32 v%d, 0xffff0000, v4" % (17 + 2 * i))
    k.e("v_add_f32 v4, v16, v17")
    for i in range(2, 16):
        k.e("v_add_f32 v4, v4, v%d" % (16 + i))
    wave_reduce(k, 4, 3, 5)
    rnd_bf16(k, 4)
    k.e("v_mul_f32 v4, 0xbfb8aa3b, v4")
    k.e("v_exp_f32 v4, v4")
    k.nop(0)
    k.e("v_add_f32 v4, 1.0, v4")
    k.e("v_rcp_f32 v4, v4")
    k.nop(0)
    rnd_bf16(k, 4)
    k.e("v_cmp_eq_u32 vcc, 0, v1")
    k.e("s_and_saveexec_b64 s[42:43], vcc")
    k.e("s_lshl_b32 s40, s13, 2")
    k.e("v_mov_b32 v5, s40")
    k.e("buffer_store_dword v4, v5, s[24:27], 0 offen")
    k.L(end)
    k.e("s_endpgm")
    return k, 48


def gen_ln1():
    k = K("ln1_kernel")
    end = k.lab("END")
    k.e("s_cmp_ge_u32 s2, 512")
    k.e("s_cbranch_scc1 %s" % end)
    load_ptr(k, 6, "ws")
    k.e("v_lshrrev_b32 v1, 6, v0")
    k.nop(0)
    k.e("v_readfirstlane_b32 s12, v1")
    k.e("s_waitcnt lgkmcnt(0)")
    k.e("s_lshl_b32 s13, s2, 2")
    k.e("s_add_u32 s13, s13, s12")
    make_srd(k, 16, 6, WS_X1, SZ_ACT)
    make_srd(k, 20, 6, WS_LNX1, SZ_ACT)
    emit_ln(k, 13, 16, 20)
    k.L(end)
    k.e("s_endpgm")
    return k, 48


class GemmCfg:
    def __init__(self, WM, WN, TM, TN, NS=3):
        self.WM, self.WN, self.TM, self.TN, self.NS = WM, WN, TM, TN, NS
        self.BM = WM * TM * 32
        self.BN = WN * TN * 32
        self.NW = WM * WN
        self.XB = self.BM * 128
        self.RB = self.BN * 2
        self.WB = 64 * self.RB
        self.STAGE = self.XB + self.WB
        self.XI = self.XB // 1024 // self.NW
        self.WI = self.WB // 1024 // self.NW
        assert self.XI * 1024 * self.NW == self.XB and self.WI * 1024 * self.NW == self.WB
        self.D = self.XI + self.WI
        self.R = TM + 2 * TN
        self.LDS = self.STAGE * NS


S_SRDX, S_SRDW, S_SRDC, S_SRDR, S_SRDG = 4, 8, 12, 16, 20
S_LDX, S_LDW, S_LDC, S_NK, S_M0, S_N0, S_WAVE, S_KT = 24, 25, 26, 27, 28, 29, 30, 31
S_KX, S_KW, S_CUR, S_OLD, S_DMX, S_DMW, S_T0, S_T1 = 32, 33, 34, 35, 36, 37, 38, 39
S_SHIFT, S_FLAG, S_T2, S_T3 = 40, 41, 42, 43


class GemmRegs:
    def __init__(self, cfg, shifted=False):
        c = cfg
        self.vt = list(range(1, 8))
        p = 8
        self.vxa = list(range(p, p + 4)); p += 4
        self.vwa = list(range(p, p + c.TN)); p += c.TN
        self.vxo = list(range(p, p + c.XI)); p += c.XI
        self.vwo = list(range(p, p + c.WI)); p += c.WI
        self.vxs = list(range(p, p + c.XI)) if shifted else None
        if shifted:
            p += c.XI
        p = (p + 3) // 4 * 4
        self.F = []
        for s in range(2):
            X = [p + 4 * i for i in range(c.TM)]; p += 4 * c.TM
            W = [p + 4 * i for i in range(c.TN)]; p += 4 * c.TN
            self.F.append((X, W))
        p = (p + 15) // 16 * 16
        self.acc = {}
        for tn in range(c.TN):
            for tm in range(c.TM):
                self.acc[(tn, tm)] = p; p += 16
        self.acc_base = self.acc[(0, 0)]
        self.nacc = 16 * c.TM * c.TN
        self.save = p
        self.end = p
        self.ep = None


def gemm_lane_setup(k, c, r):
    t0, t1, t2, t3 = r.vt[0:4]
    k.c("lane setup")
    k.e("v_and_b32 v%d, 63, v0" % t0)
    k.e("v_lshrrev_b32 v%d, 3, v%d" % (t1, t0))
    k.e("s_mul_i32 s%d, s%d, %d" % (S_T0, S_WAVE, c.XI * 8))
    k.e("v_add_u32 v%d, s%d, v%d" % (t1, S_T0, t1))
    k.e("v_mul_lo_u32 v%d, v%d, s%d" % (t1, t1, S_LDX))
    k.e("v_and_b32 v%d, 7, v%d" % (t2, t0))
    k.e("v_lshrrev_b32 v%d, 4, v%d" % (t3, t0))
    k.e("v_xor_b32 v%d, v%d, v%d" % (t2, t2, t3))
    for i in range(c.XI):
        k.e("s_mul_i32 s%d, s%d, %d" % (S_T0, S_WAVE, c.XI))
        k.e("s_add_u32 s%d, s%d, %d" % (S_T0, S_T0, i))
        k.e("s_and_b32 s%d, s%d, 1" % (S_T0, S_T0))
        k.e("s_lshl_b32 s%d, s%d, 2" % (S_T0, S_T0))
        k.e("v_xor_b32 v%d, s%d, v%d" % (t3, S_T0, t2))
        k.e("v_lshl_add_u32 v%d, v%d, 4, v%d" % (r.vxo[i], t3, t1))
        if i + 1 < c.XI:
            k.e("s_lshl_b32 s%d, s%d, 3" % (S_T0, S_LDX))
            k.e("v_add_u32 v%d, s%d, v%d" % (t1, S_T0, t1))
    if c.RB == 256:
        k.e("v_lshrrev_b32 v%d, 4, v%d" % (t1, t0))
        k.e("s_mul_i32 s%d, s%d, %d" % (S_T0, S_WAVE, c.WI * 4))
        k.e("v_add_u32 v%d, s%d, v%d" % (t2, S_T0, t1))
        k.e("v_mul_lo_u32 v%d, v%d, s%d" % (t2, t2, S_LDW))
        k.e("v_lshlrev_b32 v%d, 2, v%d" % (t1, t1))
        k.e("v_and_b32 v%d, 15, v%d" % (t3, t0))
        k.e("v_xor_b32 v%d, v%d, v%d" % (t3, t3, t1))
        for j in range(c.WI):
            k.e("v_lshl_add_u32 v%d, v%d, 4, v%d" % (r.vwo[j], t3, t2))
            if j + 1 < c.WI:
                k.e("s_lshl_b32 s%d, s%d, 2" % (S_T0, S_LDW))
                k.e("v_add_u32 v%d, s%d, v%d" % (t2, S_T0, t2))
    elif c.RB == 128:
        k.e("v_lshrrev_b32 v%d, 3, v%d" % (t1, t0))
        k.e("s_mul_i32 s%d, s%d, %d" % (S_T0, S_WAVE, c.WI * 8))
        k.e("v_add_u32 v%d, s%d, v%d" % (t2, S_T0, t1))
        k.e("v_mul_lo_u32 v%d, v%d, s%d" % (t2, t2, S_LDW))
        k.e("v_lshrrev_b32 v%d, 4, v%d" % (t1, t0))
        k.e("v_and_b32 v%d, 1, v%d" % (t1, t1))
        k.e("v_lshlrev_b32 v%d, 2, v%d" % (t1, t1))
        k.e("v_and_b32 v%d, 7, v%d" % (t3, t0))
        k.e("v_xor_b32 v%d, v%d, v%d" % (t3, t3, t1))
        for j in range(c.WI):
            k.e("v_lshl_add_u32 v%d, v%d, 4, v%d" % (r.vwo[j], t3, t2))
            if j + 1 < c.WI:
                k.e("s_lshl_b32 s%d, s%d, 3" % (S_T0, S_LDW))
                k.e("v_add_u32 v%d, s%d, v%d" % (t2, S_T0, t2))
    else:
        raise ValueError("RB")
    k.e("s_and_b32 s%d, s%d, %d" % (S_T2, S_WAVE, c.WM - 1))
    k.e("s_lshr_b32 s%d, s%d, %d" % (S_T3, S_WAVE, c.WM.bit_length() - 1))
    k.e("v_and_b32 v%d, 31, v%d" % (t1, t0))
    k.e("s_mul_i32 s%d, s%d, %d" % (S_T0, S_T2, c.TM * 32))
    k.e("v_add_u32 v%d, s%d, v%d" % (t1, S_T0, t1))
    k.e("v_lshlrev_b32 v%d, 7, v%d" % (t1, t1))
    k.e("v_lshrrev_b32 v%d, 5, v%d" % (t2, t0))
    k.e("v_bfe_u32 v%d, v%d, 1, 3" % (t3, t0))
    k.e("v_xor_b32 v%d, v%d, v%d" % (t2, t2, t3))
    for t in range(4):
        k.e("v_xor_b32 v%d, %d, v%d" % (t3, 2 * t, t2))
        k.e("v_lshl_add_u32 v%d, v%d, 4, v%d" % (r.vxa[t], t3, t1))
    k.e("v_bfe_u32 v%d, v%d, 2, 2" % (t1, t0))
    k.e("v_lshrrev_b32 v%d, 5, v%d" % (t2, t0))
    k.e("v_lshl_add_u32 v%d, v%d, 3, v%d" % (t2, t2, t1))
    k.e("v_mul_u32_u24 v%d, %d, v%d" % (t2, c.RB, t2))
    k.e("v_bfe_u32 v%d, v%d, 4, 1" % (t3, t0))
    k.e("v_lshl_add_u32 v%d, v%d, 5, v%d" % (t2, t3, t2))
    k.e("v_and_b32 v%d, 3, v%d" % (t3, t0))
    k.e("v_lshl_add_u32 v%d, v%d, 3, v%d" % (t2, t3, t2))
    k.e("v_add_u32 v%d, %d, v%d" % (t2, c.XB, t2))
    if c.RB == 128:
        k.e("v_lshrrev_b32 v%d, 1, v%d" % (t1, t1))
    for tn in range(c.TN):
        k.e("s_mul_i32 s%d, s%d, %d" % (S_T0, S_T3, c.TN))
        k.e("s_add_u32 s%d, s%d, %d" % (S_T0, S_T0, tn))
        k.e("v_xor_b32 v%d, s%d, v%d" % (t3, S_T0, t1))
        k.e("v_lshl_add_u32 v%d, v%d, 6, v%d" % (r.vwa[tn], t3, t2))
    k.e("s_mul_i32 s%d, s%d, %d" % (S_DMX, S_WAVE, c.XI * 1024))
    k.e("s_mul_i32 s%d, s%d, %d" % (S_DMW, S_WAVE, c.WI * 1024))
    k.e("s_add_u32 s%d, s%d, %d" % (S_DMW, S_DMW, c.XB))


def gemm_dma(k, c, r, s_stage, shifted):
    if 'nodma' in DBG:
        return
    xo = r.vxs if shifted else r.vxo
    k.e("s_add_u32 m0, s%d, s%d" % (s_stage, S_DMX))
    for i in range(c.XI):
        if i:
            k.e("s_add_u32 m0, m0, 1024")
        k.nop(0)
        k.e("buffer_load_dwordx4 v%d, %s, s%d offen lds" % (xo[i], sr(S_SRDX, 4), S_KX))
    k.e("s_add_u32 m0, s%d, s%d" % (s_stage, S_DMW))
    for j in range(c.WI):
        if j:
            k.e("s_add_u32 m0, m0, 1024")
        k.nop(0)
        k.e("buffer_load_dwordx4 v%d, %s, s%d offen lds" % (r.vwo[j], sr(S_SRDW, 4), S_KW))


def gemm_shift_update(k, c, r, s_kidx):
    k.e("s_lshr_b32 s%d, s%d, 2" % (S_T0, s_kidx))
    k.e("s_and_b32 s%d, s%d, 1" % (S_T1, S_T0))
    k.e("s_lshr_b32 s%d, s%d, 1" % (S_T0, S_T0))
    k.e("s_lshl_b32 s%d, 2048, s%d" % (S_SHIFT, S_T0))
    k.e("s_sub_u32 s%d, 0, s%d" % (S_T0, S_SHIFT))
    k.e("s_cmp_eq_u32 s%d, 1" % S_T1)
    k.e("s_cselect_b32 s%d, s%d, s%d" % (S_SHIFT, S_SHIFT, S_T0))
    k.e("s_lshl_b32 s%d, s%d, 11" % (S_T0, S_M0))
    k.e("s_add_u32 s%d, s%d, s%d" % (S_SHIFT, S_SHIFT, S_T0))
    for i in range(c.XI):
        k.e("v_add_u32 v%d, s%d, v%d" % (r.vxs[i], S_SHIFT, r.vxo[i]))


def gemm_reads(k, c, r, t, fs):
    if 'noreads' in DBG:
        return
    X, W = r.F[fs]
    for tm in range(c.TM):
        k.e("ds_read_b128 %s, v%d offset:%d" % (vr(X[tm], 4), r.vxa[t], tm * 4096))
    for tn in range(c.TN):
        for u in range(2):
            k.e("ds_read_b64_tr_b16 %s, v%d offset:%d" % (vr(W[tn] + 2 * u, 2), r.vwa[tn], (16 * t + 4 * u) * c.RB))


def gemm_mfma(k, c, r, fs, accmap=None):
    if 'nomfma' in DBG:
        return
    X, W = r.F[fs]
    for tn in range(c.TN):
        for tm in range(c.TM):
            a = r.acc[(tn, tm)]
            k.e("v_mfma_f32_32x32x16_bf16 %s, %s, %s, %s" % (vr(a, 16), vr(W[tn], 4), vr(X[tm], 4), vr(a, 16)))


def gemm_kloop(k, c, r, shifted=False):
    D, R, NS = c.D, c.R, c.NS
    k.c("K loop prologue")
    k.e("s_mov_b32 s%d, 0" % S_CUR)
    k.e("s_lshl_b32 s%d, s%d, 6" % (S_T2, S_LDW))
    for i in range(r.nacc):
        k.e("v_mov_b32 v%d, 0" % (r.acc_base + i))
    k.e("s_mov_b32 s%d, 0" % S_KT)
    for s in range(NS):
        if shifted:
            gemm_shift_update(k, c, r, S_KT)
        k.e("s_mov_b32 s%d, %d" % (S_OLD, s * c.STAGE))
        gemm_dma(k, c, r, S_OLD, shifted)
        k.e("s_add_u32 s%d, s%d, 128" % (S_KX, S_KX))
        k.e("s_add_u32 s%d, s%d, s%d" % (S_KW, S_KW, S_T2))
        k.e("s_add_u32 s%d, s%d, 1" % (S_KT, S_KT))
    k.e("s_waitcnt vmcnt(%d)" % ((NS - 1) * D))
    k.e("s_barrier")
    gemm_reads(k, c, r, 0, 0)
    k.e("s_mov_b32 s%d, 0" % S_T3)
    loop = k.lab("KLOOP")
    last = k.lab("KLAST")
    nod = k.lab("NODMA")
    w0 = k.lab("W0")
    w1 = k.lab("W1")
    done = k.lab("KDONE")
    k.L(loop)
    for t in range(3):
        gemm_reads(k, c, r, t + 1, (t + 1) & 1)
        k.e("s_waitcnt lgkmcnt(%d)" % R)
        gemm_mfma(k, c, r, t & 1)
    k.e("s_add_u32 s%d, s%d, 1" % (S_T3, S_T3))
    k.e("s_cmp_ge_u32 s%d, s%d" % (S_T3, S_NK))
    k.e("s_cbranch_scc1 %s" % last)
    k.e("s_add_u32 s%d, s%d, %d" % (S_T0, S_T3, NS - 1))
    k.e("s_cmp_eq_u32 s%d, s%d" % (S_T0, S_KT))
    k.e("s_cbranch_scc1 %s" % w0)
    k.e("s_waitcnt vmcnt(0) lgkmcnt(0)")
    k.e("s_branch %s" % w1)
    k.L(w0)
    k.e("s_waitcnt vmcnt(%d) lgkmcnt(0)" % ((NS - 2) * D))
    k.L(w1)
    k.e("s_barrier")
    k.e("s_mov_b32 s%d, s%d" % (S_OLD, S_CUR))
    k.e("s_add_u32 s%d, s%d, %d" % (S_CUR, S_CUR, c.STAGE))
    k.e("s_cmp_eq_u32 s%d, %d" % (S_CUR, c.STAGE * NS))
    k.e("s_cselect_b32 s%d, 0, s%d" % (S_CUR, S_CUR))
    k.e("s_sub_u32 s%d, s%d, s%d" % (S_T0, S_CUR, S_OLD))
    for v in r.vxa + r.vwa:
        k.e("v_add_u32 v%d, s%d, v%d" % (v, S_T0, v))
    gemm_reads(k, c, r, 0, 0)
    k.e("s_cmp_ge_u32 s%d, s%d" % (S_KT, S_NK))
    k.e("s_cbranch_scc1 %s" % nod)
    if shifted:
        gemm_shift_update(k, c, r, S_KT)
    gemm_dma(k, c, r, S_OLD, shifted)
    k.e("s_add_u32 s%d, s%d, 128" % (S_KX, S_KX))
    k.e("s_add_u32 s%d, s%d, s%d" % (S_KW, S_KW, S_T2))
    k.e("s_add_u32 s%d, s%d, 1" % (S_KT, S_KT))
    k.L(nod)
    gemm_mfma(k, c, r, 1)
    k.e("s_branch %s" % loop)
    k.L(last)
    k.e("s_waitcnt lgkmcnt(0)")
    gemm_mfma(k, c, r, 1)
    k.L(done)
    k.e("s_sub_u32 s%d, 0, s%d" % (S_T0, S_CUR))
    for v in r.vxa + r.vwa:
        k.e("v_add_u32 v%d, s%d, v%d" % (v, S_T0, v))


def emit_gelu(k, x, t0, t1):
    k.e("v_mul_f32 v%d, v%d, v%d" % (t0, x, x))
    k.e("v_mov_b32 v%d, 0x3d372713" % t1)
    k.e("v_fma_f32 v%d, v%d, v%d, 1.0" % (t0, t0, t1))
    k.e("v_mul_f32 v%d, v%d, v%d" % (t0, t0, x))
    k.e("v_mul_f32 v%d, 0xc0135761, v%d" % (t0, t0))
    k.e("v_exp_f32 v%d, v%d" % (t0, t0))
    k.nop(0)
    k.e("v_add_f32 v%d, 1.0, v%d" % (t0, t0))
    k.e("v_rcp_f32 v%d, v%d" % (t0, t0))
    k.nop(0)
    k.e("v_mul_f32 v%d, v%d, v%d" % (x, x, t0))


def gemm_epilogue(k, c, r, mode):
    t0, t1, t2, t3, t4, t5, t6 = r.vt
    if 'noepi' in DBG:
        return
    k.c("epilogue " + mode)
    k.nop(15)
    k.nop(7)
    k.e("s_and_b32 s%d, s%d, %d" % (S_T2, S_WAVE, c.WM - 1))
    k.e("s_lshr_b32 s%d, s%d, %d" % (S_T3, S_WAVE, c.WM.bit_length() - 1))
    k.e("s_mul_i32 s%d, s%d, %d" % (S_T0, S_T2, c.TM * 32))
    k.e("s_add_u32 s%d, s%d, s%d" % (S_T0, S_T0, S_M0))
    k.e("s_mul_i32 s%d, s%d, %d" % (S_T1, S_T3, c.TN * 32))
    k.e("s_add_u32 s%d, s%d, s%d" % (S_T1, S_T1, S_N0))
    k.e("s_lshl_b32 s%d, s%d, 1" % (S_T1, S_T1))
    k.e("v_and_b32 v%d, 31, v0" % t0)
    k.e("v_add_u32 v%d, s%d, v%d" % (t0, S_T0, t0))
    k.e("v_bfe_u32 v%d, v0, 5, 1" % t1)
    k.e("v_mul_lo_u32 v%d, v%d, s%d" % (t2, t0, S_LDC))
    k.e("v_add_u32 v%d, s%d, v%d" % (t2, S_T1, t2))
    k.e("v_lshl_add_u32 v%d, v%d, 4, v%d" % (t3, t1, t2))
    k.e("v_lshl_add_u32 v%d, v%d, 3, v%d" % (t4, t1, t2))
    k.e("v_lshlrev_b32 v%d, 2, v%d" % (t5, t0))
    ep = r.ep
    P = [ep + i for i in range(8)]
    RS = [ep + 8 + i for i in range(8)]
    a0, a1, a2, a3 = ep + 16, ep + 17, ep + 18, ep + 19
    for tm in range(c.TM):
        k.e("s_lshl_b32 s%d, s%d, 5" % (S_T0, S_LDC))
        k.e("s_mul_i32 s%d, s%d, %d" % (S_T0, S_T0, tm))
        if mode == 'final':
            k.e("buffer_load_dword v%d, v%d, %s, 0 offen offset:%d" % (a3, t5, sr(S_SRDG, 4), tm * 128))
        for tn in range(c.TN):
            a = r.acc[(tn, tm)]
            if mode in ('resid', 'final'):
                for q in range(4):
                    k.e("buffer_load_dwordx2 %s, v%d, %s, s%d offen offset:%d" %
                        (vr(RS[2 * q], 2), t4, sr(S_SRDR, 4), S_T0, tn * 64 + q * 16))
                k.e("s_waitcnt vmcnt(0)")
            for q in range(4):
                lo, hi = P[2 * q], P[2 * q + 1]
                k.e("v_cvt_pk_bf16_f32 v%d, v%d, v%d" % (lo, a + 4 * q, a + 4 * q + 1))
                k.e("v_cvt_pk_bf16_f32 v%d, v%d, v%d" % (hi, a + 4 * q + 2, a + 4 * q + 3))
                if mode == 'store':
                    continue
                for (pk, rs) in ((lo, RS[2 * q]), (hi, RS[2 * q + 1])):
                    k.e("v_lshlrev_b32 v%d, 16, v%d" % (a0, pk))
                    k.e("v_and_b32 v%d, 0xffff0000, v%d" % (a1, pk))
                    if mode == 'gelu':
                        emit_gelu(k, a0, a2, t6)
                        emit_gelu(k, a1, a2, t6)
                    else:
                        k.e("v_lshlrev_b32 v%d, 16, v%d" % (a2, rs))
                        k.e("v_add_f32 v%d, v%d, v%d" % (a0, a0, a2))
                        k.e("v_and_b32 v%d, 0xffff0000, v%d" % (a2, rs))
                        k.e("v_add_f32 v%d, v%d, v%d" % (a1, a1, a2))
                        if mode == 'final':
                            k.e("v_cvt_pk_bf16_f32 v%d, v%d, v%d" % (a2, a0, a1))
                            k.e("v_lshlrev_b32 v%d, 16, v%d" % (a0, a2))
                            k.e("v_and_b32 v%d, 0xffff0000, v%d" % (a1, a2))
                            k.e("v_sub_f32 v%d, 1.0, v%d" % (a2, a3))
                            rnd_bf16(k, a2)
                            k.e("v_mul_f32 v%d, v%d, v%d" % (a0, a0, a2))
                            k.e("v_mul_f32 v%d, v%d, v%d" % (a1, a1, a2))
                            k.e("v_cvt_pk_bf16_f32 v%d, v%d, v%d" % (a2, a0, a1))
                            k.e("v_lshlrev_b32 v%d, 16, v%d" % (a0, a2))
                            k.e("v_and_b32 v%d, 0xffff0000, v%d" % (a1, a2))
                            sa = r.save + (a - r.acc_base) + 4 * q + (0 if pk == lo else 2)
                            k.e("v_cvt_pk_bf16_f32 v%d, v%d, v%d" % (a2, sa, sa + 1))
                            k.e("v_lshlrev_b32 v%d, 16, v%d" % (t6, a2))
                            k.e("v_and_b32 v%d, 0xffff0000, v%d" % (a2, a2))
                            k.e("v_mul_f32 v%d, v%d, v%d" % (t6, t6, a3))
                            k.e("v_mul_f32 v%d, v%d, v%d" % (a2, a2, a3))
                            k.e("v_cvt_pk_bf16_f32 v%d, v%d, v%d" % (a2, t6, a2))
                            k.e("v_lshlrev_b32 v%d, 16, v%d" % (t6, a2))
                            k.e("v_and_b32 v%d, 0xffff0000, v%d" % (a2, a2))
                            k.e("v_add_f32 v%d, v%d, v%d" % (a0, a0, t6))
                            k.e("v_add_f32 v%d, v%d, v%d" % (a1, a1, a2))
                    k.e("v_cvt_pk_bf16_f32 v%d, v%d, v%d" % (pk, a0, a1))
            k.nop(1)
            for p in range(2):
                k.e("v_permlane32_swap_b32 v%d, v%d" % (P[4 * p], P[4 * p + 2]))
                k.e("v_permlane32_swap_b32 v%d, v%d" % (P[4 * p + 1], P[4 * p + 3]))
            k.nop(1)
            for p in range(2):
                k.e("buffer_store_dwordx4 %s, v%d, %s, s%d offen offset:%d" %
                    (vr(P[4 * p], 4), t3, sr(S_SRDC, 4), S_T0, tn * 64 + p * 32))
            k.nop(3)


class GemmRegsPP:
    def __init__(self, cfg, shifted=False, nsave=0):
        c = cfg
        self.vt = list(range(1, 8))
        p = 8
        self.vxa = list(range(p, p + 4)); p += 4
        self.vwa = list(range(p, p + c.TN)); p += c.TN
        self.vxo = list(range(p, p + c.XI)); p += c.XI
        self.vwo = list(range(p, p + c.WI)); p += c.WI
        self.vxs = list(range(p, p + c.XI)) if shifted else None
        if shifted:
            p += c.XI
        p = (p + 3) // 4 * 4
        self.FX = [[p + 4 * (tm * 4 + t) for t in range(4)] for tm in range(c.TM)]; p += 16 * c.TM
        self.FW = [[p + 4 * (tn * 4 + t) for t in range(4)] for tn in range(c.TN)]; p += 16 * c.TN
        p = (p + 15) // 16 * 16
        self.acc = {}
        for tn in range(c.TN):
            for tm in range(c.TM):
                self.acc[(tn, tm)] = p; p += 16
        self.acc_base = self.acc[(0, 0)]
        self.nacc = 16 * c.TM * c.TN
        self.save = p
        p += nsave
        self.end = p
        self.ep = self.FX[0][0]


def pp_reads(k, c, r):
    if 'noreads' in DBG:
        return
    for t in range(4):
        for tm in range(c.TM):
            k.e("ds_read_b128 %s, v%d offset:%d" % (vr(r.FX[tm][t], 4), r.vxa[t], tm * 4096))
        for tn in range(c.TN):
            for u in range(2):
                k.e("ds_read_b64_tr_b16 %s, v%d offset:%d" % (vr(r.FW[tn][t] + 2 * u, 2), r.vwa[tn], (16 * t + 4 * u) * c.RB))


def pp_mfma(k, c, r):
    if 'nomfma' in DBG:
        return
    for t in range(4):
        for tn in range(c.TN):
            for tm in range(c.TM):
                a = r.acc[(tn, tm)]
                k.e("v_mfma_f32_32x32x16_bf16 %s, %s, %s, %s" % (vr(a, 16), vr(r.FW[tn][t], 4), vr(r.FX[tm][t], 4), vr(a, 16)))


def pp_loop_body(k, c, r, grpB, shifted):
    D = c.D
    loop = k.lab("PPL"); nod = k.lab("PPN"); w0 = k.lab("PW0"); w1 = k.lab("PW1"); x0 = k.lab("PX0"); x1 = k.lab("PX1")
    k.L(loop)
    pp_reads(k, c, r)
    k.e("s_cmp_ge_u32 s%d, s%d" % (S_KT, S_NK))
    k.e("s_cbranch_scc1 %s" % nod)
    if shifted:
        gemm_shift_update(k, c, r, S_KT)
    gemm_dma(k, c, r, S_OLD, shifted)
    k.e("s_add_u32 s%d, s%d, 128" % (S_KX, S_KX))
    k.e("s_add_u32 s%d, s%d, s%d" % (S_KW, S_KW, S_T2))
    k.e("s_add_u32 s%d, s%d, 1" % (S_KT, S_KT))
    k.L(nod)
    if grpB:
        k.e("s_add_u32 s%d, s%d, 3" % (S_T0, S_T3))
        k.e("s_cmp_eq_u32 s%d, s%d" % (S_T0, S_KT))
        k.e("s_cbranch_scc1 %s" % w0)
        k.e("s_waitcnt vmcnt(0) lgkmcnt(0)")
        k.e("s_branch %s" % w1)
        k.L(w0)
        k.e("s_waitcnt vmcnt(%d) lgkmcnt(0)" % D)
        k.L(w1)
    else:
        k.e("s_waitcnt lgkmcnt(0)")
    k.e("s_barrier")
    k.e("s_setprio 1")
    pp_mfma(k, c, r)
    k.e("s_setprio 0")
    k.e("s_mov_b32 s%d, s%d" % (S_T1, S_CUR))
    k.e("s_add_u32 s%d, s%d, %d" % (S_CUR, S_CUR, c.STAGE))
    k.e("s_cmp_eq_u32 s%d, %d" % (S_CUR, c.STAGE * c.NS))
    k.e("s_cselect_b32 s%d, 0, s%d" % (S_CUR, S_CUR))
    k.e("s_sub_u32 s%d, s%d, s%d" % (S_T0, S_CUR, S_T1))
    for v in r.vxa + r.vwa:
        k.e("v_add_u32 v%d, s%d, v%d" % (v, S_T0, v))
    k.e("s_add_u32 s%d, s%d, %d" % (S_OLD, S_OLD, c.STAGE))
    k.e("s_cmp_eq_u32 s%d, %d" % (S_OLD, c.STAGE * c.NS))
    k.e("s_cselect_b32 s%d, 0, s%d" % (S_OLD, S_OLD))
    k.e("s_add_u32 s%d, s%d, 1" % (S_T3, S_T3))
    if not grpB:
        k.e("s_add_u32 s%d, s%d, 2" % (S_T0, S_T3))
        k.e("s_cmp_eq_u32 s%d, s%d" % (S_T0, S_KT))
        k.e("s_cbranch_scc1 %s" % x0)
        k.e("s_waitcnt vmcnt(0)")
        k.e("s_branch %s" % x1)
        k.L(x0)
        k.e("s_waitcnt vmcnt(%d)" % D)
        k.L(x1)
    k.e("s_barrier")
    k.e("s_cmp_lt_u32 s%d, s%d" % (S_T3, S_NK))
    k.e("s_cbranch_scc1 %s" % loop)


def gemm_kloop_pp(k, c, r, shifted=False):
    assert c.NS == 3 and c.NW == 8
    D = c.D
    k.c("K loop (ping-pong) prologue")
    k.e("s_lshl_b32 s%d, s%d, 6" % (S_T2, S_LDW))
    for i in range(r.nacc):
        k.e("v_mov_b32 v%d, 0" % (r.acc_base + i))
    k.e("s_mov_b32 s%d, 0" % S_KT)
    for s in range(2):
        if shifted:
            gemm_shift_update(k, c, r, S_KT)
        k.e("s_mov_b32 s%d, %d" % (S_OLD, s * c.STAGE))
        gemm_dma(k, c, r, S_OLD, shifted)
        k.e("s_add_u32 s%d, s%d, 128" % (S_KX, S_KX))
        k.e("s_add_u32 s%d, s%d, s%d" % (S_KW, S_KW, S_T2))
        k.e("s_add_u32 s%d, s%d, 1" % (S_KT, S_KT))
    k.e("s_mov_b32 s%d, %d" % (S_OLD, 2 * c.STAGE))
    k.e("s_mov_b32 s%d, 0" % S_CUR)
    k.e("s_mov_b32 s%d, 0" % S_T3)
    k.e("s_waitcnt vmcnt(%d)" % D)
    k.e("s_barrier")
    gb = k.lab("GRPB"); done = k.lab("PPD")
    k.e("s_cmp_ge_u32 s%d, 4" % S_WAVE)
    k.e("s_cbranch_scc1 %s" % gb)
    pp_loop_body(k, c, r, False, shifted)
    k.e("s_barrier")
    k.e("s_branch %s" % done)
    k.L(gb)
    k.e("s_barrier")
    pp_loop_body(k, c, r, True, shifted)
    k.L(done)
    k.e("s_sub_u32 s%d, 0, s%d" % (S_T0, S_CUR))
    for v in r.vxa + r.vwa:
        k.e("v_add_u32 v%d, s%d, v%d" % (v, S_T0, v))


def gemm_epilogue_lds(k, c, r, mode, lds_base=0):
    if 'noepi' in DBG:
        return
    t0, t1, t2, t3, t4, t5, t6 = r.vt
    RC = c.BN * 2
    TILE = c.BM * RC
    ep = r.ep
    P = [ep + i for i in range(8)]
    a0, a1, a2, a3 = ep + 8, ep + 9, ep + 10, ep + 11
    k.c("epilogue(lds) " + mode)
    k.nop(15)
    k.nop(7)
    k.e("s_and_b32 s%d, s%d, %d" % (S_T2, S_WAVE, c.WM - 1))
    k.e("s_lshr_b32 s%d, s%d, %d" % (S_T3, S_WAVE, c.WM.bit_length() - 1))
    k.e("v_and_b32 v%d, 31, v0" % t0)
    k.e("s_mul_i32 s%d, s%d, %d" % (S_T0, S_T2, c.TM * 32))
    k.e("v_add_u32 v%d, s%d, v%d" % (t0, S_T0, t0))
    k.e("v_mul_u32_u24 v%d, %d, v%d" % (t1, RC, t0))
    k.e("v_and_b32 v%d, 7, v0" % t0)
    k.e("v_lshl_or_b32 v%d, v%d, 4, v%d" % (t1, t0, t1))
    k.e("v_bfe_u32 v%d, v0, 5, 1" % t0)
    k.e("v_lshl_or_b32 v%d, v%d, 3, v%d" % (t1, t0, t1))
    k.e("s_mul_i32 s%d, s%d, %d" % (S_T0, S_T3, c.TN * 64))
    k.e("v_xor_b32 v%d, s%d, v%d" % (t1, S_T0, t1))
    sets = [(r.acc, 0)] if mode != 'final' else [(r.acc, 0), (None, TILE)]
    for which, (accmap, lbase) in enumerate(sets):
        for tm in range(c.TM):
            for tn in range(c.TN):
                a = r.acc[(tn, tm)] if which == 0 else r.save + (r.acc[(tn, tm)] - r.acc_base)
                for q in range(4):
                    lo, hi = P[0], P[1]
                    k.e("v_cvt_pk_bf16_f32 v%d, v%d, v%d" % (lo, a + 4 * q, a + 4 * q + 1))
                    k.e("v_cvt_pk_bf16_f32 v%d, v%d, v%d" % (hi, a + 4 * q + 2, a + 4 * q + 3))
                    if mode == 'gelu':
                        for pk in (lo, hi):
                            k.e("v_lshlrev_b32 v%d, 16, v%d" % (a0, pk))
                            k.e("v_and_b32 v%d, 0xffff0000, v%d" % (a1, pk))
                            emit_gelu(k, a0, a2, t6)
                            emit_gelu(k, a1, a2, t6)
                            k.e("v_cvt_pk_bf16_f32 v%d, v%d, v%d" % (pk, a0, a1))
                    k.e("v_xor_b32 v%d, %d, v%d" % (t0, (tn * 4 + q) << 4, t1))
                    k.e("ds_write_b64 v%d, v[%d:%d] offset:%d" % (t0, lo, hi, lds_base + lbase + tm * 32 * RC))
    k.e("s_waitcnt lgkmcnt(0)")
    k.e("s_barrier")
    CPR = RC // 16
    RPI = 64 // CPR
    NI = TILE // 1024 // c.NW
    sh = CPR.bit_length() - 1
    k.e("v_and_b32 v%d, 63, v0" % t0)
    k.e("v_lshrrev_b32 v%d, %d, v%d" % (t1, sh, t0))
    k.e("s_mul_i32 s%d, s%d, %d" % (S_T0, S_WAVE, NI * RPI))
    k.e("v_add_u32 v%d, s%d, v%d" % (t1, S_T0, t1))
    k.e("v_and_b32 v%d, %d, v%d" % (t2, CPR - 1, t0))
    k.e("v_and_b32 v%d, 7, v%d" % (t3, t1))
    k.e("v_xor_b32 v%d, v%d, v%d" % (t3, t3, t2))
    k.e("v_mul_u32_u24 v%d, %d, v%d" % (t4, RC, t1))
    k.e("v_lshl_add_u32 v%d, v%d, 4, v%d" % (t4, t3, t4))
    k.e("v_add_u32 v%d, s%d, v%d" % (t3, S_M0, t1))
    k.e("v_mul_lo_u32 v%d, v%d, s%d" % (t5, t3, S_LDC))
    k.e("v_lshl_add_u32 v%d, v%d, 4, v%d" % (t5, t2, t5))
    k.e("s_lshl_b32 s%d, s%d, 1" % (S_T0, S_N0))
    k.e("v_add_u32 v%d, s%d, v%d" % (t5, S_T0, t5))
    k.e("v_lshlrev_b32 v%d, 2, v%d" % (t6, t3))
    assert RPI % 8 == 0 or RPI == 4
    for i in range(NI):
        if RPI == 4 and i > 0:
            k.e("v_add_u32 v%d, %d, v%d" % (t1, RPI, t1))
            k.e("v_and_b32 v%d, 7, v%d" % (t3, t1))
            k.e("v_xor_b32 v%d, v%d, v%d" % (t3, t3, t2))
            k.e("v_mul_u32_u24 v%d, %d, v%d" % (t4, RC, t1))
            k.e("v_lshl_add_u32 v%d, v%d, 4, v%d" % (t4, t3, t4))
        loff = 0 if RPI == 4 else i * 1024
        k.e("s_mul_i32 s%d, s%d, %d" % (S_T1, S_LDC, i * RPI))
        X = ep + 12
        Y = ep + 16
        Z = ep + 20
        k.e("ds_read_b128 %s, v%d offset:%d" % (vr(X, 4), t4, lds_base + loff))
        if mode == 'resid':
            k.e("buffer_load_dwordx4 %s, v%d, %s, s%d offen" % (vr(Y, 4), t5, sr(S_SRDR, 4), S_T1))
            k.e("s_waitcnt vmcnt(0) lgkmcnt(0)")
            for j in range(4):
                k.e("v_lshlrev_b32 v%d, 16, v%d" % (a0, X + j))
                k.e("v_and_b32 v%d, 0xffff0000, v%d" % (a1, X + j))
                k.e("v_lshlrev_b32 v%d, 16, v%d" % (a2, Y + j))
                k.e("v_and_b32 v%d, 0xffff0000, v%d" % (a3, Y + j))
                k.e("v_add_f32 v%d, v%d, v%d" % (a0, a0, a2))
                k.e("v_add_f32 v%d, v%d, v%d" % (a1, a1, a3))
                k.e("v_cvt_pk_bf16_f32 v%d, v%d, v%d" % (X + j, a0, a1))
        elif mode == 'final':
            k.e("ds_read_b128 %s, v%d offset:%d" % (vr(Z, 4), t4, lds_base + TILE + loff))
            k.e("buffer_load_dwordx4 %s, v%d, %s, s%d offen" % (vr(Y, 4), t5, sr(S_SRDR, 4), S_T1))
            k.e("buffer_load_dword v%d, v%d, %s, 0 offen offset:%d" % (P[2], t6, sr(S_SRDG, 4), i * RPI * 4))
            k.e("s_waitcnt vmcnt(0) lgkmcnt(0)")
            k.e("v_sub_f32 v%d, 1.0, v%d" % (P[3], P[2]))
            rnd_bf16(k, P[3])
            for j in range(4):
                k.e("v_lshlrev_b32 v%d, 16, v%d" % (a0, X + j))
                k.e("v_and_b32 v%d, 0xffff0000, v%d" % (a1, X + j))
                k.e("v_lshlrev_b32 v%d, 16, v%d" % (a2, Y + j))
                k.e("v_and_b32 v%d, 0xffff0000, v%d" % (a3, Y + j))
                k.e("v_add_f32 v%d, v%d, v%d" % (a0, a0, a2))
                k.e("v_add_f32 v%d, v%d, v%d" % (a1, a1, a3))
                k.e("v_cvt_pk_bf16_f32 v%d, v%d, v%d" % (a2, a0, a1))
                k.e("v_lshlrev_b32 v%d, 16, v%d" % (a0, a2))
                k.e("v_and_b32 v%d, 0xffff0000, v%d" % (a1, a2))
                k.e("v_mul_f32 v%d, v%d, v%d" % (a0, a0, P[3]))
                k.e("v_mul_f32 v%d, v%d, v%d" % (a1, a1, P[3]))
                k.e("v_cvt_pk_bf16_f32 v%d, v%d, v%d" % (a2, a0, a1))
                k.e("v_lshlrev_b32 v%d, 16, v%d" % (a0, a2))
                k.e("v_and_b32 v%d, 0xffff0000, v%d" % (a1, a2))
                k.e("v_lshlrev_b32 v%d, 16, v%d" % (a2, Z + j))
                k.e("v_and_b32 v%d, 0xffff0000, v%d" % (a3, Z + j))
                k.e("v_mul_f32 v%d, v%d, v%d" % (a2, a2, P[2]))
                k.e("v_mul_f32 v%d, v%d, v%d" % (a3, a3, P[2]))
                k.e("v_cvt_pk_bf16_f32 v%d, v%d, v%d" % (a3, a2, a3))
                k.e("v_lshlrev_b32 v%d, 16, v%d" % (a2, a3))
                k.e("v_and_b32 v%d, 0xffff0000, v%d" % (a3, a3))
                k.e("v_add_f32 v%d, v%d, v%d" % (a0, a0, a2))
                k.e("v_add_f32 v%d, v%d, v%d" % (a1, a1, a3))
                k.e("v_cvt_pk_bf16_f32 v%d, v%d, v%d" % (X + j, a0, a1))
        else:
            k.e("s_waitcnt lgkmcnt(0)")
        sfx = ""
        if 'stnt' in DBG: sfx = " nt"
        if 'stsc1' in DBG: sfx = " sc1"
        if 'stsc01' in DBG: sfx = " sc0 sc1"
        if 'nost' not in DBG:
            k.e("buffer_store_dwordx4 %s, v%d, %s, s%d offen%s" % (vr(X, 4), t5, sr(S_SRDC, 4), S_T1, sfx))
        k.nop(1)


def emit_gelu2(k, x0, x1, t0, t1, c1, c2):
    k.e("v_pk_mul_f32 v[%d:%d], v[%d:%d], v[%d:%d]" % (t0, t0 + 1, x0, x0 + 1, x0, x0 + 1))
    k.e("v_pk_fma_f32 v[%d:%d], v[%d:%d], v[%d:%d], 1.0 op_sel_hi:[1,1,0]" % (t0, t0 + 1, t0, t0 + 1, c1, c1 + 1))
    k.e("v_pk_mul_f32 v[%d:%d], v[%d:%d], v[%d:%d]" % (t0, t0 + 1, t0, t0 + 1, x0, x0 + 1))
    k.e("v_pk_mul_f32 v[%d:%d], v[%d:%d], v[%d:%d]" % (t0, t0 + 1, t0, t0 + 1, c2, c2 + 1))
    k.e("v_exp_f32 v%d, v%d" % (t0, t0))
    k.e("v_exp_f32 v%d, v%d" % (t0 + 1, t0 + 1))
    k.nop(0)
    k.e("v_pk_add_f32 v[%d:%d], v[%d:%d], 1.0 op_sel_hi:[1,0]" % (t0, t0 + 1, t0, t0 + 1))
    k.e("v_rcp_f32 v%d, v%d" % (t0, t0))
    k.e("v_rcp_f32 v%d, v%d" % (t0 + 1, t0 + 1))
    k.nop(0)
    k.e("v_pk_mul_f32 v[%d:%d], v[%d:%d], v[%d:%d]" % (x0, x0 + 1, x0, x0 + 1, t0, t0 + 1))


def gemm_epilogue2(k, c, r, mode):
    if 'noepi' in DBG:
        return
    t0, t1, t2, t3, t4, t5, t6 = r.vt
    RCF = c.BN * 4
    TILE = c.BM * RCF
    ep = r.ep
    k.c("epilogue2 " + mode)
    k.nop(15)
    k.nop(7)
    k.e("s_and_b32 s%d, s%d, %d" % (S_T2, S_WAVE, c.WM - 1))
    k.e("s_lshr_b32 s%d, s%d, %d" % (S_T3, S_WAVE, c.WM.bit_length() - 1))
    k.e("v_and_b32 v%d, 31, v0" % t0)
    k.e("s_mul_i32 s%d, s%d, %d" % (S_T0, S_T2, c.TM * 32))
    k.e("v_add_u32 v%d, s%d, v%d" % (t0, S_T0, t0))
    k.e("v_mul_u32_u24 v%d, %d, v%d" % (t1, RCF, t0))
    k.e("v_and_b32 v%d, 7, v0" % t0)
    k.e("v_bfe_u32 v%d, v0, 5, 1" % t2)
    k.e("v_xor_b32 v%d, v%d, v%d" % (t0, t0, t2))
    k.e("s_mul_i32 s%d, s%d, %d" % (S_T0, S_T3, c.TN * 8))
    k.e("v_xor_b32 v%d, s%d, v%d" % (t0, S_T0, t0))
    k.e("v_lshl_add_u32 v%d, v%d, 4, v%d" % (t1, t0, t1))
    nset = 2 if mode == 'final' else 1
    for which in range(nset):
        for tm in range(c.TM):
            for tn in range(c.TN):
                a = r.acc[(tn, tm)] if which == 0 else r.save + (r.acc[(tn, tm)] - r.acc_base)
                for q in range(4):
                    k.e("v_xor_b32 v%d, %d, v%d" % (t0, (2 * q + 8 * tn) << 4, t1))
                    k.e("ds_write_b128 v%d, v[%d:%d] offset:%d" % (t0, a + 4 * q, a + 4 * q + 3, which * TILE + tm * 32 * RCF))
    k.e("s_waitcnt lgkmcnt(0)")
    k.e("s_barrier")
    CPR = c.BN // 8
    RPI = 64 // CPR
    NI = c.BM // RPI // c.NW
    sh = CPR.bit_length() - 1
    k.e("v_and_b32 v%d, 63, v0" % t0)
    k.e("v_lshrrev_b32 v%d, %d, v%d" % (t1, sh, t0))
    k.e("s_mul_i32 s%d, s%d, %d" % (S_T0, S_WAVE, NI * RPI))
    k.e("v_add_u32 v%d, s%d, v%d" % (t1, S_T0, t1))
    k.e("v_and_b32 v%d, %d, v%d" % (t2, CPR - 1, t0))
    k.e("v_and_b32 v%d, 7, v%d" % (t3, t1))
    k.e("v_lshlrev_b32 v%d, 1, v%d" % (t4, t2))
    k.e("v_xor_b32 v%d, v%d, v%d" % (t3, t3, t4))
    k.e("v_mul_u32_u24 v%d, %d, v%d" % (t4, RCF, t1))
    k.e("v_lshl_add_u32 v%d, v%d, 4, v%d" % (t4, t3, t4))
    k.e("v_add_u32 v%d, s%d, v%d" % (t3, S_M0, t1))
    k.e("v_mul_lo_u32 v%d, v%d, s%d" % (t5, t3, S_LDC))
    k.e("v_lshl_add_u32 v%d, v%d, 4, v%d" % (t5, t2, t5))
    k.e("s_lshl_b32 s%d, s%d, 1" % (S_T0, S_N0))
    k.e("v_add_u32 v%d, s%d, v%d" % (t5, S_T0, t5))
    k.e("v_lshlrev_b32 v%d, 2, v%d" % (t6, t3))
    k.e("s_mov_b32 s%d, 0" % S_T1)
    k.e("s_mov_b32 s%d, 0" % S_T2)
    k.e("s_mul_i32 s%d, s%d, %d" % (S_T3, S_LDC, RPI))
    k.e("s_mov_b32 s%d, %d" % (S_KT, NI))
    X = ep; X2 = ep + 4; Y = ep + 8; Z = ep + 12; Z2 = ep + 16
    T = ep + 20; G = ep + 22; C1 = ep + 24; C2 = ep + 26; U = ep + 28
    if mode == 'gelu':
        k.e("v_mov_b32 v%d, 0x3d372713" % C1); k.e("v_mov_b32 v%d, 0x3d372713" % (C1 + 1))
        k.e("v_mov_b32 v%d, 0xc0135761" % C2); k.e("v_mov_b32 v%d, 0xc0135761" % (C2 + 1))
    loop = k.lab("EPL")
    k.L(loop)
    k.e("v_xor_b32 v%d, 16, v%d" % (t0, t4))
    k.e("ds_read_b128 %s, v%d" % (vr(X, 4), t4))
    k.e("ds_read_b128 %s, v%d" % (vr(X2, 4), t0))
    if mode == 'final':
        k.e("ds_read_b128 %s, v%d offset:%d" % (vr(Z, 4), t4, TILE))
        k.e("ds_read_b128 %s, v%d offset:%d" % (vr(Z2, 4), t0, TILE))
    if mode in ('resid', 'final'):
        k.e("buffer_load_dwordx4 %s, v%d, %s, s%d offen" % (vr(Y, 4), t5, sr(S_SRDR, 4), S_T1))
    if mode == 'final':
        k.e("buffer_load_dword v%d, v%d, %s, s%d offen" % (G, t6, sr(S_SRDG, 4), S_T2))
    k.e("s_waitcnt vmcnt(0) lgkmcnt(0)")
    if mode == 'final':
        k.e("v_sub_f32 v%d, 1.0, v%d" % (G + 1, G))
        rnd_bf16(k, G + 1)
    for j in range(4):
        xa = X + 2 * j
        k.e("v_cvt_pk_bf16_f32 v%d, v%d, v%d" % (T, xa, xa + 1))
        if mode == 'store':
            k.e("v_mov_b32 v%d, v%d" % (U + j, T))
            continue
        k.e("v_lshlrev_b32 v%d, 16, v%d" % (xa, T))
        k.e("v_and_b32 v%d, 0xffff0000, v%d" % (xa + 1, T))
        if mode == 'gelu':
            emit_gelu2(k, xa, xa + 1, T, None, C1, C2)
        else:
            k.e("v_lshlrev_b32 v%d, 16, v%d" % (T, Y + j))
            k.e("v_and_b32 v%d, 0xffff0000, v%d" % (T + 1, Y + j))
            k.e("v_pk_add_f32 v[%d:%d], v[%d:%d], v[%d:%d]" % (xa, xa + 1, xa, xa + 1, T, T + 1))
            if mode == 'final':
                k.e("v_cvt_pk_bf16_f32 v%d, v%d, v%d" % (T, xa, xa + 1))
                k.e("v_lshlrev_b32 v%d, 16, v%d" % (xa, T))
                k.e("v_and_b32 v%d, 0xffff0000, v%d" % (xa + 1, T))
                k.e("v_mul_f32 v%d, v%d, v%d" % (xa, xa, G + 1))
                k.e("v_mul_f32 v%d, v%d, v%d" % (xa + 1, xa + 1, G + 1))
                k.e("v_cvt_pk_bf16_f32 v%d, v%d, v%d" % (T, xa, xa + 1))
                k.e("v_lshlrev_b32 v%d, 16, v%d" % (xa, T))
                k.e("v_and_b32 v%d, 0xffff0000, v%d" % (xa + 1, T))
                za = Z + 2 * j
                k.e("v_cvt_pk_bf16_f32 v%d, v%d, v%d" % (T, za, za + 1))
                k.e("v_lshlrev_b32 v%d, 16, v%d" % (za, T))
                k.e("v_and_b32 v%d, 0xffff0000, v%d" % (za + 1, T))
                k.e("v_mul_f32 v%d, v%d, v%d" % (za, za, G))
                k.e("v_mul_f32 v%d, v%d, v%d" % (za + 1, za + 1, G))
                k.e("v_cvt_pk_bf16_f32 v%d, v%d, v%d" % (T, za, za + 1))
                k.e("v_lshlrev_b32 v%d, 16, v%d" % (za, T))
                k.e("v_and_b32 v%d, 0xffff0000, v%d" % (za + 1, T))
                k.e("v_pk_add_f32 v[%d:%d], v[%d:%d], v[%d:%d]" % (xa, xa + 1, xa, xa + 1, za, za + 1))
        k.e("v_cvt_pk_bf16_f32 v%d, v%d, v%d" % (U + j, xa, xa + 1))
    k.e("buffer_store_dwordx4 %s, v%d, %s, s%d offen" % (vr(U, 4), t5, sr(S_SRDC, 4), S_T1))
    k.e("v_add_u32 v%d, %d, v%d" % (t4, RPI * RCF, t4))
    if RPI == 4:
        k.e("v_xor_b32 v%d, 64, v%d" % (t4, t4))
    k.e("s_add_u32 s%d, s%d, s%d" % (S_T1, S_T1, S_T3))
    k.e("s_add_u32 s%d, s%d, %d" % (S_T2, S_T2, RPI * 4))
    k.e("s_sub_u32 s%d, s%d, 1" % (S_KT, S_KT))
    k.e("s_cmp_lg_u32 s%d, 0" % S_KT)
    k.e("s_cbranch_scc1 %s" % loop)


def stamp(k, idx):
    if 'stamp' not in DBG:
        return
    k.e("s_memtime s[%d:%d]" % (60 + 2 * idx, 61 + 2 * idx))


def stamp_flush(k, n):
    if 'stamp' not in DBG:
        return
    skip = k.lab("SKIPST")
    k.e("s_waitcnt lgkmcnt(0)")
    k.e("s_cmp_lg_u32 s2, 5")
    k.e("s_cbranch_scc1 %s" % skip)
    k.e("s_cmp_lg_u32 s%d, 0" % S_WAVE)
    k.e("s_cbranch_scc1 %s" % skip)
    k.e("s_load_dwordx2 s[56:57], s[0:1], 88")
    k.e("s_waitcnt lgkmcnt(0)")
    k.e("s_mov_b32 s58, 256")
    k.e("s_mov_b32 s59, 0x00020000")
    for i in range(n):
        k.e("v_mov_b32 v1, s%d" % (60 + 2 * i))
        k.e("v_mov_b32 v2, %d" % (4 * i))
        k.e("buffer_store_dword v1, v2, s[56:59], 0 offen")
    k.L(skip)


def rstamp_begin(k):
    if 'rstamp' in DBG:
        k.e("s_memrealtime s[70:71]")


def rstamp_end(k):
    if 'rstamp' not in DBG:
        return
    skip = k.lab("SKIPRS")
    k.e("s_memrealtime s[72:73]")
    k.e("s_waitcnt lgkmcnt(0)")
    k.e("s_cmp_lg_u32 s%d, 0" % S_WAVE)
    k.e("s_cbranch_scc1 %s" % skip)
    k.e("s_load_dwordx2 s[56:57], s[0:1], 96")
    k.e("s_waitcnt lgkmcnt(0)")
    k.e("s_add_u32 s56, s56, 0xc800000")
    k.e("s_addc_u32 s57, s57, 0")
    k.e("s_mov_b32 s58, 65536")
    k.e("s_mov_b32 s59, 0x00020000")
    k.e("s_lshl_b32 s74, s2, 3")
    k.e("v_mov_b32 v2, s70")
    k.e("v_mov_b32 v3, s72")
    k.e("v_mov_b32 v4, s74")
    k.e("buffer_store_dwordx2 v[2:3], v4, s[56:59], 0 offen")
    k.L(skip)


def gemm_head(k, nwg):
    end = k.lab("END")
    k.e("s_cmp_ge_u32 s2, %d" % nwg)
    k.e("s_cbranch_scc1 %s" % end)
    k.e("v_lshrrev_b32 v1, 6, v0")
    k.nop(0)
    k.e("v_readfirstlane_b32 s%d, v1" % S_WAVE)
    return end


def gen_gemm1():
    c = GemmCfg(4, 2, 2, 2)
    r = GemmRegsPP(c)
    k = K("gemm1_kernel")
    end = gemm_head(k, 256)
    stamp(k, 0)
    rstamp_begin(k)
    load_ptr(k, 44, "A_x"); load_ptr(k, 46, "wqkv"); load_ptr(k, 48, "ws"); load_ptr(k, 50, "w1")
    k.e("s_waitcnt lgkmcnt(0)")
    pb = k.lab("PB"); go = k.lab("GO")
    k.e("s_cmp_ge_u32 s2, 192")
    k.e("s_cbranch_scc1 %s" % pb)
    make_srd(k, S_SRDX, 44, 0, SZ_ACT)
    make_srd(k, S_SRDW, 46, 0, 1024 * 3072 * 2)
    make_srd(k, S_SRDC, 48, WS_QKV, SZ_QKV)
    k.e("s_mov_b32 s%d, 2048" % S_LDX); k.e("s_mov_b32 s%d, 6144" % S_LDW); k.e("s_mov_b32 s%d, 6144" % S_LDC)
    k.e("s_mov_b32 s%d, 0" % S_FLAG)
    k.e("s_mov_b32 s%d, s2" % S_T1)
    k.e("s_branch %s" % go)
    k.L(pb)
    make_srd(k, S_SRDX, 48, WS_LNX, SZ_ACT)
    make_srd(k, S_SRDW, 50, 0, 1024 * 1024 * 2)
    make_srd(k, S_SRDC, 48, WS_H, SZ_ACT)
    k.e("s_mov_b32 s%d, 2048" % S_LDX); k.e("s_mov_b32 s%d, 2048" % S_LDW); k.e("s_mov_b32 s%d, 2048" % S_LDC)
    k.e("s_mov_b32 s%d, 1" % S_FLAG)
    k.e("s_sub_u32 s%d, s2, 192" % S_T1)
    k.L(go)
    k.e("s_mov_b32 s%d, 16" % S_NK)
    k.e("s_and_b32 s%d, s%d, 7" % (S_M0, S_T1))
    k.e("s_lshl_b32 s%d, s%d, 8" % (S_M0, S_M0))
    k.e("s_lshr_b32 s%d, s%d, 3" % (S_N0, S_T1))
    k.e("s_lshl_b32 s%d, s%d, 7" % (S_N0, S_N0))
    gemm_lane_setup(k, c, r)
    k.e("s_mul_i32 s%d, s%d, s%d" % (S_KX, S_M0, S_LDX))
    k.e("s_lshl_b32 s%d, s%d, 1" % (S_KW, S_N0))
    stamp(k, 1)
    gemm_kloop_pp(k, c, r)
    stamp(k, 2)
    eg = k.lab("EG")
    k.e("s_cmp_eq_u32 s%d, 1" % S_FLAG)
    k.e("s_cbranch_scc1 %s" % eg)
    gemm_epilogue2(k, c, r, 'store')
    stamp(k, 3)
    k.e('s_waitcnt vmcnt(0)')
    stamp(k, 4)
    stamp_flush(k, 5)
    rstamp_end(k)
    k.e("s_endpgm")
    k.L(eg)
    gemm_epilogue2(k, c, r, 'gelu')
    k.L(end)
    k.e("s_endpgm")
    return k, r.end, c.LDS, 512


def gen_gemm2():
    c = GemmCfg(2, 2, 2, 1)
    r = GemmRegs(c, shifted=True)
    r.ep = r.end
    k = K("gemm2_kernel")
    end = gemm_head(k, 256)
    load_ptr(k, 44, "A_x"); load_ptr(k, 46, "w2"); load_ptr(k, 48, "ws")
    k.e("s_waitcnt lgkmcnt(0)")
    make_srd(k, S_SRDX, 48, WS_H, SZ_ACT)
    make_srd(k, S_SRDW, 46, 0, 1024 * 1024 * 2)
    make_srd(k, S_SRDC, 48, WS_X1, SZ_ACT)
    make_srd(k, S_SRDR, 44, 0, SZ_ACT)
    k.e("s_mov_b32 s%d, 2048" % S_LDX); k.e("s_mov_b32 s%d, 2048" % S_LDW); k.e("s_mov_b32 s%d, 2048" % S_LDC)
    k.e("s_mov_b32 s%d, 16" % S_NK)
    k.e("s_and_b32 s%d, s2, 15" % S_M0)
    k.e("s_lshl_b32 s%d, s%d, 7" % (S_M0, S_M0))
    k.e("s_lshr_b32 s%d, s2, 4" % S_N0)
    k.e("s_lshl_b32 s%d, s%d, 6" % (S_N0, S_N0))
    gemm_lane_setup(k, c, r)
    k.e("s_mov_b32 s%d, 0" % S_KX)
    k.e("s_lshl_b32 s%d, s%d, 1" % (S_KW, S_N0))
    gemm_kloop(k, c, r, shifted=True)
    gemm_epilogue(k, c, r, 'resid')
    k.L(end)
    k.e("s_endpgm")
    return k, r.ep + 20, c.LDS, 256


def gen_gemm4():
    c = GemmCfg(4, 2, 2, 2)
    r = GemmRegsPP(c)
    k = K("gemm4_kernel")
    end = gemm_head(k, 224)
    load_ptr(k, 46, "w3"); load_ptr(k, 48, "ws")
    k.e("s_waitcnt lgkmcnt(0)")
    make_srd(k, S_SRDX, 48, WS_LNX1, SZ_ACT)
    make_srd(k, S_SRDW, 46, 0, 1024 * 3584 * 2)
    make_srd(k, S_SRDC, 48, WS_H3, SZ_H3)
    k.e("s_mov_b32 s%d, 2048" % S_LDX); k.e("s_mov_b32 s%d, 7168" % S_LDW); k.e("s_mov_b32 s%d, 7168" % S_LDC)
    k.e("s_mov_b32 s%d, 16" % S_NK)
    k.e("s_and_b32 s%d, s2, 7" % S_M0)
    k.e("s_lshl_b32 s%d, s%d, 8" % (S_M0, S_M0))
    k.e("s_lshr_b32 s%d, s2, 3" % S_N0)
    k.e("s_lshl_b32 s%d, s%d, 7" % (S_N0, S_N0))
    gemm_lane_setup(k, c, r)
    k.e("s_mul_i32 s%d, s%d, s%d" % (S_KX, S_M0, S_LDX))
    k.e("s_lshl_b32 s%d, s%d, 1" % (S_KW, S_N0))
    gemm_kloop_pp(k, c, r)
    gemm_epilogue2(k, c, r, 'gelu')
    k.L(end)
    k.e("s_endpgm")
    return k, r.end, c.LDS, 512


def gen_gemm5():
    c = GemmCfg(2, 2, 2, 1)
    r = GemmRegs(c)
    r.save = r.end
    r.ep = r.save + r.nacc
    k = K("gemm5_kernel")
    end = gemm_head(k, 256)
    load_ptr(k, 44, "wo"); load_ptr(k, 46, "w4"); load_ptr(k, 48, "ws"); load_ptr(k, 50, "out")
    k.e("s_waitcnt lgkmcnt(0)")
    make_srd(k, S_SRDX, 48, WS_O, SZ_ACT)
    make_srd(k, S_SRDW, 44, 0, 1024 * 1024 * 2)
    make_srd(k, S_SRDC, 50, 0, SZ_ACT)
    make_srd(k, S_SRDR, 48, WS_X1, SZ_ACT)
    make_srd(k, S_SRDG, 48, WS_G, 2048 * 4)
    k.e("s_mov_b32 s%d, 2048" % S_LDX); k.e("s_mov_b32 s%d, 2048" % S_LDW); k.e("s_mov_b32 s%d, 2048" % S_LDC)
    k.e("s_mov_b32 s%d, 16" % S_NK)
    k.e("s_and_b32 s%d, s2, 15" % S_M0)
    k.e("s_lshl_b32 s%d, s%d, 7" % (S_M0, S_M0))
    k.e("s_lshr_b32 s%d, s2, 4" % S_N0)
    k.e("s_lshl_b32 s%d, s%d, 6" % (S_N0, S_N0))
    gemm_lane_setup(k, c, r)
    k.e("s_mul_i32 s%d, s%d, s%d" % (S_KX, S_M0, S_LDX))
    k.e("s_lshl_b32 s%d, s%d, 1" % (S_KW, S_N0))
    gemm_kloop(k, c, r)
    k.nop(15); k.nop(7)
    for i in range(r.nacc):
        k.e("v_mov_b32 v%d, v%d" % (r.save + i, r.acc_base + i))
    k.e("s_barrier")
    make_srd(k, S_SRDX, 48, WS_H3, SZ_H3)
    make_srd(k, S_SRDW, 46, 0, 3584 * 1024 * 2)
    k.e("s_mov_b32 s%d, 7168" % S_LDX)
    k.e("s_mov_b32 s%d, 56" % S_NK)
    gemm_lane_setup(k, c, r)
    k.e("s_mul_i32 s%d, s%d, s%d" % (S_KX, S_M0, S_LDX))
    k.e("s_lshl_b32 s%d, s%d, 1" % (S_KW, S_N0))
    gemm_kloop(k, c, r)
    gemm_epilogue(k, c, r, 'final')
    k.L(end)
    k.e("s_endpgm")
    return k, r.ep + 20, c.LDS, 256


def emit_softmax_pm(k, d, ep_, em_, tmp, vperm):
    mx, mn, t0, t1, sp, sm = tmp, tmp + 1, tmp + 2, tmp + 3, tmp + 4, tmp + 5
    E = tmp + 6
    for i in range(8):
        k.e("v_cvt_pk_bf16_f32 v%d, v%d, v%d" % (t0, d + 2 * i, d + 2 * i + 1))
        k.e("v_lshlrev_b32 v%d, 16, v%d" % (d + 2 * i, t0))
        k.e("v_and_b32 v%d, 0xffff0000, v%d" % (d + 2 * i + 1, t0))
    k.e("v_max_f32 v%d, v%d, v%d" % (mx, d, d + 1))
    k.e("v_min_f32 v%d, v%d, v%d" % (mn, d, d + 1))
    for i in range(1, 8):
        k.e("v_max3_f32 v%d, v%d, v%d, v%d" % (mx, mx, d + 2 * i, d + 2 * i + 1))
        k.e("v_min3_f32 v%d, v%d, v%d, v%d" % (mn, mn, d + 2 * i, d + 2 * i + 1))
    k.e("ds_bpermute_b32 v%d, v%d, v%d" % (t0, vperm, mx))
    k.e("ds_bpermute_b32 v%d, v%d, v%d" % (t1, vperm, mn))
    k.e("s_waitcnt lgkmcnt(0)")
    k.e("v_max_f32 v%d, v%d, v%d" % (mx, mx, t0))
    k.e("v_min_f32 v%d, v%d, v%d" % (mn, mn, t1))
    k.e("v_mul_f32 v%d, 0x%x, v%d" % (mx, LOG2E ^ 0x80000000, mx))
    k.e("v_mul_f32 v%d, 0x%x, v%d" % (mn, LOG2E, mn))
    k.e("v_mov_b32 v%d, 0x%x" % (t0, LOG2E))
    for i in range(16):
        k.e("v_fma_f32 v%d, v%d, v%d, v%d" % (E + i, d + i, t0, mx))
        k.e("v_fma_f32 v%d, -v%d, v%d, v%d" % (E + 16 + i, d + i, t0, mn))
        k.e("v_exp_f32 v%d, v%d" % (E + i, E + i))
        k.e("v_exp_f32 v%d, v%d" % (E + 16 + i, E + 16 + i))
    k.nop(0)
    k.e("v_add_f32 v%d, v%d, v%d" % (sp, E, E + 1))
    k.e("v_add_f32 v%d, v%d, v%d" % (sm, E + 16, E + 17))
    for i in range(2, 16):
        k.e("v_add_f32 v%d, v%d, v%d" % (sp, sp, E + i))
        k.e("v_add_f32 v%d, v%d, v%d" % (sm, sm, E + 16 + i))
    k.e("ds_bpermute_b32 v%d, v%d, v%d" % (t0, vperm, sp))
    k.e("ds_bpermute_b32 v%d, v%d, v%d" % (t1, vperm, sm))
    k.e("s_waitcnt lgkmcnt(0)")
    k.e("v_add_f32 v%d, v%d, v%d" % (sp, sp, t0))
    k.e("v_add_f32 v%d, v%d, v%d" % (sm, sm, t1))
    k.e("v_rcp_f32 v%d, v%d" % (sp, sp))
    k.e("v_rcp_f32 v%d, v%d" % (sm, sm))
    k.nop(0)
    for i in range(8):
        k.e("v_mul_f32 v%d, v%d, v%d" % (E + 2 * i, E + 2 * i, sp))
        k.e("v_mul_f32 v%d, v%d, v%d" % (E + 2 * i + 1, E + 2 * i + 1, sp))
        k.e("v_cvt_pk_bf16_f32 v%d, v%d, v%d" % (ep_ + i, E + 2 * i, E + 2 * i + 1))
        k.e("v_mul_f32 v%d, v%d, v%d" % (E + 16 + 2 * i, E + 16 + 2 * i, sm))
        k.e("v_mul_f32 v%d, v%d, v%d" % (E + 16 + 2 * i + 1, E + 16 + 2 * i + 1, sm))
        k.e("v_cvt_pk_bf16_f32 v%d, v%d, v%d" % (em_ + i, E + 16 + 2 * i, E + 16 + 2 * i + 1))


def emit_wphi_load(k, srd, s_hd, wp, vlane31, vh, t0, tmp=144):
    k.e("v_lshlrev_b32 v%d, 9, v%d" % (t0, vh))
    k.e("v_lshl_add_u32 v%d, v%d, 1, v%d" % (t0, vlane31, t0))
    k.e("s_lshl_b32 s40, s%d, 11" % s_hd)
    for t in range(2):
        for e in range(8):
            k.e("buffer_load_ushort v%d, v%d, %s, s40 offen offset:%d" % (tmp + 8 * t + e, t0, sr(srd, 4), (16 * t + e) * 64))
    k.e("s_waitcnt vmcnt(0)")
    for t in range(2):
        for e in range(0, 8, 2):
            k.e("v_lshl_or_b32 v%d, v%d, 16, v%d" % (wp + 4 * t + e // 2, tmp + 8 * t + e + 1, tmp + 8 * t + e))


def gen_kv():
    k = K("kv_kernel")
    end = k.lab("END")
    k.e("s_cmp_ge_u32 s2, 256")
    k.e("s_cbranch_scc1 %s" % end)
    load_ptr(k, 4, "ws"); load_ptr(k, 6, "w_phi")
    k.e("v_lshrrev_b32 v1, 6, v0")
    k.nop(0)
    k.e("v_readfirstlane_b32 s12, v1")
    k.e("s_waitcnt lgkmcnt(0)")
    make_srd(k, 16, 4, WS_QKV, SZ_QKV)
    make_srd(k, 20, 6, 0, 32 * 32 * 32 * 2)
    make_srd(k, 24, 4, WS_KVP, 256 * KVP_STRIDE)
    k.e("s_and_b32 s13, s2, 31")
    k.e("s_lshr_b32 s14, s2, 5")
    k.e("v_and_b32 v1, 63, v0")
    k.e("v_and_b32 v2, 31, v0")
    k.e("v_bfe_u32 v3, v0, 5, 1")
    k.e("v_xor_b32 v4, 32, v1")
    k.e("v_lshlrev_b32 v4, 2, v4")
    WP = 8
    emit_wphi_load(k, 20, 13, WP, 2, 3, 5)
    k.e("s_mul_i32 s15, s12, 6144")
    k.e("v_lshlrev_b32 v5, 8, v3")
    k.e("v_lshl_add_u32 v5, v2, 1, v5")
    k.e("v_add_u32 v5, s15, v5")
    k.e("v_lshlrev_b32 v6, 6, v2")
    k.e("v_lshl_add_u32 v6, v3, 4, v6")
    k.e("v_add_u32 v6, s15, v6")
    k.e("v_bfe_u32 v7, v0, 2, 2")
    k.e("v_lshl_add_u32 v7, v3, 3, v7")
    k.e("v_lshlrev_b32 v7, 6, v7")
    k.e("v_bfe_u32 v16, v0, 4, 1")
    k.e("v_lshl_add_u32 v7, v16, 5, v7")
    k.e("v_and_b32 v16, 3, v0")
    k.e("v_lshl_add_u32 v7, v16, 3, v7")
    k.e("v_add_u32 v7, s15, v7")
    k.e("v_add_u32 v7, 4096, v7")
    k.e("v_lshlrev_b32 v17, 4, v1")
    k.e("v_add_u32 v17, s15, v17")
    for i in range(4):
        k.e("v_mov_b32 v%d, 0x3f803f80" % (20 + i))
    D2 = [64, 80]
    D3 = [96, 112]
    for i in range(64):
        k.e("v_mov_b32 v%d, 0" % (64 + i))
    D1 = 128
    KF = 24
    VT = 32
    PP, PM = 40, 48
    AF = 56
    BF = 60
    TMP = 144
    for tile in range(2):
        k.e("s_lshl_b32 s30, s14, 8")
        k.e("s_lshl_b32 s31, s12, 6")
        k.e("s_add_u32 s30, s30, s31")
        k.e("s_add_u32 s30, s30, %d" % (tile * 32))
        k.e("s_mul_i32 s31, s30, 6144")
        k.e("s_lshl_b32 s32, s13, 6")
        k.e("s_add_u32 s31, s31, s32")
        k.e("v_mul_u32_u24 v18, 6144, v2")
        k.e("v_lshl_add_u32 v18, v3, 4, v18")
        k.e("s_add_u32 s33, s31, 2048")
        k.e("buffer_load_dwordx4 v[%d:%d], v18, s[16:19], s33 offen" % (KF, KF + 3))
        k.e("buffer_load_dwordx4 v[%d:%d], v18, s[16:19], s33 offen offset:32" % (KF + 4, KF + 7))
        k.e("v_lshrrev_b32 v19, 2, v1")
        k.e("v_mul_u32_u24 v19, 6144, v19")
        k.e("v_and_b32 v16, 3, v1")
        k.e("v_lshl_add_u32 v19, v16, 4, v19")
        k.e("s_add_u32 s33, s31, 4096")
        k.e("buffer_load_dwordx4 v[%d:%d], v19, s[16:19], s33 offen" % (VT, VT + 3))
        k.e("s_add_u32 s33, s33, %d" % (16 * 6144))
        k.e("buffer_load_dwordx4 v[%d:%d], v19, s[16:19], s33 offen" % (VT + 4, VT + 7))
        for i in range(16):
            k.e("v_mov_b32 v%d, 0" % (D1 + i))
        k.e("s_waitcnt vmcnt(0)")
        k.e("ds_write_b128 v17, v[%d:%d] offset:4096" % (VT, VT + 3))
        k.e("ds_write_b128 v17, v[%d:%d] offset:5120" % (VT + 4, VT + 7))
        for t in range(2):
            k.e("v_mfma_f32_32x32x16_bf16 %s, %s, %s, %s" % (vr(D1, 16), vr(WP + 4 * t, 4), vr(KF + 4 * t, 4), vr(D1, 16)))
        k.nop(15); k.nop(3)
        emit_softmax_pm(k, D1, PP, PM, TMP, 4)
        for half, P in ((0, PP), (1, PM)):
            for i in range(8):
                r0 = 2 * i
                f = 8 * (r0 >> 2) + (r0 & 3)
                k.e("ds_write_b16 v5, v%d offset:%d" % (P + i, half * 2048 + f * 64))
                k.e("ds_write_b16_d16_hi v5, v%d offset:%d" % (P + i, half * 2048 + (f + 1) * 64))
        k.e("s_waitcnt lgkmcnt(0)")
        for t in range(2):
            k.e("ds_read_b64_tr_b16 %s, v7 offset:%d" % (vr(BF, 2), (16 * t) * 64))
            k.e("ds_read_b64_tr_b16 %s, v7 offset:%d" % (vr(BF + 2, 2), (16 * t + 4) * 64))
            for ft in range(2):
                k.e("ds_read_b128 %s, v6 offset:%d" % (vr(AF, 4), ft * 2048 + t * 32))
                k.e("s_waitcnt lgkmcnt(0)")
                k.e("v_mfma_f32_32x32x16_bf16 %s, %s, %s, %s" % (vr(D2[ft], 16), vr(AF, 4), vr(BF, 4), vr(D2[ft], 16)))
                k.e("v_mfma_f32_32x32x16_bf16 %s, %s, %s, %s" % (vr(D3[ft], 16), vr(AF, 4), vr(20, 4), vr(D3[ft], 16)))
                k.nop(7)
        k.nop(7)
    k.nop(15); k.nop(3)
    k.e("s_mul_i32 s15, s12, 8448")
    k.e("v_lshlrev_b32 v5, 9, v3")
    k.e("v_lshl_add_u32 v5, v2, 2, v5")
    k.e("v_add_u32 v5, s15, v5")
    k.e("v_add_u32 v5, 24576, v5")
    for ft in range(2):
        for r_ in range(16):
            f = 32 * ft + 8 * (r_ >> 2) + (r_ & 3)
            k.e("ds_write_b32 v5, v%d offset:%d" % (D2[ft] + r_, f * 128))
    k.e("v_lshlrev_b32 v6, 4, v3")
    k.e("v_add_u32 v6, s15, v6")
    k.e("v_add_u32 v6, 24576, v6")
    for ft in range(2):
        for r_ in range(16):
            f = 32 * ft + 8 * (r_ >> 2) + (r_ & 3)
            k.e("ds_write_b32 v6, v%d offset:%d" % (D3[ft] + r_, 8192 + f * 4))
    k.e("s_waitcnt lgkmcnt(0)")
    k.e("s_barrier")
    k.e("s_lshl_b32 s30, s13, 3")
    k.e("s_add_u32 s30, s30, s14")
    k.e("s_mul_i32 s30, s30, %d" % KVP_STRIDE)
    k.e("v_lshlrev_b32 v5, 2, v0")
    for j in range(9):
        if j == 8:
            k.e("v_cmp_gt_u32 vcc, 64, v0")
            k.e("s_and_saveexec_b64 s[42:43], vcc")
        for w in range(4):
            k.e("ds_read_b32 v%d, v5 offset:%d" % (8 + w, 24576 + w * 8448 + j * 1024))
        k.e("s_waitcnt lgkmcnt(0)")
        k.e("v_add_f32 v8, v8, v9")
        k.e("v_add_f32 v10, v10, v11")
        k.e("v_add_f32 v8, v8, v10")
        k.e("s_add_u32 s31, s30, %d" % (j * 1024))
        k.e("buffer_store_dword v8, v5, s[24:27], s31 offen")
    k.L(end)
    k.e("s_endpgm")
    return k, 184, 24576 + 4 * 8448, 256


def gen_attn():
    k = K("attn_kernel")
    end = k.lab("END")
    k.e("s_cmp_ge_u32 s2, 256")
    k.e("s_cbranch_scc1 %s" % end)
    load_ptr(k, 4, "ws"); load_ptr(k, 6, "w_phi")
    k.e("v_lshrrev_b32 v1, 6, v0")
    k.nop(0)
    k.e("v_readfirstlane_b32 s12, v1")
    k.e("s_waitcnt lgkmcnt(0)")
    make_srd(k, 16, 4, WS_QKV, SZ_QKV)
    make_srd(k, 20, 6, 0, 32 * 32 * 32 * 2)
    make_srd(k, 24, 4, WS_KVP, 256 * KVP_STRIDE)
    make_srd(k, 36, 4, WS_O, SZ_ACT)
    k.e("s_and_b32 s13, s2, 31")
    k.e("s_lshr_b32 s14, s2, 5")
    k.e("v_and_b32 v1, 63, v0")
    k.e("v_and_b32 v2, 31, v0")
    k.e("v_bfe_u32 v3, v0, 5, 1")
    k.e("v_xor_b32 v4, 32, v1")
    k.e("v_lshlrev_b32 v4, 2, v4")
    WP = 8
    emit_wphi_load(k, 20, 13, WP, 2, 3, 5)
    k.e("s_mul_i32 s30, s13, %d" % (8 * KVP_STRIDE))
    k.e("v_lshlrev_b32 v5, 2, v0")
    k.e("v_lshlrev_b32 v6, 7, v2")
    k.e("v_lshrrev_b32 v7, 5, v0")
    k.e("v_lshl_add_u32 v6, v7, 1, v6")
    for j in range(9):
        if j == 8:
            k.e("v_cmp_gt_u32 vcc, 64, v0")
            k.e("s_and_saveexec_b64 s[42:43], vcc")
            k.e("v_lshlrev_b32 v6, 1, v0")
            k.e("v_add_u32 v6, 4096, v6")
        for cch in range(8):
            k.e("s_add_u32 s31, s30, %d" % (cch * KVP_STRIDE + j * 1024))
            k.e("buffer_load_dword v%d, v5, s[24:27], s31 offen" % (16 + cch))
        k.e("s_waitcnt vmcnt(0)")
        for cch in range(1, 8):
            k.e("v_add_f32 v16, v16, v%d" % (16 + cch))
        k.e("v_cvt_pk_bf16_f32 v16, v16, v16")
        k.e("ds_write_b16 v6, v16 offset:%d" % (16 * j if j < 8 else 0))
    k.e("s_mov_b64 exec, -1")
    k.e("s_waitcnt lgkmcnt(0)")
    k.e("s_barrier")
    k.e("v_lshlrev_b32 v5, 7, v2")
    k.e("v_lshl_add_u32 v5, v3, 3, v5")
    k.e("v_lshlrev_b32 v6, 3, v3")
    k.e("v_add_u32 v6, 4096, v6")
    QF = 24
    PP, PM = 40, 48
    AF, ZF = 56, 60
    DN, DD = 64, 80
    D1 = 128
    TMP = 144
    for tile in range(2):
        k.e("s_lshl_b32 s30, s14, 8")
        k.e("s_lshl_b32 s31, s12, 6")
        k.e("s_add_u32 s30, s30, s31")
        k.e("s_add_u32 s30, s30, %d" % (tile * 32))
        k.e("s_mul_i32 s31, s30, 6144")
        k.e("s_lshl_b32 s32, s13, 6")
        k.e("s_add_u32 s31, s31, s32")
        k.e("v_mul_u32_u24 v18, 6144, v2")
        k.e("v_lshl_add_u32 v18, v3, 4, v18")
        k.e("buffer_load_dwordx4 v[%d:%d], v18, s[16:19], s31 offen" % (QF, QF + 3))
        k.e("buffer_load_dwordx4 v[%d:%d], v18, s[16:19], s31 offen offset:32" % (QF + 4, QF + 7))
        for i in range(16):
            k.e("v_mov_b32 v%d, 0" % (D1 + i))
        for i in range(32):
            k.e("v_mov_b32 v%d, 0" % (DN + i))
        k.e("s_waitcnt vmcnt(0)")
        for t in range(2):
            k.e("v_mfma_f32_32x32x16_bf16 %s, %s, %s, %s" % (vr(D1, 16), vr(WP + 4 * t, 4), vr(QF + 4 * t, 4), vr(D1, 16)))
        k.nop(15); k.nop(3)
        emit_softmax_pm(k, D1, PP, PM, TMP, 4)
        for tt in range(4):
            B = (PP if tt < 2 else PM) + 4 * (tt & 1)
            k.e("ds_read_b64 %s, v5 offset:%d" % (vr(AF, 2), tt * 32))
            k.e("ds_read_b64 %s, v5 offset:%d" % (vr(AF + 2, 2), tt * 32 + 16))
            k.e("ds_read_b64 %s, v6 offset:%d" % (vr(ZF, 2), tt * 32))
            k.e("ds_read_b64 %s, v6 offset:%d" % (vr(ZF + 2, 2), tt * 32 + 16))
            k.e("s_waitcnt lgkmcnt(0)")
            k.e("v_mfma_f32_32x32x16_bf16 %s, %s, %s, %s" % (vr(DN, 16), vr(AF, 4), vr(B, 4), vr(DN, 16)))
            k.e("v_mfma_f32_32x32x16_bf16 %s, %s, %s, %s" % (vr(DD, 16), vr(ZF, 4), vr(B, 4), vr(DD, 16)))
            k.nop(7)
        k.nop(15); k.nop(3)
        rnd_bf16(k, DD)
        k.e("v_add_f32 v%d, 0x358637bd, v%d" % (DD, DD))
        rnd_bf16(k, DD)
        k.e("v_rcp_f32 v%d, v%d" % (DD + 1, DD))
        k.nop(0)
        k.e("v_lshlrev_b32 v18, 11, v2")
        k.e("v_lshl_add_u32 v18, v3, 3, v18")
        k.e("s_lshl_b32 s31, s30, 11")
        k.e("s_add_u32 s31, s31, s32")
        for q in range(4):
            for i in range(4):
                x = DN + 4 * q + i
                rnd_bf16(k, x)
                k.e("v_mul_f32 v16, v%d, v%d" % (x, DD + 1))
                k.e("v_fma_f32 v17, -v16, v%d, v%d" % (DD, x))
                k.e("v_fma_f32 v%d, v17, v%d, v16" % (x, DD + 1))
            k.e("v_cvt_pk_bf16_f32 v16, v%d, v%d" % (DN + 4 * q, DN + 4 * q + 1))
            k.e("v_cvt_pk_bf16_f32 v17, v%d, v%d" % (DN + 4 * q + 2, DN + 4 * q + 3))
            k.e("buffer_store_dwordx2 v[16:17], v18, s[36:39], s31 offen offset:%d" % (q * 16))
            k.nop(1)
    k.L(end)
    k.e("s_endpgm")
    return k, 184, 8192, 256


HEADER = open("gated_mix__linear_kernel_hedgehog__mixer_s_mlp__prompt.s.ref").read().split("; Override launch")[0]


def main(out):
    kernels = []
    launches = []

    def add(gen, grid, block=None, lds=None):
        res = gen()
        k, v = res[0], res[1]
        l = res[2] if len(res) > 2 else 0
        b = res[3] if len(res) > 3 else 256
        kernels.append((k, v))
        launches.append("; @launch kernel=%s grid=(%d,1,1) block=(%d,1,1) lds=%d" % (k.name, grid, b, l))

    add(gen_prep, 1024)
    add(gen_gemm1, 256)
    add(gen_gemm2, 256)
    add(gen_kv, 256)
    add(gen_attn, 256)
    add(gen_ln1, 512)
    add(gen_gemm4, 224)
    add(gen_gemm5, 256)
    txt = [HEADER.rstrip("\n")] + launches + ['.amdgcn_target "amdgcn-amd-amdhsa--gfx950"', ".text"]
    for k, v in kernels:
        txt += k.text(v)
    txt += ['.section .rodata,"a"', ".p2align 6"]
    for k, v in kernels:
        txt += desc(k.name, v)
        txt += [".p2align 6"]
    open(out, "w").write("\n".join(txt) + "\n")


if __name__ == "__main__":
    main(sys.argv[1] if len(sys.argv) > 1 else "gated_mix__linear_kernel_hedgehog__mixer_s_mlp__prompt.s")
```

```python
import sys, re

import os
DBG = set(os.environ.get('GENDBG', '').split(','))
MB = 1 << 20
WS_LNX = 0
WS_QKV = 4 * MB
WS_H = 16 * MB
WS_X1 = 20 * MB
WS_LNX1 = 24 * MB
WS_H3 = 28 * MB
WS_O = 44 * MB
WS_KVP = 48 * MB
WS_G = 52 * MB

KA = dict(A_x=0, wqkv=8, w_phi=16, wo=24, B_x=32, w1=40, w2=48, w3=56, w4=64, gate_w=72, out=80, dbg=88, ws=96)
SZ_ACT = 2048 * 1024 * 2
SZ_QKV = 2048 * 3072 * 2
SZ_H3 = 2048 * 3584 * 2
KVP_STRIDE = (64 * 32 + 64) * 4


class K:
    def __init__(self, name):
        self.name = name
        self.lines = []
        self.nlab = 0
        self.max_v = 0
        self.max_s = 0

    def e(self, s):
        if s.startswith("buffer_"):
            m = re.search(r"offset:(\d+)", s)
            assert not m or int(m.group(1)) < 4096, s
        if s.startswith("ds_"):
            m = re.search(r"offset:(\d+)", s)
            assert not m or int(m.group(1)) < 65536, s
        self.lines.append("    " + s)

    def c(self, s):
        self.lines.append("    ; " + s)

    def lab(self, base="L"):
        self.nlab += 1
        return "%s_%s_%d" % (base, self.name, self.nlab)

    def L(self, l):
        self.lines.append(l + ":")

    def nop(self, n=0):
        self.e("s_nop %d" % n)

    def text(self, vgprs, sgprs=102, lds=0):
        v = (vgprs + 7) // 8 * 8
        acc = (vgprs + 3) // 4 * 4
        hdr = [
            ".globl %s" % self.name,
            ".p2align 8",
            ".type %s,@function" % self.name,
            "%s:" % self.name,
        ]
        return hdr + self.lines


def desc(name, vgprs, sgprs=104):
    v = (vgprs + 7) // 8 * 8
    return [
        ".amdhsa_kernel %s" % name,
        "  .amdhsa_next_free_vgpr %d" % v,
        "  .amdhsa_next_free_sgpr %d" % min(sgprs, 102),
        "  .amdhsa_accum_offset %d" % v,
        "  .amdhsa_group_segment_fixed_size 0",
        "  .amdhsa_kernarg_size 104",
        "  .amdhsa_user_sgpr_count 2",
        "  .amdhsa_user_sgpr_kernarg_segment_ptr 1",
        "  .amdhsa_system_sgpr_workgroup_id_x 1",
        ".end_amdhsa_kernel",
    ]


def vr(a, n=1):
    return "v%d" % a if n == 1 else "v[%d:%d]" % (a, a + n - 1)


def sr(a, n=1):
    return "s%d" % a if n == 1 else "s[%d:%d]" % (a, a + n - 1)


def load_ptr(k, dst, key):
    k.e("s_load_dwordx2 %s, s[0:1], %d" % (sr(dst, 2), KA[key]))


def make_srd(k, dst, ptr, off, size):
    k.e("s_add_u32 s%d, s%d, 0x%x" % (dst, ptr, off))
    k.e("s_addc_u32 s%d, s%d, 0" % (dst + 1, ptr + 1))
    k.e("s_mov_b32 s%d, 0x%x" % (dst + 2, size))
    k.e("s_mov_b32 s%d, 0x00020000" % (dst + 3))


LOG2E = 0x3FB8AA3B


def rnd_bf16(k, v, tmp=None):
    k.e("v_cvt_pk_bf16_f32 %s, %s, %s" % (vr(v), vr(v), vr(v)))
    k.e("v_lshlrev_b32 %s, 16, %s" % (vr(v), vr(v)))


def wave_reduce(k, v, vaddr, vtmp, op="v_add_f32"):
    for m in (1, 2, 4, 8, 16, 32):
        k.e("v_xor_b32 %s, %d, %s" % (vr(vtmp), m * 4, vr(vaddr)))
        k.e("ds_bpermute_b32 %s, %s, %s" % (vr(vtmp), vr(vtmp), vr(v)))
        k.e("s_waitcnt lgkmcnt(0)")
        k.e("%s %s, %s, %s" % (op, vr(v), vr(v), vr(vtmp)))


def emit_ln(k, s_row, srd_in, srd_out):
    k.e("v_and_b32 v1, 63, v0")
    k.e("v_lshlrev_b32 v2, 4, v1")
    k.e("s_lshl_b32 s40, s%d, 11" % s_row)
    k.e("v_add_u32 v2, s40, v2")
    k.e("buffer_load_dwordx4 v[8:11], v2, %s, 0 offen" % sr(srd_in, 4))
    k.e("buffer_load_dwordx4 v[12:15], v2, %s, 0 offen offset:1024" % sr(srd_in, 4))
    k.e("v_lshlrev_b32 v3, 2, v1")
    k.e("s_waitcnt vmcnt(0)")
    for i in range(8):
        k.e("v_lshlrev_b32 v%d, 16, v%d" % (16 + 2 * i, 8 + i))
        k.e("v_and_b32 v%d, 0xffff0000, v%d" % (17 + 2 * i, 8 + i))
    k.e("v_add_f32 v4, v16, v17")
    for i in range(2, 16):
        k.e("v_add_f32 v4, v4, v%d" % (16 + i))
    wave_reduce(k, 4, 3, 5)
    k.e("v_mul_f32 v4, 0x3a800000, v4")
    k.e("v_sub_f32 v5, v16, v4")
    k.e("v_mul_f32 v6, v5, v5")
    for i in range(1, 16):
        k.e("v_sub_f32 v5, v%d, v4" % (16 + i))
        k.e("v_fmac_f32 v6, v5, v5")
    wave_reduce(k, 6, 3, 5)
    k.e("v_mul_f32 v6, 0x3a800000, v6")
    rnd_bf16(k, 4)
    rnd_bf16(k, 6)
    k.e("v_add_f32 v6, 0x3727c5ac, v6")
    rnd_bf16(k, 6)
    k.e("v_sqrt_f32 v6, v6")
    k.nop(0)
    rnd_bf16(k, 6)
    k.e("v_rcp_f32 v7, v6")
    k.nop(0)
    for i in range(16):
        x = 16 + i
        k.e("v_sub_f32 v%d, v%d, v4" % (x, x))
        rnd_bf16(k, x)
        k.e("v_mul_f32 v5, v%d, v7" % x)
        k.e("v_fma_f32 v32, -v5, v6, v%d" % x)
        k.e("v_fma_f32 v%d, v32, v7, v5" % x)
    for i in range(8):
        k.e("v_cvt_pk_bf16_f32 v%d, v%d, v%d" % (8 + i, 16 + 2 * i, 17 + 2 * i))
    k.e("buffer_store_dwordx4 v[8:11], v2, %s, 0 offen" % sr(srd_out, 4))
    k.e("buffer_store_dwordx4 v[12:15], v2, %s, 0 offen offset:1024" % sr(srd_out, 4))


def gen_prep():
    k = K("prep_kernel")
    k.e("s_cmp_ge_u32 s2, 1024")
    end = k.lab("END")
    k.e("s_cbranch_scc1 %s" % end)
    load_ptr(k, 4, "A_x")
    load_ptr(k, 6, "ws")
    load_ptr(k, 8, "A_x")
    load_ptr(k, 10, "gate_w")
    k.e("v_lshrrev_b32 v1, 6, v0")
    k.nop(0)
    k.e("v_readfirstlane_b32 s12, v1")
    k.e("s_waitcnt lgkmcnt(0)")
    gate = k.lab("GATE")
    k.e("s_cmp_ge_u32 s2, 512")
    k.e("s_cbranch_scc1 %s" % gate)
    k.e("s_lshl_b32 s13, s2, 2")
    k.e("s_add_u32 s13, s13, s12")
    make_srd(k, 16, 4, 0, SZ_ACT)
    make_srd(k, 20, 6, WS_LNX, SZ_ACT)
    emit_ln(k, 13, 16, 20)
    k.e("s_endpgm")
    k.L(gate)
    k.e("s_sub_u32 s13, s2, 512")
    k.e("s_lshl_b32 s13, s13, 2")
    k.e("s_add_u32 s13, s13, s12")
    make_srd(k, 16, 8, 0, SZ_ACT)
    make_srd(k, 20, 10, 0, 2048)
    make_srd(k, 24, 6, WS_G, 2048 * 4)
    k.e("v_and_b32 v1, 63, v0")
    k.e("v_lshlrev_b32 v2, 4, v1")
    k.e("s_lshl_b32 s40, s13, 11")
    k.e("v_add_u32 v3, s40, v2")
    k.e("buffer_load_dwordx4 v[8:11], v3, s[16:19], 0 offen")
    k.e("buffer_load_dwordx4 v[12:15], v3, s[16:19], 0 offen offset:1024")
    k.e("buffer_load_dwordx4 v[32:35], v2, s[20:23], 0 offen")
    k.e("buffer_load_dwordx4 v[36:39], v2, s[20:23], 0 offen offset:1024")
    k.e("v_lshlrev_b32 v3, 2, v1")
    k.e("s_waitcnt vmcnt(0)")
    for i in range(8):
        k.e("v_lshlrev_b32 v%d, 16, v%d" % (16 + 2 * i, 8 + i))
        k.e("v_and_b32 v%d, 0xffff0000, v%d" % (17 + 2 * i, 8 + i))
        k.e("v_lshlrev_b32 v4, 16, v%d" % (32 + i))
        k.e("v_and_b32 v5, 0xffff0000, v%d" % (32 + i))
        k.e("v_mul_f32 v%d, v%d, v4" % (16 + 2 * i, 16 + 2 * i))
        k.e("v_mul_f32 v%d, v%d, v5" % (17 + 2 * i, 17 + 2 * i))
        k.e("v_cvt_pk_bf16_f32 v4, v%d, v%d" % (16 + 2 * i, 17 + 2 * i))
        k.e("v_lshlrev_b32 v%d, 16, v4" % (16 + 2 * i))
        k.e("v_and_b32 v%d, 0xffff0000, v4" % (17 + 2 * i))
    k.e("v_add_f32 v4, v16, v17")
    for i in range(2, 16):
        k.e("v_add_f32 v4, v4, v%d" % (16 + i))
    wave_reduce(k, 4, 3, 5)
    rnd_bf16(k, 4)
    k.e("v_mul_f32 v4, 0xbfb8aa3b, v4")
    k.e("v_exp_f32 v4, v4")
    k.nop(0)
    k.e("v_add_f32 v4, 1.0, v4")
    k.e("v_rcp_f32 v4, v4")
    k.nop(0)
    rnd_bf16(k, 4)
    k.e("v_cmp_eq_u32 vcc, 0, v1")
    k.e("s_and_saveexec_b64 s[42:43], vcc")
    k.e("s_lshl_b32 s40, s13, 2")
    k.e("v_mov_b32 v5, s40")
    k.e("buffer_store_dword v4, v5, s[24:27], 0 offen")
    k.L(end)
    k.e("s_endpgm")
    return k, 48


def gen_ln1():
    k = K("ln1_kernel")
    end = k.lab("END")
    k.e("s_cmp_ge_u32 s2, 512")
    k.e("s_cbranch_scc1 %s" % end)
    load_ptr(k, 6, "ws")
    k.e("v_lshrrev_b32 v1, 6, v0")
    k.nop(0)
    k.e("v_readfirstlane_b32 s12, v1")
    k.e("s_waitcnt lgkmcnt(0)")
    k.e("s_lshl_b32 s13, s2, 2")
    k.e("s_add_u32 s13, s13, s12")
    make_srd(k, 16, 6, WS_X1, SZ_ACT)
    make_srd(k, 20, 6, WS_LNX1, SZ_ACT)
    emit_ln(k, 13, 16, 20)
    k.L(end)
    k.e("s_endpgm")
    return k, 48


class GemmCfg:
    def __init__(self, WM, WN, TM, TN, NS=3):
        self.WM, self.WN, self.TM, self.TN, self.NS = WM, WN, TM, TN, NS
        self.BM = WM * TM * 32
        self.BN = WN * TN * 32
        self.NW = WM * WN
        self.XB = self.BM * 128
        self.RB = self.BN * 2
        self.WB = 64 * self.RB
        self.STAGE = self.XB + self.WB
        self.XI = self.XB // 1024 // self.NW
        self.WI = self.WB // 1024 // self.NW
        assert self.XI * 1024 * self.NW == self.XB and self.WI * 1024 * self.NW == self.WB
        self.D = self.XI + self.WI
        self.R = TM + 2 * TN
        self.LDS = self.STAGE * NS


S_SRDX, S_SRDW, S_SRDC, S_SRDR, S_SRDG = 4, 8, 12, 16, 20
S_LDX, S_LDW, S_LDC, S_NK, S_M0, S_N0, S_WAVE, S_KT = 24, 25, 26, 27, 28, 29, 30, 31
S_KX, S_KW, S_CUR, S_OLD, S_DMX, S_DMW, S_T0, S_T1 = 32, 33, 34, 35, 36, 37, 38, 39
S_SHIFT, S_FLAG, S_T2, S_T3 = 40, 41, 42, 43


class GemmRegs:
    def __init__(self, cfg, shifted=False):
        c = cfg
        self.vt = list(range(1, 8))
        p = 8
        self.vxa = list(range(p, p + 4)); p += 4
        self.vwa = list(range(p, p + c.TN)); p += c.TN
        self.vxo = list(range(p, p + c.XI)); p += c.XI
        self.vwo = list(range(p, p + c.WI)); p += c.WI
        self.vxs = list(range(p, p + c.XI)) if shifted else None
        if shifted:
            p += c.XI
        p = (p + 3) // 4 * 4
        self.F = []
        for s in range(2):
            X = [p + 4 * i for i in range(c.TM)]; p += 4 * c.TM
            W = [p + 4 * i for i in range(c.TN)]; p += 4 * c.TN
            self.F.append((X, W))
        p = (p + 15) // 16 * 16
        self.acc = {}
        for tn in range(c.TN):
            for tm in range(c.TM):
                self.acc[(tn, tm)] = p; p += 16
        self.acc_base = self.acc[(0, 0)]
        self.nacc = 16 * c.TM * c.TN
        self.save = p
        self.end = p
        self.ep = None


def gemm_lane_setup(k, c, r):
    t0, t1, t2, t3 = r.vt[0:4]
    k.c("lane setup")
    k.e("v_and_b32 v%d, 63, v0" % t0)
    k.e("v_lshrrev_b32 v%d, 3, v%d" % (t1, t0))
    k.e("s_mul_i32 s%d, s%d, %d" % (S_T0, S_WAVE, c.XI * 8))
    k.e("v_add_u32 v%d, s%d, v%d" % (t1, S_T0, t1))
    k.e("v_mul_lo_u32 v%d, v%d, s%d" % (t1, t1, S_LDX))
    k.e("v_and_b32 v%d, 7, v%d" % (t2, t0))
    k.e("v_lshrrev_b32 v%d, 4, v%d" % (t3, t0))
    k.e("v_xor_b32 v%d, v%d, v%d" % (t2, t2, t3))
    for i in range(c.XI):
        k.e("s_mul_i32 s%d, s%d, %d" % (S_T0, S_WAVE, c.XI))
        k.e("s_add_u32 s%d, s%d, %d" % (S_T0, S_T0, i))
        k.e("s_and_b32 s%d, s%d, 1" % (S_T0, S_T0))
        k.e("s_lshl_b32 s%d, s%d, 2" % (S_T0, S_T0))
        k.e("v_xor_b32 v%d, s%d, v%d" % (t3, S_T0, t2))
        k.e("v_lshl_add_u32 v%d, v%d, 4, v%d" % (r.vxo[i], t3, t1))
        if i + 1 < c.XI:
            k.e("s_lshl_b32 s%d, s%d, 3" % (S_T0, S_LDX))
            k.e("v_add_u32 v%d, s%d, v%d" % (t1, S_T0, t1))
    if c.RB == 256:
        k.e("v_lshrrev_b32 v%d, 4, v%d" % (t1, t0))
        k.e("s_mul_i32 s%d, s%d, %d" % (S_T0, S_WAVE, c.WI * 4))
        k.e("v_add_u32 v%d, s%d, v%d" % (t2, S_T0, t1))
        k.e("v_mul_lo_u32 v%d, v%d, s%d" % (t2, t2, S_LDW))
        k.e("v_lshlrev_b32 v%d, 2, v%d" % (t1, t1))
        k.e("v_and_b32 v%d, 15, v%d" % (t3, t0))
        k.e("v_xor_b32 v%d, v%d, v%d" % (t3, t3, t1))
        for j in range(c.WI):
            k.e("v_lshl_add_u32 v%d, v%d, 4, v%d" % (r.vwo[j], t3, t2))
            if j + 1 < c.WI:
                k.e("s_lshl_b32 s%d, s%d, 2" % (S_T0, S_LDW))
                k.e("v_add_u32 v%d, s%d, v%d" % (t2, S_T0, t2))
    elif c.RB == 128:
        k.e("v_lshrrev_b32 v%d, 3, v%d" % (t1, t0))
        k.e("s_mul_i32 s%d, s%d, %d" % (S_T0, S_WAVE, c.WI * 8))
        k.e("v_add_u32 v%d, s%d, v%d" % (t2, S_T0, t1))
        k.e("v_mul_lo_u32 v%d, v%d, s%d" % (t2, t2, S_LDW))
        k.e("v_lshrrev_b32 v%d, 4, v%d" % (t1, t0))
        k.e("v_and_b32 v%d, 1, v%d" % (t1, t1))
        k.e("v_lshlrev_b32 v%d, 2, v%d" % (t1, t1))
        k.e("v_and_b32 v%d, 7, v%d" % (t3, t0))
        k.e("v_xor_b32 v%d, v%d, v%d" % (t3, t3, t1))
        for j in range(c.WI):
            k.e("v_lshl_add_u32 v%d, v%d, 4, v%d" % (r.vwo[j], t3, t2))
            if j + 1 < c.WI:
                k.e("s_lshl_b32 s%d, s%d, 3" % (S_T0, S_LDW))
                k.e("v_add_u32 v%d, s%d, v%d" % (t2, S_T0, t2))
    else:
        raise ValueError("RB")
    k.e("s_and_b32 s%d, s%d, %d" % (S_T2, S_WAVE, c.WM - 1))
    k.e("s_lshr_b32 s%d, s%d, %d" % (S_T3, S_WAVE, c.WM.bit_length() - 1))
    k.e("v_and_b32 v%d, 31, v%d" % (t1, t0))
    k.e("s_mul_i32 s%d, s%d, %d" % (S_T0, S_T2, c.TM * 32))
    k.e("v_add_u32 v%d, s%d, v%d" % (t1, S_T0, t1))
    k.e("v_lshlrev_b32 v%d, 7, v%d" % (t1, t1))
    k.e("v_lshrrev_b32 v%d, 5, v%d" % (t2, t0))
    k.e("v_bfe_u32 v%d, v%d, 1, 3" % (t3, t0))
    k.e("v_xor_b32 v%d, v%d, v%d" % (t2, t2, t3))
    for t in range(4):
        k.e("v_xor_b32 v%d, %d, v%d" % (t3, 2 * t, t2))
        k.e("v_lshl_add_u32 v%d, v%d, 4, v%d" % (r.vxa[t], t3, t1))
    k.e("v_bfe_u32 v%d, v%d, 2, 2" % (t1, t0))
    k.e("v_lshrrev_b32 v%d, 5, v%d" % (t2, t0))
    k.e("v_lshl_add_u32 v%d, v%d, 3, v%d" % (t2, t2, t1))
    k.e("v_mul_u32_u24 v%d, %d, v%d" % (t2, c.RB, t2))
    k.e("v_bfe_u32 v%d, v%d, 4, 1" % (t3, t0))
    k.e("v_lshl_add_u32 v%d, v%d, 5, v%d" % (t2, t3, t2))
    k.e("v_and_b32 v%d, 3, v%d" % (t3, t0))
    k.e("v_lshl_add_u32 v%d, v%d, 3, v%d" % (t2, t3, t2))
    k.e("v_add_u32 v%d, %d, v%d" % (t2, c.XB, t2))
    if c.RB == 128:
        k.e("v_lshrrev_b32 v%d, 1, v%d" % (t1, t1))
    for tn in range(c.TN):
        k.e("s_mul_i32 s%d, s%d, %d" % (S_T0, S_T3, c.TN))
        k.e("s_add_u32 s%d, s%d, %d" % (S_T0, S_T0, tn))
        k.e("v_xor_b32 v%d, s%d, v%d" % (t3, S_T0, t1))
        k.e("v_lshl_add_u32 v%d, v%d, 6, v%d" % (r.vwa[tn], t3, t2))
    k.e("s_mul_i32 s%d, s%d, %d" % (S_DMX, S_WAVE, c.XI * 1024))
    k.e("s_mul_i32 s%d, s%d, %d" % (S_DMW, S_WAVE, c.WI * 1024))
    k.e("s_add_u32 s%d, s%d, %d" % (S_DMW, S_DMW, c.XB))


def gemm_dma(k, c, r, s_stage, shifted):
    if 'nodma' in DBG:
        return
    xo = r.vxs if shifted else r.vxo
    k.e("s_add_u32 m0, s%d, s%d" % (s_stage, S_DMX))
    for i in range(c.XI):
        if i:
            k.e("s_add_u32 m0, m0, 1024")
        k.nop(0)
        k.e("buffer_load_dwordx4 v%d, %s, s%d offen lds" % (xo[i], sr(S_SRDX, 4), S_KX))
    k.e("s_add_u32 m0, s%d, s%d" % (s_stage, S_DMW))
    for j in range(c.WI):
        if j:
            k.e("s_add_u32 m0, m0, 1024")
        k.nop(0)
        k.e("buffer_load_dwordx4 v%d, %s, s%d offen lds" % (r.vwo[j], sr(S_SRDW, 4), S_KW))


def gemm_shift_update(k, c, r, s_kidx):
    k.e("s_lshr_b32 s%d, s%d, 2" % (S_T0, s_kidx))
    k.e("s_and_b32 s%d, s%d, 1" % (S_T1, S_T0))
    k.e("s_lshr_b32 s%d, s%d, 1" % (S_T0, S_T0))
    k.e("s_lshl_b32 s%d, 2048, s%d" % (S_SHIFT, S_T0))
    k.e("s_sub_u32 s%d, 0, s%d" % (S_T0, S_SHIFT))
    k.e("s_cmp_eq_u32 s%d, 1" % S_T1)
    k.e("s_cselect_b32 s%d, s%d, s%d" % (S_SHIFT, S_SHIFT, S_T0))
    k.e("s_lshl_b32 s%d, s%d, 11" % (S_T0, S_M0))
    k.e("s_add_u32 s%d, s%d, s%d" % (S_SHIFT, S_SHIFT, S_T0))
    for i in range(c.XI):
        k.e("v_add_u32 v%d, s%d, v%d" % (r.vxs[i], S_SHIFT, r.vxo[i]))


def gemm_reads(k, c, r, t, fs):
    if 'noreads' in DBG:
        return
    X, W = r.F[fs]
    for tm in range(c.TM):
        k.e("ds_read_b128 %s, v%d offset:%d" % (vr(X[tm], 4), r.vxa[t], tm * 4096))
    for tn in range(c.TN):
        for u in range(2):
            k.e("ds_read_b64_tr_b16 %s, v%d offset:%d" % (vr(W[tn] + 2 * u, 2), r.vwa[tn], (16 * t + 4 * u) * c.RB))


def gemm_mfma(k, c, r, fs, accmap=None):
    if 'nomfma' in DBG:
        return
    X, W = r.F[fs]
    for tn in range(c.TN):
        for tm in range(c.TM):
            a = r.acc[(tn, tm)]
            k.e("v_mfma_f32_32x32x16_bf16 %s, %s, %s, %s" % (vr(a, 16), vr(W[tn], 4), vr(X[tm], 4), vr(a, 16)))


def gemm_kloop(k, c, r, shifted=False):
    D, R, NS = c.D, c.R, c.NS
    k.c("K loop prologue")
    k.e("s_mov_b32 s%d, 0" % S_CUR)
    k.e("s_lshl_b32 s%d, s%d, 6" % (S_T2, S_LDW))
    for i in range(r.nacc):
        k.e("v_mov_b32 v%d, 0" % (r.acc_base + i))
    k.e("s_mov_b32 s%d, 0" % S_KT)
    for s in range(NS):
        if shifted:
            gemm_shift_update(k, c, r, S_KT)
        k.e("s_mov_b32 s%d, %d" % (S_OLD, s * c.STAGE))
        gemm_dma(k, c, r, S_OLD, shifted)
        k.e("s_add_u32 s%d, s%d, 128" % (S_KX, S_KX))
        k.e("s_add_u32 s%d, s%d, s%d" % (S_KW, S_KW, S_T2))
        k.e("s_add_u32 s%d, s%d, 1" % (S_KT, S_KT))
    k.e("s_waitcnt vmcnt(%d)" % ((NS - 1) * D))
    k.e("s_barrier")
    gemm_reads(k, c, r, 0, 0)
    k.e("s_mov_b32 s%d, 0" % S_T3)
    loop = k.lab("KLOOP")
    last = k.lab("KLAST")
    nod = k.lab("NODMA")
    w0 = k.lab("W0")
    w1 = k.lab("W1")
    done = k.lab("KDONE")
    k.L(loop)
    for t in range(3):
        gemm_reads(k, c, r, t + 1, (t + 1) & 1)
        k.e("s_waitcnt lgkmcnt(%d)" % R)
        gemm_mfma(k, c, r, t & 1)
    k.e("s_add_u32 s%d, s%d, 1" % (S_T3, S_T3))
    k.e("s_cmp_ge_u32 s%d, s%d" % (S_T3, S_NK))
    k.e("s_cbranch_scc1 %s" % last)
    k.e("s_add_u32 s%d, s%d, %d" % (S_T0, S_T3, NS - 1))
    k.e("s_cmp_eq_u32 s%d, s%d" % (S_T0, S_KT))
    k.e("s_cbranch_scc1 %s" % w0)
    k.e("s_waitcnt vmcnt(0) lgkmcnt(0)")
    k.e("s_branch %s" % w1)
    k.L(w0)
    k.e("s_waitcnt vmcnt(%d) lgkmcnt(0)" % ((NS - 2) * D))
    k.L(w1)
    k.e("s_barrier")
    k.e("s_mov_b32 s%d, s%d" % (S_OLD, S_CUR))
    k.e("s_add_u32 s%d, s%d, %d" % (S_CUR, S_CUR, c.STAGE))
    k.e("s_cmp_eq_u32 s%d, %d" % (S_CUR, c.STAGE * NS))
    k.e("s_cselect_b32 s%d, 0, s%d" % (S_CUR, S_CUR))
    k.e("s_sub_u32 s%d, s%d, s%d" % (S_T0, S_CUR, S_OLD))
    for v in r.vxa + r.vwa:
        k.e("v_add_u32 v%d, s%d, v%d" % (v, S_T0, v))
    gemm_reads(k, c, r, 0, 0)
    k.e("s_cmp_ge_u32 s%d, s%d" % (S_KT, S_NK))
    k.e("s_cbranch_scc1 %s" % nod)
    if shifted:
        gemm_shift_update(k, c, r, S_KT)
    gemm_dma(k, c, r, S_OLD, shifted)
    k.e("s_add_u32 s%d, s%d, 128" % (S_KX, S_KX))
    k.e("s_add_u32 s%d, s%d, s%d" % (S_KW, S_KW, S_T2))
    k.e("s_add_u32 s%d, s%d, 1" % (S_KT, S_KT))
    k.L(nod)
    gemm_mfma(k, c, r, 1)
    k.e("s_branch %s" % loop)
    k.L(last)
    k.e("s_waitcnt lgkmcnt(0)")
    gemm_mfma(k, c, r, 1)
    k.L(done)
    k.e("s_sub_u32 s%d, 0, s%d" % (S_T0, S_CUR))
    for v in r.vxa + r.vwa:
        k.e("v_add_u32 v%d, s%d, v%d" % (v, S_T0, v))


def emit_gelu(k, x, t0, t1):
    k.e("v_mul_f32 v%d, v%d, v%d" % (t0, x, x))
    k.e("v_mov_b32 v%d, 0x3d372713" % t1)
    k.e("v_fma_f32 v%d, v%d, v%d, 1.0" % (t0, t0, t1))
    k.e("v_mul_f32 v%d, v%d, v%d" % (t0, t0, x))
    k.e("v_mul_f32 v%d, 0xc0135761, v%d" % (t0, t0))
    k.e("v_exp_f32 v%d, v%d" % (t0, t0))
    k.nop(0)
    k.e("v_add_f32 v%d, 1.0, v%d" % (t0, t0))
    k.e("v_rcp_f32 v%d, v%d" % (t0, t0))
    k.nop(0)
    k.e("v_mul_f32 v%d, v%d, v%d" % (x, x, t0))


def gemm_epilogue(k, c, r, mode):
    t0, t1, t2, t3, t4, t5, t6 = r.vt
    if 'noepi' in DBG:
        return
    k.c("epilogue " + mode)
    k.nop(15)
    k.nop(7)
    k.e("s_and_b32 s%d, s%d, %d" % (S_T2, S_WAVE, c.WM - 1))
    k.e("s_lshr_b32 s%d, s%d, %d" % (S_T3, S_WAVE, c.WM.bit_length() - 1))
    k.e("s_mul_i32 s%d, s%d, %d" % (S_T0, S_T2, c.TM * 32))
    k.e("s_add_u32 s%d, s%d, s%d" % (S_T0, S_T0, S_M0))
    k.e("s_mul_i32 s%d, s%d, %d" % (S_T1, S_T3, c.TN * 32))
    k.e("s_add_u32 s%d, s%d, s%d" % (S_T1, S_T1, S_N0))
    k.e("s_lshl_b32 s%d, s%d, 1" % (S_T1, S_T1))
    k.e("v_and_b32 v%d, 31, v0" % t0)
    k.e("v_add_u32 v%d, s%d, v%d" % (t0, S_T0, t0))
    k.e("v_bfe_u32 v%d, v0, 5, 1" % t1)
    k.e("v_mul_lo_u32 v%d, v%d, s%d" % (t2, t0, S_LDC))
    k.e("v_add_u32 v%d, s%d, v%d" % (t2, S_T1, t2))
    k.e("v_lshl_add_u32 v%d, v%d, 4, v%d" % (t3, t1, t2))
    k.e("v_lshl_add_u32 v%d, v%d, 3, v%d" % (t4, t1, t2))
    k.e("v_lshlrev_b32 v%d, 2, v%d" % (t5, t0))
    ep = r.ep
    P = [ep + i for i in range(8)]
    RS = [ep + 8 + i for i in range(8)]
    a0, a1, a2, a3 = ep + 16, ep + 17, ep + 18, ep + 19
    for tm in range(c.TM):
        k.e("s_lshl_b32 s%d, s%d, 5" % (S_T0, S_LDC))
        k.e("s_mul_i32 s%d, s%d, %d" % (S_T0, S_T0, tm))
        if mode == 'final':
            k.e("buffer_load_dword v%d, v%d, %s, 0 offen offset:%d" % (a3, t5, sr(S_SRDG, 4), tm * 128))
        for tn in range(c.TN):
            a = r.acc[(tn, tm)]
            if mode in ('resid', 'final'):
                for q in range(4):
                    k.e("buffer_load_dwordx2 %s, v%d, %s, s%d offen offset:%d" %
                        (vr(RS[2 * q], 2), t4, sr(S_SRDR, 4), S_T0, tn * 64 + q * 16))
                k.e("s_waitcnt vmcnt(0)")
            for q in range(4):
                lo, hi = P[2 * q], P[2 * q + 1]
                k.e("v_cvt_pk_bf16_f32 v%d, v%d, v%d" % (lo, a + 4 * q, a + 4 * q + 1))
                k.e("v_cvt_pk_bf16_f32 v%d, v%d, v%d" % (hi, a + 4 * q + 2, a + 4 * q + 3))
                if mode == 'store':
                    continue
                for (pk, rs) in ((lo, RS[2 * q]), (hi, RS[2 * q + 1])):
                    k.e("v_lshlrev_b32 v%d, 16, v%d" % (a0, pk))
                    k.e("v_and_b32 v%d, 0xffff0000, v%d" % (a1, pk))
                    if mode == 'gelu':
                        emit_gelu(k, a0, a2, t6)
                        emit_gelu(k, a1, a2, t6)
                    else:
                        k.e("v_lshlrev_b32 v%d, 16, v%d" % (a2, rs))
                        k.e("v_add_f32 v%d, v%d, v%d" % (a0, a0, a2))
                        k.e("v_and_b32 v%d, 0xffff0000, v%d" % (a2, rs))
                        k.e("v_add_f32 v%d, v%d, v%d" % (a1, a1, a2))
                        if mode == 'final':
                            k.e("v_cvt_pk_bf16_f32 v%d, v%d, v%d" % (a2, a0, a1))
                            k.e("v_lshlrev_b32 v%d, 16, v%d" % (a0, a2))
                            k.e("v_and_b32 v%d, 0xffff0000, v%d" % (a1, a2))
                            k.e("v_sub_f32 v%d, 1.0, v%d" % (a2, a3))
                            rnd_bf16(k, a2)
                            k.e("v_mul_f32 v%d, v%d, v%d" % (a0, a0, a2))
                            k.e("v_mul_f32 v%d, v%d, v%d" % (a1, a1, a2))
                            k.e("v_cvt_pk_bf16_f32 v%d, v%d, v%d" % (a2, a0, a1))
                            k.e("v_lshlrev_b32 v%d, 16, v%d" % (a0, a2))
                            k.e("v_and_b32 v%d, 0xffff0000, v%d" % (a1, a2))
                            sa = r.save + (a - r.acc_base) + 4 * q + (0 if pk == lo else 2)
                            k.e("v_cvt_pk_bf16_f32 v%d, v%d, v%d" % (a2, sa, sa + 1))
                            k.e("v_lshlrev_b32 v%d, 16, v%d" % (t6, a2))
                            k.e("v_and_b32 v%d, 0xffff0000, v%d" % (a2, a2))
                            k.e("v_mul_f32 v%d, v%d, v%d" % (t6, t6, a3))
                            k.e("v_mul_f32 v%d, v%d, v%d" % (a2, a2, a3))
                            k.e("v_cvt_pk_bf16_f32 v%d, v%d, v%d" % (a2, t6, a2))
                            k.e("v_lshlrev_b32 v%d, 16, v%d" % (t6, a2))
                            k.e("v_and_b32 v%d, 0xffff0000, v%d" % (a2, a2))
                            k.e("v_add_f32 v%d, v%d, v%d" % (a0, a0, t6))
                            k.e("v_add_f32 v%d, v%d, v%d" % (a1, a1, a2))
                    k.e("v_cvt_pk_bf16_f32 v%d, v%d, v%d" % (pk, a0, a1))
            k.nop(1)
            for p in range(2):
                k.e("v_permlane32_swap_b32 v%d, v%d" % (P[4 * p], P[4 * p + 2]))
                k.e("v_permlane32_swap_b32 v%d, v%d" % (P[4 * p + 1], P[4 * p + 3]))
            k.nop(1)
            for p in range(2):
                k.e("buffer_store_dwordx4 %s, v%d, %s, s%d offen offset:%d" %
                    (vr(P[4 * p], 4), t3, sr(S_SRDC, 4), S_T0, tn * 64 + p * 32))
            k.nop(3)


class GemmRegsPP:
    def __init__(self, cfg, shifted=False, nsave=0):
        c = cfg
        self.vt = list(range(1, 8))
        p = 8
        self.vxa = list(range(p, p + 4)); p += 4
        self.vwa = list(range(p, p + c.TN)); p += c.TN
        self.vxo = list(range(p, p + c.XI)); p += c.XI
        self.vwo = list(range(p, p + c.WI)); p += c.WI
        self.vxs = list(range(p, p + c.XI)) if shifted else None
        if shifted:
            p += c.XI
        p = (p + 3) // 4 * 4
        self.FX = [[p + 4 * (tm * 4 + t) for t in range(4)] for tm in range(c.TM)]; p += 16 * c.TM
        self.FW = [[p + 4 * (tn * 4 + t) for t in range(4)] for tn in range(c.TN)]; p += 16 * c.TN
        p = (p + 15) // 16 * 16
        self.acc = {}
        for tn in range(c.TN):
            for tm in range(c.TM):
                self.acc[(tn, tm)] = p; p += 16
        self.acc_base = self.acc[(0, 0)]
        self.nacc = 16 * c.TM * c.TN
        self.save = p
        p += nsave
        self.end = p
        self.ep = self.FX[0][0]


def pp_reads(k, c, r):
    if 'noreads' in DBG:
        return
    for t in range(4):
        for tm in range(c.TM):
            k.e("ds_read_b128 %s, v%d offset:%d" % (vr(r.FX[tm][t], 4), r.vxa[t], tm * 4096))
        for tn in range(c.TN):
            for u in range(2):
                k.e("ds_read_b64_tr_b16 %s, v%d offset:%d" % (vr(r.FW[tn][t] + 2 * u, 2), r.vwa[tn], (16 * t + 4 * u) * c.RB))


def pp_mfma(k, c, r):
    if 'nomfma' in DBG:
        return
    for t in range(4):
        for tn in range(c.TN):
            for tm in range(c.TM):
                a = r.acc[(tn, tm)]
                k.e("v_mfma_f32_32x32x16_bf16 %s, %s, %s, %s" % (vr(a, 16), vr(r.FW[tn][t], 4), vr(r.FX[tm][t], 4), vr(a, 16)))


def pp_loop_body(k, c, r, grpB, shifted):
    D = c.D
    loop = k.lab("PPL"); nod = k.lab("PPN"); w0 = k.lab("PW0"); w1 = k.lab("PW1"); x0 = k.lab("PX0"); x1 = k.lab("PX1")
    k.L(loop)
    pp_reads(k, c, r)
    k.e("s_cmp_ge_u32 s%d, s%d" % (S_KT, S_NK))
    k.e("s_cbranch_scc1 %s" % nod)
    if shifted:
        gemm_shift_update(k, c, r, S_KT)
    gemm_dma(k, c, r, S_OLD, shifted)
    k.e("s_add_u32 s%d, s%d, 128" % (S_KX, S_KX))
    k.e("s_add_u32 s%d, s%d, s%d" % (S_KW, S_KW, S_T2))
    k.e("s_add_u32 s%d, s%d, 1" % (S_KT, S_KT))
    k.L(nod)
    if grpB:
        k.e("s_add_u32 s%d, s%d, 3" % (S_T0, S_T3))
        k.e("s_cmp_eq_u32 s%d, s%d" % (S_T0, S_KT))
        k.e("s_cbranch_scc1 %s" % w0)
        k.e("s_waitcnt vmcnt(0) lgkmcnt(0)")
        k.e("s_branch %s" % w1)
        k.L(w0)
        k.e("s_waitcnt vmcnt(%d) lgkmcnt(0)" % D)
        k.L(w1)
    else:
        k.e("s_waitcnt lgkmcnt(0)")
    k.e("s_barrier")
    k.e("s_setprio 1")
    pp_mfma(k, c, r)
    k.e("s_setprio 0")
    k.e("s_mov_b32 s%d, s%d" % (S_T1, S_CUR))
    k.e("s_add_u32 s%d, s%d, %d" % (S_CUR, S_CUR, c.STAGE))
    k.e("s_cmp_eq_u32 s%d, %d" % (S_CUR, c.STAGE * c.NS))
    k.e("s_cselect_b32 s%d, 0, s%d" % (S_CUR, S_CUR))
    k.e("s_sub_u32 s%d, s%d, s%d" % (S_T0, S_CUR, S_T1))
    for v in r.vxa + r.vwa:
        k.e("v_add_u32 v%d, s%d, v%d" % (v, S_T0, v))
    k.e("s_add_u32 s%d, s%d, %d" % (S_OLD, S_OLD, c.STAGE))
    k.e("s_cmp_eq_u32 s%d, %d" % (S_OLD, c.STAGE * c.NS))
    k.e("s_cselect_b32 s%d, 0, s%d" % (S_OLD, S_OLD))
    k.e("s_add_u32 s%d, s%d, 1" % (S_T3, S_T3))
    if not grpB:
        k.e("s_add_u32 s%d, s%d, 2" % (S_T0, S_T3))
        k.e("s_cmp_eq_u32 s%d, s%d" % (S_T0, S_KT))
        k.e("s_cbranch_scc1 %s" % x0)
        k.e("s_waitcnt vmcnt(0)")
        k.e("s_branch %s" % x1)
        k.L(x0)
        k.e("s_waitcnt vmcnt(%d)" % D)
        k.L(x1)
    k.e("s_barrier")
    k.e("s_cmp_lt_u32 s%d, s%d" % (S_T3, S_NK))
    k.e("s_cbranch_scc1 %s" % loop)


def gemm_kloop_pp(k, c, r, shifted=False):
    assert c.NS == 3 and c.NW == 8
    D = c.D
    k.c("K loop (ping-pong) prologue")
    k.e("s_lshl_b32 s%d, s%d, 6" % (S_T2, S_LDW))
    for i in range(r.nacc):
        k.e("v_mov_b32 v%d, 0" % (r.acc_base + i))
    k.e("s_mov_b32 s%d, 0" % S_KT)
    for s in range(2):
        if shifted:
            gemm_shift_update(k, c, r, S_KT)
        k.e("s_mov_b32 s%d, %d" % (S_OLD, s * c.STAGE))
        gemm_dma(k, c, r, S_OLD, shifted)
        k.e("s_add_u32 s%d, s%d, 128" % (S_KX, S_KX))
        k.e("s_add_u32 s%d, s%d, s%d" % (S_KW, S_KW, S_T2))
        k.e("s_add_u32 s%d, s%d, 1" % (S_KT, S_KT))
    k.e("s_mov_b32 s%d, %d" % (S_OLD, 2 * c.STAGE))
    k.e("s_mov_b32 s%d, 0" % S_CUR)
    k.e("s_mov_b32 s%d, 0" % S_T3)
    k.e("s_waitcnt vmcnt(%d)" % D)
    k.e("s_barrier")
    gb = k.lab("GRPB"); done = k.lab("PPD")
    k.e("s_cmp_ge_u32 s%d, 4" % S_WAVE)
    k.e("s_cbranch_scc1 %s" % gb)
    pp_loop_body(k, c, r, False, shifted)
    k.e("s_barrier")
    k.e("s_branch %s" % done)
    k.L(gb)
    k.e("s_barrier")
    pp_loop_body(k, c, r, True, shifted)
    k.L(done)
    k.e("s_sub_u32 s%d, 0, s%d" % (S_T0, S_CUR))
    for v in r.vxa + r.vwa:
        k.e("v_add_u32 v%d, s%d, v%d" % (v, S_T0, v))


def gemm_epilogue_lds(k, c, r, mode, lds_base=0):
    if 'noepi' in DBG:
        return
    t0, t1, t2, t3, t4, t5, t6 = r.vt
    RC = c.BN * 2
    TILE = c.BM * RC
    ep = r.ep
    P = [ep + i for i in range(8)]
    a0, a1, a2, a3 = ep + 8, ep + 9, ep + 10, ep + 11
    k.c("epilogue(lds) " + mode)
    k.nop(15)
    k.nop(7)
    k.e("s_and_b32 s%d, s%d, %d" % (S_T2, S_WAVE, c.WM - 1))
    k.e("s_lshr_b32 s%d, s%d, %d" % (S_T3, S_WAVE, c.WM.bit_length() - 1))
    k.e("v_and_b32 v%d, 31, v0" % t0)
    k.e("s_mul_i32 s%d, s%d, %d" % (S_T0, S_T2, c.TM * 32))
    k.e("v_add_u32 v%d, s%d, v%d" % (t0, S_T0, t0))
    k.e("v_mul_u32_u24 v%d, %d, v%d" % (t1, RC, t0))
    k.e("v_and_b32 v%d, 7, v0" % t0)
    k.e("v_lshl_or_b32 v%d, v%d, 4, v%d" % (t1, t0, t1))
    k.e("v_bfe_u32 v%d, v0, 5, 1" % t0)
    k.e("v_lshl_or_b32 v%d, v%d, 3, v%d" % (t1, t0, t1))
    k.e("s_mul_i32 s%d, s%d, %d" % (S_T0, S_T3, c.TN * 64))
    k.e("v_xor_b32 v%d, s%d, v%d" % (t1, S_T0, t1))
    sets = [(r.acc, 0)] if mode != 'final' else [(r.acc, 0), (None, TILE)]
    for which, (accmap, lbase) in enumerate(sets):
        for tm in range(c.TM):
            for tn in range(c.TN):
                a = r.acc[(tn, tm)] if which == 0 else r.save + (r.acc[(tn, tm)] - r.acc_base)
                for q in range(4):
                    lo, hi = P[0], P[1]
                    k.e("v_cvt_pk_bf16_f32 v%d, v%d, v%d" % (lo, a + 4 * q, a + 4 * q + 1))
                    k.e("v_cvt_pk_bf16_f32 v%d, v%d, v%d" % (hi, a + 4 * q + 2, a + 4 * q + 3))
                    if mode == 'gelu':
                        for pk in (lo, hi):
                            k.e("v_lshlrev_b32 v%d, 16, v%d" % (a0, pk))
                            k.e("v_and_b32 v%d, 0xffff0000, v%d" % (a1, pk))
                            emit_gelu(k, a0, a2, t6)
                            emit_gelu(k, a1, a2, t6)
                            k.e("v_cvt_pk_bf16_f32 v%d, v%d, v%d" % (pk, a0, a1))
                    k.e("v_xor_b32 v%d, %d, v%d" % (t0, (tn * 4 + q) << 4, t1))
                    k.e("ds_write_b64 v%d, v[%d:%d] offset:%d" % (t0, lo, hi, lds_base + lbase + tm * 32 * RC))
    k.e("s_waitcnt lgkmcnt(0)")
    k.e("s_barrier")
    CPR = RC // 16
    RPI = 64 // CPR
    NI = TILE // 1024 // c.NW
    sh = CPR.bit_length() - 1
    k.e("v_and_b32 v%d, 63, v0" % t0)
    k.e("v_lshrrev_b32 v%d, %d, v%d" % (t1, sh, t0))
    k.e("s_mul_i32 s%d, s%d, %d" % (S_T0, S_WAVE, NI * RPI))
    k.e("v_add_u32 v%d, s%d, v%d" % (t1, S_T0, t1))
    k.e("v_and_b32 v%d, %d, v%d" % (t2, CPR - 1, t0))
    k.e("v_and_b32 v%d, 7, v%d" % (t3, t1))
    k.e("v_xor_b32 v%d, v%d, v%d" % (t3, t3, t2))
    k.e("v_mul_u32_u24 v%d, %d, v%d" % (t4, RC, t1))
    k.e("v_lshl_add_u32 v%d, v%d, 4, v%d" % (t4, t3, t4))
    k.e("v_add_u32 v%d, s%d, v%d" % (t3, S_M0, t1))
    k.e("v_mul_lo_u32 v%d, v%d, s%d" % (t5, t3, S_LDC))
    k.e("v_lshl_add_u32 v%d, v%d, 4, v%d" % (t5, t2, t5))
    k.e("s_lshl_b32 s%d, s%d, 1" % (S_T0, S_N0))
    k.e("v_add_u32 v%d, s%d, v%d" % (t5, S_T0, t5))
    k.e("v_lshlrev_b32 v%d, 2, v%d" % (t6, t3))
    assert RPI % 8 == 0 or RPI == 4
    for i in range(NI):
        if RPI == 4 and i > 0:
            k.e("v_add_u32 v%d, %d, v%d" % (t1, RPI, t1))
            k.e("v_and_b32 v%d, 7, v%d" % (t3, t1))
            k.e("v_xor_b32 v%d, v%d, v%d" % (t3, t3, t2))
            k.e("v_mul_u32_u24 v%d, %d, v%d" % (t4, RC, t1))
            k.e("v_lshl_add_u32 v%d, v%d, 4, v%d" % (t4, t3, t4))
        loff = 0 if RPI == 4 else i * 1024
        k.e("s_mul_i32 s%d, s%d, %d" % (S_T1, S_LDC, i * RPI))
        X = ep + 12
        Y = ep + 16
        Z = ep + 20
        k.e("ds_read_b128 %s, v%d offset:%d" % (vr(X, 4), t4, lds_base + loff))
        if mode == 'resid':
            k.e("buffer_load_dwordx4 %s, v%d, %s, s%d offen" % (vr(Y, 4), t5, sr(S_SRDR, 4), S_T1))
            k.e("s_waitcnt vmcnt(0) lgkmcnt(0)")
            for j in range(4):
                k.e("v_lshlrev_b32 v%d, 16, v%d" % (a0, X + j))
                k.e("v_and_b32 v%d, 0xffff0000, v%d" % (a1, X + j))
                k.e("v_lshlrev_b32 v%d, 16, v%d" % (a2, Y + j))
                k.e("v_and_b32 v%d, 0xffff0000, v%d" % (a3, Y + j))
                k.e("v_add_f32 v%d, v%d, v%d" % (a0, a0, a2))
                k.e("v_add_f32 v%d, v%d, v%d" % (a1, a1, a3))
                k.e("v_cvt_pk_bf16_f32 v%d, v%d, v%d" % (X + j, a0, a1))
        elif mode == 'final':
            k.e("ds_read_b128 %s, v%d offset:%d" % (vr(Z, 4), t4, lds_base + TILE + loff))
            k.e("buffer_load_dwordx4 %s, v%d, %s, s%d offen" % (vr(Y, 4), t5, sr(S_SRDR, 4), S_T1))
            k.e("buffer_load_dword v%d, v%d, %s, 0 offen offset:%d" % (P[2], t6, sr(S_SRDG, 4), i * RPI * 4))
            k.e("s_waitcnt vmcnt(0) lgkmcnt(0)")
            k.e("v_sub_f32 v%d, 1.0, v%d" % (P[3], P[2]))
            rnd_bf16(k, P[3])
            for j in range(4):
                k.e("v_lshlrev_b32 v%d, 16, v%d" % (a0, X + j))
                k.e("v_and_b32 v%d, 0xffff0000, v%d" % (a1, X + j))
                k.e("v_lshlrev_b32 v%d, 16, v%d" % (a2, Y + j))
                k.e("v_and_b32 v%d, 0xffff0000, v%d" % (a3, Y + j))
                k.e("v_add_f32 v%d, v%d, v%d" % (a0, a0, a2))
                k.e("v_add_f32 v%d, v%d, v%d" % (a1, a1, a3))
                k.e("v_cvt_pk_bf16_f32 v%d, v%d, v%d" % (a2, a0, a1))
                k.e("v_lshlrev_b32 v%d, 16, v%d" % (a0, a2))
                k.e("v_and_b32 v%d, 0xffff0000, v%d" % (a1, a2))
                k.e("v_mul_f32 v%d, v%d, v%d" % (a0, a0, P[3]))
                k.e("v_mul_f32 v%d, v%d, v%d" % (a1, a1, P[3]))
                k.e("v_cvt_pk_bf16_f32 v%d, v%d, v%d" % (a2, a0, a1))
                k.e("v_lshlrev_b32 v%d, 16, v%d" % (a0, a2))
                k.e("v_and_b32 v%d, 0xffff0000, v%d" % (a1, a2))
                k.e("v_lshlrev_b32 v%d, 16, v%d" % (a2, Z + j))
                k.e("v_and_b32 v%d, 0xffff0000, v%d" % (a3, Z + j))
                k.e("v_mul_f32 v%d, v%d, v%d" % (a2, a2, P[2]))
                k.e("v_mul_f32 v%d, v%d, v%d" % (a3, a3, P[2]))
                k.e("v_cvt_pk_bf16_f32 v%d, v%d, v%d" % (a3, a2, a3))
                k.e("v_lshlrev_b32 v%d, 16, v%d" % (a2, a3))
                k.e("v_and_b32 v%d, 0xffff0000, v%d" % (a3, a3))
                k.e("v_add_f32 v%d, v%d, v%d" % (a0, a0, a2))
                k.e("v_add_f32 v%d, v%d, v%d" % (a1, a1, a3))
                k.e("v_cvt_pk_bf16_f32 v%d, v%d, v%d" % (X + j, a0, a1))
        else:
            k.e("s_waitcnt lgkmcnt(0)")
        sfx = ""
        if 'stnt' in DBG: sfx = " nt"
        if 'stsc1' in DBG: sfx = " sc1"
        if 'stsc01' in DBG: sfx = " sc0 sc1"
        if 'nost' not in DBG:
            k.e("buffer_store_dwordx4 %s, v%d, %s, s%d offen%s" % (vr(X, 4), t5, sr(S_SRDC, 4), S_T1, sfx))
        k.nop(1)


def emit_gelu2(k, x0, x1, t0, t1, c1, c2):
    k.e("v_pk_mul_f32 v[%d:%d], v[%d:%d], v[%d:%d]" % (t0, t0 + 1, x0, x0 + 1, x0, x0 + 1))
    k.e("v_pk_fma_f32 v[%d:%d], v[%d:%d], v[%d:%d], 1.0 op_sel_hi:[1,1,0]" % (t0, t0 + 1, t0, t0 + 1, c1, c1 + 1))
    k.e("v_pk_mul_f32 v[%d:%d], v[%d:%d], v[%d:%d]" % (t0, t0 + 1, t0, t0 + 1, x0, x0 + 1))
    k.e("v_pk_mul_f32 v[%d:%d], v[%d:%d], v[%d:%d]" % (t0, t0 + 1, t0, t0 + 1, c2, c2 + 1))
    k.e("v_exp_f32 v%d, v%d" % (t0, t0))
    k.e("v_exp_f32 v%d, v%d" % (t0 + 1, t0 + 1))
    k.nop(0)
    k.e("v_pk_add_f32 v[%d:%d], v[%d:%d], 1.0 op_sel_hi:[1,0]" % (t0, t0 + 1, t0, t0 + 1))
    k.e("v_rcp_f32 v%d, v%d" % (t0, t0))
    k.e("v_rcp_f32 v%d, v%d" % (t0 + 1, t0 + 1))
    k.nop(0)
    k.e("v_pk_mul_f32 v[%d:%d], v[%d:%d], v[%d:%d]" % (x0, x0 + 1, x0, x0 + 1, t0, t0 + 1))


def gemm_epilogue2(k, c, r, mode):
    if 'noepi' in DBG:
        return
    t0, t1, t2, t3, t4, t5, t6 = r.vt
    RCF = c.BN * 4
    TILE = c.BM * RCF
    ep = r.ep
    k.c("epilogue2 " + mode)
    k.nop(15)
    k.nop(7)
    k.e("s_and_b32 s%d, s%d, %d" % (S_T2, S_WAVE, c.WM - 1))
    k.e("s_lshr_b32 s%d, s%d, %d" % (S_T3, S_WAVE, c.WM.bit_length() - 1))
    k.e("v_and_b32 v%d, 31, v0" % t0)
    k.e("s_mul_i32 s%d, s%d, %d" % (S_T0, S_T2, c.TM * 32))
    k.e("v_add_u32 v%d, s%d, v%d" % (t0, S_T0, t0))
    k.e("v_mul_u32_u24 v%d, %d, v%d" % (t1, RCF, t0))
    k.e("v_and_b32 v%d, 7, v0" % t0)
    k.e("v_bfe_u32 v%d, v0, 5, 1" % t2)
    k.e("v_xor_b32 v%d, v%d, v%d" % (t0, t0, t2))
    k.e("s_mul_i32 s%d, s%d, %d" % (S_T0, S_T3, c.TN * 8))
    k.e("v_xor_b32 v%d, s%d, v%d" % (t0, S_T0, t0))
    k.e("v_lshl_add_u32 v%d, v%d, 4, v%d" % (t1, t0, t1))
    nset = 2 if mode == 'final' else 1
    for which in range(nset):
        for tm in range(c.TM):
            for tn in range(c.TN):
                a = r.acc[(tn, tm)] if which == 0 else r.save + (r.acc[(tn, tm)] - r.acc_base)
                for q in range(4):
                    k.e("v_xor_b32 v%d, %d, v%d" % (t0, (2 * q + 8 * tn) << 4, t1))
                    k.e("ds_write_b128 v%d, v[%d:%d] offset:%d" % (t0, a + 4 * q, a + 4 * q + 3, which * TILE + tm * 32 * RCF))
    k.e("s_waitcnt lgkmcnt(0)")
    k.e("s_barrier")
    CPR = c.BN // 8
    RPI = 64 // CPR
    NI = c.BM // RPI // c.NW
    sh = CPR.bit_length() - 1
    k.e("v_and_b32 v%d, 63, v0" % t0)
    k.e("v_lshrrev_b32 v%d, %d, v%d" % (t1, sh, t0))
    k.e("s_mul_i32 s%d, s%d, %d" % (S_T0, S_WAVE, NI * RPI))
    k.e("v_add_u32 v%d, s%d, v%d" % (t1, S_T0, t1))
    k.e("v_and_b32 v%d, %d, v%d" % (t2, CPR - 1, t0))
    k.e("v_and_b32 v%d, 7, v%d" % (t3, t1))
    k.e("v_lshlrev_b32 v%d, 1, v%d" % (t4, t2))
    k.e("v_xor_b32 v%d, v%d, v%d" % (t3, t3, t4))
    k.e("v_mul_u32_u24 v%d, %d, v%d" % (t4, RCF, t1))
    k.e("v_lshl_add_u32 v%d, v%d, 4, v%d" % (t4, t3, t4))
    k.e("v_add_u32 v%d, s%d, v%d" % (t3, S_M0, t1))
    k.e("v_mul_lo_u32 v%d, v%d, s%d" % (t5, t3, S_LDC))
    k.e("v_lshl_add_u32 v%d, v%d, 4, v%d" % (t5, t2, t5))
    k.e("s_lshl_b32 s%d, s%d, 1" % (S_T0, S_N0))
    k.e("v_add_u32 v%d, s%d, v%d" % (t5, S_T0, t5))
    k.e("v_lshlrev_b32 v%d, 2, v%d" % (t6, t3))
    k.e("s_mov_b32 s%d, 0" % S_T1)
    k.e("s_mov_b32 s%d, 0" % S_T2)
    k.e("s_mul_i32 s%d, s%d, %d" % (S_T3, S_LDC, RPI))
    k.e("s_mov_b32 s%d, %d" % (S_KT, NI))
    X = ep; X2 = ep + 4; Y = ep + 8; Z = ep + 12; Z2 = ep + 16
    T = ep + 20; G = ep + 22; C1 = ep + 24; C2 = ep + 26; U = ep + 28
    if mode == 'gelu':
        k.e("v_mov_b32 v%d, 0x3d372713" % C1); k.e("v_mov_b32 v%d, 0x3d372713" % (C1 + 1))
        k.e("v_mov_b32 v%d, 0xc0135761" % C2); k.e("v_mov_b32 v%d, 0xc0135761" % (C2 + 1))
    loop = k.lab("EPL")
    k.L(loop)
    k.e("v_xor_b32 v%d, 16, v%d" % (t0, t4))
    k.e("ds_read_b128 %s, v%d" % (vr(X, 4), t4))
    k.e("ds_read_b128 %s, v%d" % (vr(X2, 4), t0))
    if mode == 'final':
        k.e("ds_read_b128 %s, v%d offset:%d" % (vr(Z, 4), t4, TILE))
        k.e("ds_read_b128 %s, v%d offset:%d" % (vr(Z2, 4), t0, TILE))
    if mode in ('resid', 'final'):
        k.e("buffer_load_dwordx4 %s, v%d, %s, s%d offen" % (vr(Y, 4), t5, sr(S_SRDR, 4), S_T1))
    if mode == 'final':
        k.e("buffer_load_dword v%d, v%d, %s, s%d offen" % (G, t6, sr(S_SRDG, 4), S_T2))
    k.e("s_waitcnt vmcnt(0) lgkmcnt(0)")
    if mode == 'final':
        k.e("v_sub_f32 v%d, 1.0, v%d" % (G + 1, G))
        rnd_bf16(k, G + 1)
    for j in range(4):
        xa = X + 2 * j
        k.e("v_cvt_pk_bf16_f32 v%d, v%d, v%d" % (T, xa, xa + 1))
        if mode == 'store':
            k.e("v_mov_b32 v%d, v%d" % (U + j, T))
            continue
        k.e("v_lshlrev_b32 v%d, 16, v%d" % (xa, T))
        k.e("v_and_b32 v%d, 0xffff0000, v%d" % (xa + 1, T))
        if mode == 'gelu':
            emit_gelu2(k, xa, xa + 1, T, None, C1, C2)
        else:
            k.e("v_lshlrev_b32 v%d, 16, v%d" % (T, Y + j))
            k.e("v_and_b32 v%d, 0xffff0000, v%d" % (T + 1, Y + j))
            k.e("v_pk_add_f32 v[%d:%d], v[%d:%d], v[%d:%d]" % (xa, xa + 1, xa, xa + 1, T, T + 1))
            if mode == 'final':
                k.e("v_cvt_pk_bf16_f32 v%d, v%d, v%d" % (T, xa, xa + 1))
                k.e("v_lshlrev_b32 v%d, 16, v%d" % (xa, T))
                k.e("v_and_b32 v%d, 0xffff0000, v%d" % (xa + 1, T))
                k.e("v_mul_f32 v%d, v%d, v%d" % (xa, xa, G + 1))
                k.e("v_mul_f32 v%d, v%d, v%d" % (xa + 1, xa + 1, G + 1))
                k.e("v_cvt_pk_bf16_f32 v%d, v%d, v%d" % (T, xa, xa + 1))
                k.e("v_lshlrev_b32 v%d, 16, v%d" % (xa, T))
                k.e("v_and_b32 v%d, 0xffff0000, v%d" % (xa + 1, T))
                za = Z + 2 * j
                k.e("v_cvt_pk_bf16_f32 v%d, v%d, v%d" % (T, za, za + 1))
                k.e("v_lshlrev_b32 v%d, 16, v%d" % (za, T))
                k.e("v_and_b32 v%d, 0xffff0000, v%d" % (za + 1, T))
                k.e("v_mul_f32 v%d, v%d, v%d" % (za, za, G))
                k.e("v_mul_f32 v%d, v%d, v%d" % (za + 1, za + 1, G))
                k.e("v_cvt_pk_bf16_f32 v%d, v%d, v%d" % (T, za, za + 1))
                k.e("v_lshlrev_b32 v%d, 16, v%d" % (za, T))
                k.e("v_and_b32 v%d, 0xffff0000, v%d" % (za + 1, T))
                k.e("v_pk_add_f32 v[%d:%d], v[%d:%d], v[%d:%d]" % (xa, xa + 1, xa, xa + 1, za, za + 1))
        k.e("v_cvt_pk_bf16_f32 v%d, v%d, v%d" % (U + j, xa, xa + 1))
    k.e("buffer_store_dwordx4 %s, v%d, %s, s%d offen" % (vr(U, 4), t5, sr(S_SRDC, 4), S_T1))
    k.e("v_add_u32 v%d, %d, v%d" % (t4, RPI * RCF, t4))
    if RPI == 4:
        k.e("v_xor_b32 v%d, 64, v%d" % (t4, t4))
    k.e("s_add_u32 s%d, s%d, s%d" % (S_T1, S_T1, S_T3))
    k.e("s_add_u32 s%d, s%d, %d" % (S_T2, S_T2, RPI * 4))
    k.e("s_sub_u32 s%d, s%d, 1" % (S_KT, S_KT))
    k.e("s_cmp_lg_u32 s%d, 0" % S_KT)
    k.e("s_cbranch_scc1 %s" % loop)


def stamp(k, idx):
    if 'stamp' not in DBG:
        return
    k.e("s_memtime s[%d:%d]" % (60 + 2 * idx, 61 + 2 * idx))


def stamp_flush(k, n):
    if 'stamp' not in DBG:
        return
    skip = k.lab("SKIPST")
    k.e("s_waitcnt lgkmcnt(0)")
    k.e("s_cmp_lg_u32 s2, 5")
    k.e("s_cbranch_scc1 %s" % skip)
    k.e("s_cmp_lg_u32 s%d, 0" % S_WAVE)
    k.e("s_cbranch_scc1 %s" % skip)
    k.e("s_load_dwordx2 s[56:57], s[0:1], 88")
    k.e("s_waitcnt lgkmcnt(0)")
    k.e("s_mov_b32 s58, 256")
    k.e("s_mov_b32 s59, 0x00020000")
    for i in range(n):
        k.e("v_mov_b32 v1, s%d" % (60 + 2 * i))
        k.e("v_mov_b32 v2, %d" % (4 * i))
        k.e("buffer_store_dword v1, v2, s[56:59], 0 offen")
    k.L(skip)


def rstamp_begin(k):
    if 'rstamp' in DBG:
        k.e("s_memrealtime s[70:71]")


def rstamp_end(k):
    if 'rstamp' not in DBG:
        return
    skip = k.lab("SKIPRS")
    k.e("s_memrealtime s[72:73]")
    k.e("s_waitcnt lgkmcnt(0)")
    k.e("s_cmp_lg_u32 s%d, 0" % S_WAVE)
    k.e("s_cbranch_scc1 %s" % skip)
    k.e("s_load_dwordx2 s[56:57], s[0:1], 96")
    k.e("s_waitcnt lgkmcnt(0)")
    k.e("s_add_u32 s56, s56, 0xc800000")
    k.e("s_addc_u32 s57, s57, 0")
    k.e("s_mov_b32 s58, 65536")
    k.e("s_mov_b32 s59, 0x00020000")
    k.e("s_lshl_b32 s74, s2, 3")
    k.e("v_mov_b32 v2, s70")
    k.e("v_mov_b32 v3, s72")
    k.e("v_mov_b32 v4, s74")
    k.e("buffer_store_dwordx2 v[2:3], v4, s[56:59], 0 offen")
    k.L(skip)


def gemm_head(k, nwg):
    end = k.lab("END")
    for d in DBG:
        if d.startswith('lim'):
            nwg = int(d[3:])
    k.e("s_cmp_ge_u32 s2, %d" % nwg)
    k.e("s_cbranch_scc1 %s" % end)
    k.e("v_lshrrev_b32 v1, 6, v0")
    k.nop(0)
    k.e("v_readfirstlane_b32 s%d, v1" % S_WAVE)
    return end


def gen_gemm1():
    c = GemmCfg(4, 2, 2, 2)
    r = GemmRegsPP(c)
    k = K("gemm1_kernel")
    end = gemm_head(k, 256)
    stamp(k, 0)
    rstamp_begin(k)
    load_ptr(k, 44, "A_x"); load_ptr(k, 46, "wqkv"); load_ptr(k, 48, "ws"); load_ptr(k, 50, "w1")
    k.e("s_waitcnt lgkmcnt(0)")
    pb = k.lab("PB"); go = k.lab("GO")
    k.e("s_and_b32 s%d, s2, 1" % S_M0)
    k.e("s_lshl_b32 s%d, s%d, 2" % (S_M0, S_M0))
    k.e("s_bfe_u32 s%d, s2, 0x20003" % S_T0)
    k.e("s_add_u32 s%d, s%d, s%d" % (S_M0, S_M0, S_T0))
    k.e("s_lshl_b32 s%d, s%d, 8" % (S_M0, S_M0))
    k.e("s_bfe_u32 s%d, s2, 0x20001" % S_T1)
    k.e("s_lshl_b32 s%d, s%d, 3" % (S_T1, S_T1))
    k.e("s_lshr_b32 s%d, s2, 5" % S_T0)
    k.e("s_add_u32 s%d, s%d, s%d" % (S_T1, S_T1, S_T0))
    k.e("s_cmp_ge_u32 s%d, 24" % S_T1)
    k.e("s_cbranch_scc1 %s" % pb)
    make_srd(k, S_SRDX, 44, 0, SZ_ACT)
    make_srd(k, S_SRDW, 46, 0, 1024 * 3072 * 2)
    make_srd(k, S_SRDC, 48, WS_QKV, SZ_QKV)
    k.e("s_mov_b32 s%d, 2048" % S_LDX); k.e("s_mov_b32 s%d, 6144" % S_LDW); k.e("s_mov_b32 s%d, 6144" % S_LDC)
    k.e("s_mov_b32 s%d, 0" % S_FLAG)
    k.e("s_branch %s" % go)
    k.L(pb)
    make_srd(k, S_SRDX, 48, WS_LNX, SZ_ACT)
    make_srd(k, S_SRDW, 50, 0, 1024 * 1024 * 2)
    make_srd(k, S_SRDC, 48, WS_H, SZ_ACT)
    k.e("s_mov_b32 s%d, 2048" % S_LDX); k.e("s_mov_b32 s%d, 2048" % S_LDW); k.e("s_mov_b32 s%d, 2048" % S_LDC)
    k.e("s_mov_b32 s%d, 1" % S_FLAG)
    k.e("s_sub_u32 s%d, s%d, 24" % (S_T1, S_T1))
    k.L(go)
    k.e("s_mov_b32 s%d, 16" % S_NK)
    k.e("s_lshl_b32 s%d, s%d, 7" % (S_N0, S_T1))
    gemm_lane_setup(k, c, r)
    k.e("s_mul_i32 s%d, s%d, s%d" % (S_KX, S_M0, S_LDX))
    k.e("s_lshl_b32 s%d, s%d, 1" % (S_KW, S_N0))
    stamp(k, 1)
    gemm_kloop_pp(k, c, r)
    stamp(k, 2)
    eg = k.lab("EG")
    k.e("s_cmp_eq_u32 s%d, 1" % S_FLAG)
    k.e("s_cbranch_scc1 %s" % eg)
    gemm_epilogue2(k, c, r, 'store')
    stamp(k, 3)
    k.e('s_waitcnt vmcnt(0)')
    stamp(k, 4)
    stamp_flush(k, 5)
    rstamp_end(k)
    k.e("s_endpgm")
    k.L(eg)
    gemm_epilogue2(k, c, r, 'gelu')
    k.L(end)
    k.e("s_endpgm")
    return k, r.end, c.LDS, 512


def gen_gemm2():
    c = GemmCfg(2, 2, 2, 1)
    r = GemmRegs(c, shifted=True)
    r.ep = r.end
    k = K("gemm2_kernel")
    end = gemm_head(k, 256)
    load_ptr(k, 44, "A_x"); load_ptr(k, 46, "w2"); load_ptr(k, 48, "ws")
    k.e("s_waitcnt lgkmcnt(0)")
    make_srd(k, S_SRDX, 48, WS_H, SZ_ACT)
    make_srd(k, S_SRDW, 46, 0, 1024 * 1024 * 2)
    make_srd(k, S_SRDC, 48, WS_X1, SZ_ACT)
    make_srd(k, S_SRDR, 44, 0, SZ_ACT)
    k.e("s_mov_b32 s%d, 2048" % S_LDX); k.e("s_mov_b32 s%d, 2048" % S_LDW); k.e("s_mov_b32 s%d, 2048" % S_LDC)
    k.e("s_mov_b32 s%d, 16" % S_NK)
    k.e("s_and_b32 s%d, s2, 15" % S_M0)
    k.e("s_lshl_b32 s%d, s%d, 7" % (S_M0, S_M0))
    k.e("s_lshr_b32 s%d, s2, 4" % S_N0)
    k.e("s_lshl_b32 s%d, s%d, 6" % (S_N0, S_N0))
    gemm_lane_setup(k, c, r)
    k.e("s_mov_b32 s%d, 0" % S_KX)
    k.e("s_lshl_b32 s%d, s%d, 1" % (S_KW, S_N0))
    gemm_kloop(k, c, r, shifted=True)
    k.e('s_barrier')
    gemm_epilogue2(k, c, r, 'resid')
    k.L(end)
    k.e("s_endpgm")
    return k, r.ep + 32, c.LDS, 256


def gen_gemm4():
    c = GemmCfg(4, 2, 2, 2)
    r = GemmRegsPP(c)
    k = K("gemm4_kernel")
    end = gemm_head(k, 224)
    load_ptr(k, 46, "w3"); load_ptr(k, 48, "ws")
    k.e("s_waitcnt lgkmcnt(0)")
    make_srd(k, S_SRDX, 48, WS_LNX1, SZ_ACT)
    make_srd(k, S_SRDW, 46, 0, 1024 * 3584 * 2)
    make_srd(k, S_SRDC, 48, WS_H3, SZ_H3)
    k.e("s_mov_b32 s%d, 2048" % S_LDX); k.e("s_mov_b32 s%d, 7168" % S_LDW); k.e("s_mov_b32 s%d, 7168" % S_LDC)
    k.e("s_mov_b32 s%d, 16" % S_NK)
    k.e("s_and_b32 s%d, s2, 7" % S_M0)
    k.e("s_lshl_b32 s%d, s%d, 8" % (S_M0, S_M0))
    k.e("s_lshr_b32 s%d, s2, 3" % S_N0)
    k.e("s_lshl_b32 s%d, s%d, 7" % (S_N0, S_N0))
    gemm_lane_setup(k, c, r)
    k.e("s_mul_i32 s%d, s%d, s%d" % (S_KX, S_M0, S_LDX))
    k.e("s_lshl_b32 s%d, s%d, 1" % (S_KW, S_N0))
    gemm_kloop_pp(k, c, r)
    gemm_epilogue2(k, c, r, 'gelu')
    k.L(end)
    k.e("s_endpgm")
    return k, r.end, c.LDS, 512


def gen_gemm5():
    c = GemmCfg(2, 2, 2, 1)
    r = GemmRegs(c)
    r.save = r.end
    r.ep = r.save + r.nacc
    k = K("gemm5_kernel")
    end = gemm_head(k, 256)
    load_ptr(k, 44, "wo"); load_ptr(k, 46, "w4"); load_ptr(k, 48, "ws"); load_ptr(k, 50, "out")
    k.e("s_waitcnt lgkmcnt(0)")
    make_srd(k, S_SRDX, 48, WS_O, SZ_ACT)
    make_srd(k, S_SRDW, 44, 0, 1024 * 1024 * 2)
    make_srd(k, S_SRDC, 50, 0, SZ_ACT)
    make_srd(k, S_SRDR, 48, WS_X1, SZ_ACT)
    make_srd(k, S_SRDG, 48, WS_G, 2048 * 4)
    k.e("s_mov_b32 s%d, 2048" % S_LDX); k.e("s_mov_b32 s%d, 2048" % S_LDW); k.e("s_mov_b32 s%d, 2048" % S_LDC)
    k.e("s_mov_b32 s%d, 16" % S_NK)
    k.e("s_and_b32 s%d, s2, 15" % S_M0)
    k.e("s_lshl_b32 s%d, s%d, 7" % (S_M0, S_M0))
    k.e("s_lshr_b32 s%d, s2, 4" % S_N0)
    k.e("s_lshl_b32 s%d, s%d, 6" % (S_N0, S_N0))
    gemm_lane_setup(k, c, r)
    k.e("s_mul_i32 s%d, s%d, s%d" % (S_KX, S_M0, S_LDX))
    k.e("s_lshl_b32 s%d, s%d, 1" % (S_KW, S_N0))
    gemm_kloop(k, c, r)
    k.nop(15); k.nop(7)
    for i in range(r.nacc):
        k.e("v_mov_b32 v%d, v%d" % (r.save + i, r.acc_base + i))
    k.e("s_barrier")
    make_srd(k, S_SRDX, 48, WS_H3, SZ_H3)
    make_srd(k, S_SRDW, 46, 0, 3584 * 1024 * 2)
    k.e("s_mov_b32 s%d, 7168" % S_LDX)
    k.e("s_mov_b32 s%d, 56" % S_NK)
    gemm_lane_setup(k, c, r)
    k.e("s_mul_i32 s%d, s%d, s%d" % (S_KX, S_M0, S_LDX))
    k.e("s_lshl_b32 s%d, s%d, 1" % (S_KW, S_N0))
    gemm_kloop(k, c, r)
    k.e('s_barrier')
    gemm_epilogue2(k, c, r, 'final')
    k.L(end)
    k.e("s_endpgm")
    return k, r.ep + 32, c.LDS, 256


def emit_softmax_pm(k, d, ep_, em_, tmp, vperm):
    mx, mn, t0, t1, sp, sm = tmp, tmp + 1, tmp + 2, tmp + 3, tmp + 4, tmp + 5
    E = tmp + 6
    for i in range(8):
        k.e("v_cvt_pk_bf16_f32 v%d, v%d, v%d" % (t0, d + 2 * i, d + 2 * i + 1))
        k.e("v_lshlrev_b32 v%d, 16, v%d" % (d + 2 * i, t0))
        k.e("v_and_b32 v%d, 0xffff0000, v%d" % (d + 2 * i + 1, t0))
    k.e("v_max_f32 v%d, v%d, v%d" % (mx, d, d + 1))
    k.e("v_min_f32 v%d, v%d, v%d" % (mn, d, d + 1))
    for i in range(1, 8):
        k.e("v_max3_f32 v%d, v%d, v%d, v%d" % (mx, mx, d + 2 * i, d + 2 * i + 1))
        k.e("v_min3_f32 v%d, v%d, v%d, v%d" % (mn, mn, d + 2 * i, d + 2 * i + 1))
    k.e("ds_bpermute_b32 v%d, v%d, v%d" % (t0, vperm, mx))
    k.e("ds_bpermute_b32 v%d, v%d, v%d" % (t1, vperm, mn))
    k.e("s_waitcnt lgkmcnt(0)")
    k.e("v_max_f32 v%d, v%d, v%d" % (mx, mx, t0))
    k.e("v_min_f32 v%d, v%d, v%d" % (mn, mn, t1))
    k.e("v_mul_f32 v%d, 0x%x, v%d" % (mx, LOG2E ^ 0x80000000, mx))
    k.e("v_mul_f32 v%d, 0x%x, v%d" % (mn, LOG2E, mn))
    k.e("v_mov_b32 v%d, 0x%x" % (t0, LOG2E))
    for i in range(16):
        k.e("v_fma_f32 v%d, v%d, v%d, v%d" % (E + i, d + i, t0, mx))
        k.e("v_fma_f32 v%d, -v%d, v%d, v%d" % (E + 16 + i, d + i, t0, mn))
        k.e("v_exp_f32 v%d, v%d" % (E + i, E + i))
        k.e("v_exp_f32 v%d, v%d" % (E + 16 + i, E + 16 + i))
    k.nop(0)
    k.e("v_add_f32 v%d, v%d, v%d" % (sp, E, E + 1))
    k.e("v_add_f32 v%d, v%d, v%d" % (sm, E + 16, E + 17))
    for i in range(2, 16):
        k.e("v_add_f32 v%d, v%d, v%d" % (sp, sp, E + i))
        k.e("v_add_f32 v%d, v%d, v%d" % (sm, sm, E + 16 + i))
    k.e("ds_bpermute_b32 v%d, v%d, v%d" % (t0, vperm, sp))
    k.e("ds_bpermute_b32 v%d, v%d, v%d" % (t1, vperm, sm))
    k.e("s_waitcnt lgkmcnt(0)")
    k.e("v_add_f32 v%d, v%d, v%d" % (sp, sp, t0))
    k.e("v_add_f32 v%d, v%d, v%d" % (sm, sm, t1))
    k.e("v_rcp_f32 v%d, v%d" % (sp, sp))
    k.e("v_rcp_f32 v%d, v%d" % (sm, sm))
    k.nop(0)
    for i in range(8):
        k.e("v_mul_f32 v%d, v%d, v%d" % (E + 2 * i, E + 2 * i, sp))
        k.e("v_mul_f32 v%d, v%d, v%d" % (E + 2 * i + 1, E + 2 * i + 1, sp))
        k.e("v_cvt_pk_bf16_f32 v%d, v%d, v%d" % (ep_ + i, E + 2 * i, E + 2 * i + 1))
        k.e("v_mul_f32 v%d, v%d, v%d" % (E + 16 + 2 * i, E + 16 + 2 * i, sm))
        k.e("v_mul_f32 v%d, v%d, v%d" % (E + 16 + 2 * i + 1, E + 16 + 2 * i + 1, sm))
        k.e("v_cvt_pk_bf16_f32 v%d, v%d, v%d" % (em_ + i, E + 16 + 2 * i, E + 16 + 2 * i + 1))


def emit_wphi_load(k, srd, s_hd, wp, vlane31, vh, t0, tmp=144):
    k.e("v_lshlrev_b32 v%d, 9, v%d" % (t0, vh))
    k.e("v_lshl_add_u32 v%d, v%d, 1, v%d" % (t0, vlane31, t0))
    k.e("s_lshl_b32 s40, s%d, 11" % s_hd)
    for t in range(2):
        for e in range(8):
            k.e("buffer_load_ushort v%d, v%d, %s, s40 offen offset:%d" % (tmp + 8 * t + e, t0, sr(srd, 4), (16 * t + e) * 64))
    k.e("s_waitcnt vmcnt(0)")
    for t in range(2):
        for e in range(0, 8, 2):
            k.e("v_lshl_or_b32 v%d, v%d, 16, v%d" % (wp + 4 * t + e // 2, tmp + 8 * t + e + 1, tmp + 8 * t + e))


def gen_kv():
    k = K("kv_kernel")
    end = k.lab("END")
    k.e("s_cmp_ge_u32 s2, 256")
    k.e("s_cbranch_scc1 %s" % end)
    load_ptr(k, 4, "ws"); load_ptr(k, 6, "w_phi")
    k.e("v_lshrrev_b32 v1, 6, v0")
    k.nop(0)
    k.e("v_readfirstlane_b32 s12, v1")
    k.e("s_waitcnt lgkmcnt(0)")
    make_srd(k, 16, 4, WS_QKV, SZ_QKV)
    make_srd(k, 20, 6, 0, 32 * 32 * 32 * 2)
    make_srd(k, 24, 4, WS_KVP, 256 * KVP_STRIDE)
    k.e("s_and_b32 s13, s2, 31")
    k.e("s_lshr_b32 s14, s2, 5")
    k.e("v_and_b32 v1, 63, v0")
    k.e("v_and_b32 v2, 31, v0")
    k.e("v_bfe_u32 v3, v0, 5, 1")
    k.e("v_xor_b32 v4, 32, v1")
    k.e("v_lshlrev_b32 v4, 2, v4")
    WP = 8
    emit_wphi_load(k, 20, 13, WP, 2, 3, 5)
    k.e("s_mul_i32 s15, s12, 6144")
    k.e("v_lshlrev_b32 v5, 8, v3")
    k.e("v_lshl_add_u32 v5, v2, 1, v5")
    k.e("v_add_u32 v5, s15, v5")
    k.e("v_lshlrev_b32 v6, 6, v2")
    k.e("v_lshl_add_u32 v6, v3, 4, v6")
    k.e("v_add_u32 v6, s15, v6")
    k.e("v_bfe_u32 v7, v0, 2, 2")
    k.e("v_lshl_add_u32 v7, v3, 3, v7")
    k.e("v_lshlrev_b32 v7, 6, v7")
    k.e("v_bfe_u32 v16, v0, 4, 1")
    k.e("v_lshl_add_u32 v7, v16, 5, v7")
    k.e("v_and_b32 v16, 3, v0")
    k.e("v_lshl_add_u32 v7, v16, 3, v7")
    k.e("v_add_u32 v7, s15, v7")
    k.e("v_add_u32 v7, 4096, v7")
    k.e("v_lshlrev_b32 v17, 4, v1")
    k.e("v_add_u32 v17, s15, v17")
    for i in range(4):
        k.e("v_mov_b32 v%d, 0x3f803f80" % (20 + i))
    D2 = [64, 80]
    D3 = [96, 112]
    for i in range(64):
        k.e("v_mov_b32 v%d, 0" % (64 + i))
    D1 = 128
    KF = 24
    VT = 32
    PP, PM = 40, 48
    AF = 56
    BF = 60
    TMP = 144
    for tile in range(2):
        k.e("s_lshl_b32 s30, s14, 8")
        k.e("s_lshl_b32 s31, s12, 6")
        k.e("s_add_u32 s30, s30, s31")
        k.e("s_add_u32 s30, s30, %d" % (tile * 32))
        k.e("s_mul_i32 s31, s30, 6144")
        k.e("s_lshl_b32 s32, s13, 6")
        k.e("s_add_u32 s31, s31, s32")
        k.e("v_mul_u32_u24 v18, 6144, v2")
        k.e("v_lshl_add_u32 v18, v3, 4, v18")
        k.e("s_add_u32 s33, s31, 2048")
        k.e("buffer_load_dwordx4 v[%d:%d], v18, s[16:19], s33 offen" % (KF, KF + 3))
        k.e("buffer_load_dwordx4 v[%d:%d], v18, s[16:19], s33 offen offset:32" % (KF + 4, KF + 7))
        k.e("v_lshrrev_b32 v19, 2, v1")
        k.e("v_mul_u32_u24 v19, 6144, v19")
        k.e("v_and_b32 v16, 3, v1")
        k.e("v_lshl_add_u32 v19, v16, 4, v19")
        k.e("s_add_u32 s33, s31, 4096")
        k.e("buffer_load_dwordx4 v[%d:%d], v19, s[16:19], s33 offen" % (VT, VT + 3))
        k.e("s_add_u32 s33, s33, %d" % (16 * 6144))
        k.e("buffer_load_dwordx4 v[%d:%d], v19, s[16:19], s33 offen" % (VT + 4, VT + 7))
        for i in range(16):
            k.e("v_mov_b32 v%d, 0" % (D1 + i))
        k.e("s_waitcnt vmcnt(0)")
        k.e("ds_write_b128 v17, v[%d:%d] offset:4096" % (VT, VT + 3))
        k.e("ds_write_b128 v17, v[%d:%d] offset:5120" % (VT + 4, VT + 7))
        for t in range(2):
            k.e("v_mfma_f32_32x32x16_bf16 %s, %s, %s, %s" % (vr(D1, 16), vr(WP + 4 * t, 4), vr(KF + 4 * t, 4), vr(D1, 16)))
        k.nop(15); k.nop(3)
        emit_softmax_pm(k, D1, PP, PM, TMP, 4)
        for half, P in ((0, PP), (1, PM)):
            for i in range(8):
                r0 = 2 * i
                f = 8 * (r0 >> 2) + (r0 & 3)
                k.e("ds_write_b16 v5, v%d offset:%d" % (P + i, half * 2048 + f * 64))
                k.e("ds_write_b16_d16_hi v5, v%d offset:%d" % (P + i, half * 2048 + (f + 1) * 64))
        k.e("s_waitcnt lgkmcnt(0)")
        for t in range(2):
            k.e("ds_read_b64_tr_b16 %s, v7 offset:%d" % (vr(BF, 2), (16 * t) * 64))
            k.e("ds_read_b64_tr_b16 %s, v7 offset:%d" % (vr(BF + 2, 2), (16 * t + 4) * 64))
            for ft in range(2):
                k.e("ds_read_b128 %s, v6 offset:%d" % (vr(AF, 4), ft * 2048 + t * 32))
                k.e("s_waitcnt lgkmcnt(0)")
                k.e("v_mfma_f32_32x32x16_bf16 %s, %s, %s, %s" % (vr(D2[ft], 16), vr(AF, 4), vr(BF, 4), vr(D2[ft], 16)))
                k.e("v_mfma_f32_32x32x16_bf16 %s, %s, %s, %s" % (vr(D3[ft], 16), vr(AF, 4), vr(20, 4), vr(D3[ft], 16)))
                k.nop(7)
        k.nop(7)
    k.nop(15); k.nop(3)
    k.e("s_mul_i32 s15, s12, 8448")
    k.e("v_lshlrev_b32 v5, 9, v3")
    k.e("v_lshl_add_u32 v5, v2, 2, v5")
    k.e("v_add_u32 v5, s15, v5")
    k.e("v_add_u32 v5, 24576, v5")
    for ft in range(2):
        for r_ in range(16):
            f = 32 * ft + 8 * (r_ >> 2) + (r_ & 3)
            k.e("ds_write_b32 v5, v%d offset:%d" % (D2[ft] + r_, f * 128))
    k.e("v_lshlrev_b32 v6, 4, v3")
    k.e("v_add_u32 v6, s15, v6")
    k.e("v_add_u32 v6, 24576, v6")
    for ft in range(2):
        for r_ in range(16):
            f = 32 * ft + 8 * (r_ >> 2) + (r_ & 3)
            k.e("ds_write_b32 v6, v%d offset:%d" % (D3[ft] + r_, 8192 + f * 4))
    k.e("s_waitcnt lgkmcnt(0)")
    k.e("s_barrier")
    k.e("s_lshl_b32 s30, s13, 3")
    k.e("s_add_u32 s30, s30, s14")
    k.e("s_mul_i32 s30, s30, %d" % KVP_STRIDE)
    k.e("v_lshlrev_b32 v5, 2, v0")
    for j in range(9):
        if j == 8:
            k.e("v_cmp_gt_u32 vcc, 64, v0")
            k.e("s_and_saveexec_b64 s[42:43], vcc")
        for w in range(4):
            k.e("ds_read_b32 v%d, v5 offset:%d" % (8 + w, 24576 + w * 8448 + j * 1024))
        k.e("s_waitcnt lgkmcnt(0)")
        k.e("v_add_f32 v8, v8, v9")
        k.e("v_add_f32 v10, v10, v11")
        k.e("v_add_f32 v8, v8, v10")
        k.e("s_add_u32 s31, s30, %d" % (j * 1024))
        k.e("buffer_store_dword v8, v5, s[24:27], s31 offen")
    k.L(end)
    k.e("s_endpgm")
    return k, 184, 24576 + 4 * 8448, 256


def gen_attn():
    k = K("attn_kernel")
    end = k.lab("END")
    k.e("s_cmp_ge_u32 s2, 256")
    k.e("s_cbranch_scc1 %s" % end)
    load_ptr(k, 4, "ws"); load_ptr(k, 6, "w_phi")
    k.e("v_lshrrev_b32 v1, 6, v0")
    k.nop(0)
    k.e("v_readfirstlane_b32 s12, v1")
    k.e("s_waitcnt lgkmcnt(0)")
    make_srd(k, 16, 4, WS_QKV, SZ_QKV)
    make_srd(k, 20, 6, 0, 32 * 32 * 32 * 2)
    make_srd(k, 24, 4, WS_KVP, 256 * KVP_STRIDE)
    make_srd(k, 36, 4, WS_O, SZ_ACT)
    k.e("s_and_b32 s13, s2, 31")
    k.e("s_lshr_b32 s14, s2, 5")
    k.e("v_and_b32 v1, 63, v0")
    k.e("v_and_b32 v2, 31, v0")
    k.e("v_bfe_u32 v3, v0, 5, 1")
    k.e("v_xor_b32 v4, 32, v1")
    k.e("v_lshlrev_b32 v4, 2, v4")
    WP = 8
    emit_wphi_load(k, 20, 13, WP, 2, 3, 5)
    k.e("s_mul_i32 s30, s13, %d" % (8 * KVP_STRIDE))
    k.e("v_lshlrev_b32 v5, 2, v0")
    k.e("v_lshlrev_b32 v6, 7, v2")
    k.e("v_lshrrev_b32 v7, 5, v0")
    k.e("v_lshl_add_u32 v6, v7, 1, v6")
    for j in range(9):
        if j == 8:
            k.e("v_cmp_gt_u32 vcc, 64, v0")
            k.e("s_and_saveexec_b64 s[42:43], vcc")
            k.e("v_lshlrev_b32 v6, 1, v0")
            k.e("v_add_u32 v6, 4096, v6")
        for cch in range(8):
            k.e("s_add_u32 s31, s30, %d" % (cch * KVP_STRIDE + j * 1024))
            k.e("buffer_load_dword v%d, v5, s[24:27], s31 offen" % (16 + cch))
        k.e("s_waitcnt vmcnt(0)")
        for cch in range(1, 8):
            k.e("v_add_f32 v16, v16, v%d" % (16 + cch))
        k.e("v_cvt_pk_bf16_f32 v16, v16, v16")
        k.e("ds_write_b16 v6, v16 offset:%d" % (16 * j if j < 8 else 0))
    k.e("s_mov_b64 exec, -1")
    k.e("s_waitcnt lgkmcnt(0)")
    k.e("s_barrier")
    k.e("v_lshlrev_b32 v5, 7, v2")
    k.e("v_lshl_add_u32 v5, v3, 3, v5")
    k.e("v_lshlrev_b32 v6, 3, v3")
    k.e("v_add_u32 v6, 4096, v6")
    QF = 24
    PP, PM = 40, 48
    AF, ZF = 56, 60
    DN, DD = 64, 80
    D1 = 128
    TMP = 144
    for tile in range(2):
        k.e("s_lshl_b32 s30, s14, 8")
        k.e("s_lshl_b32 s31, s12, 6")
        k.e("s_add_u32 s30, s30, s31")
        k.e("s_add_u32 s30, s30, %d" % (tile * 32))
        k.e("s_mul_i32 s31, s30, 6144")
        k.e("s_lshl_b32 s32, s13, 6")
        k.e("s_add_u32 s31, s31, s32")
        k.e("v_mul_u32_u24 v18, 6144, v2")
        k.e("v_lshl_add_u32 v18, v3, 4, v18")
        k.e("buffer_load_dwordx4 v[%d:%d], v18, s[16:19], s31 offen" % (QF, QF + 3))
        k.e("buffer_load_dwordx4 v[%d:%d], v18, s[16:19], s31 offen offset:32" % (QF + 4, QF + 7))
        for i in range(16):
            k.e("v_mov_b32 v%d, 0" % (D1 + i))
        for i in range(32):
            k.e("v_mov_b32 v%d, 0" % (DN + i))
        k.e("s_waitcnt vmcnt(0)")
        for t in range(2):
            k.e("v_mfma_f32_32x32x16_bf16 %s, %s, %s, %s" % (vr(D1, 16), vr(WP + 4 * t, 4), vr(QF + 4 * t, 4), vr(D1, 16)))
        k.nop(15); k.nop(3)
        emit_softmax_pm(k, D1, PP, PM, TMP, 4)
        for tt in range(4):
            B = (PP if tt < 2 else PM) + 4 * (tt & 1)
            k.e("ds_read_b64 %s, v5 offset:%d" % (vr(AF, 2), tt * 32))
            k.e("ds_read_b64 %s, v5 offset:%d" % (vr(AF + 2, 2), tt * 32 + 16))
            k.e("ds_read_b64 %s, v6 offset:%d" % (vr(ZF, 2), tt * 32))
            k.e("ds_read_b64 %s, v6 offset:%d" % (vr(ZF + 2, 2), tt * 32 + 16))
            k.e("s_waitcnt lgkmcnt(0)")
            k.e("v_mfma_f32_32x32x16_bf16 %s, %s, %s, %s" % (vr(DN, 16), vr(AF, 4), vr(B, 4), vr(DN, 16)))
            k.e("v_mfma_f32_32x32x16_bf16 %s, %s, %s, %s" % (vr(DD, 16), vr(ZF, 4), vr(B, 4), vr(DD, 16)))
            k.nop(7)
        k.nop(15); k.nop(3)
        rnd_bf16(k, DD)
        k.e("v_add_f32 v%d, 0x358637bd, v%d" % (DD, DD))
        rnd_bf16(k, DD)
        k.e("v_rcp_f32 v%d, v%d" % (DD + 1, DD))
        k.nop(0)
        k.e("v_lshlrev_b32 v18, 11, v2")
        k.e("v_lshl_add_u32 v18, v3, 3, v18")
        k.e("s_lshl_b32 s31, s30, 11")
        k.e("s_add_u32 s31, s31, s32")
        for q in range(4):
            for i in range(4):
                x = DN + 4 * q + i
                rnd_bf16(k, x)
                k.e("v_mul_f32 v16, v%d, v%d" % (x, DD + 1))
                k.e("v_fma_f32 v17, -v16, v%d, v%d" % (DD, x))
                k.e("v_fma_f32 v%d, v17, v%d, v16" % (x, DD + 1))
            k.e("v_cvt_pk_bf16_f32 v16, v%d, v%d" % (DN + 4 * q, DN + 4 * q + 1))
            k.e("v_cvt_pk_bf16_f32 v17, v%d, v%d" % (DN + 4 * q + 2, DN + 4 * q + 3))
            k.e("buffer_store_dwordx2 v[16:17], v18, s[36:39], s31 offen offset:%d" % (q * 16))
            k.nop(1)
    k.L(end)
    k.e("s_endpgm")
    return k, 184, 8192, 256


def merge(name, g1, n1, g2):
    r1 = g1(); r2 = g2()
    k = K(name)
    l2 = k.lab("BODY2")
    k.e("s_cmp_ge_u32 s2, %d" % n1)
    k.e("s_cbranch_scc1 %s" % l2)
    k.lines += r1[0].lines
    k.L(l2)
    k.e("s_sub_u32 s2, s2, %d" % n1)
    k.lines += r2[0].lines
    lds = max(r1[2] if len(r1) > 2 else 0, r2[2] if len(r2) > 2 else 0)
    return k, max(r1[1], r2[1]), lds, 256


HEADER = open("gated_mix__linear_kernel_hedgehog__mixer_s_mlp__prompt.s.ref").read().split("; Override launch")[0]


def main(out):
    kernels = []
    launches = []

    def add(gen, grid, block=None, lds=None):
        res = gen()
        k, v = res[0], res[1]
        l = res[2] if len(res) > 2 else 0
        b = res[3] if len(res) > 3 else 256
        kernels.append((k, v))
        launches.append("; @launch kernel=%s grid=(%d,1,1) block=(%d,1,1) lds=%d" % (k.name, grid, b, l))

    add(gen_prep, 1024)
    add(gen_gemm1, 256)
    add(lambda: merge("g2kv_kernel", gen_gemm2, 256, gen_kv), 512)
    add(lambda: merge("atln_kernel", gen_attn, 256, gen_ln1), 768)
    add(gen_gemm4, 224)
    add(gen_gemm5, 256)
    txt = [HEADER.rstrip("\n")] + launches + ['.amdgcn_target "amdgcn-amd-amdhsa--gfx950"', ".text"]
    for k, v in kernels:
        txt += k.text(v)
    txt += ['.section .rodata,"a"', ".p2align 6"]
    for k, v in kernels:
        txt += desc(k.name, v)
        txt += [".p2align 6"]
    open(out, "w").write("\n".join(txt) + "\n")


if __name__ == "__main__":
    main(sys.argv[1] if len(sys.argv) > 1 else "gated_mix__linear_kernel_hedgehog__mixer_s_mlp__prompt.s")
```

```python
import sys, re

import os
DBG = set(os.environ.get('GENDBG', '').split(','))
MB = 1 << 20
WS_LNX = 0
WS_QKV = 4 * MB
WS_H = 16 * MB
WS_X1 = 20 * MB
WS_LNX1 = 24 * MB
WS_H3 = 28 * MB
WS_O = 44 * MB
WS_KVP = 48 * MB
WS_G = 52 * MB
WS_FLAG = 53 * MB
WS_PART = 56 * MB

KA = dict(A_x=0, wqkv=8, w_phi=16, wo=24, B_x=32, w1=40, w2=48, w3=56, w4=64, gate_w=72, out=80, dbg=88, ws=96)
SZ_ACT = 2048 * 1024 * 2
SZ_QKV = 2048 * 3072 * 2
SZ_H3 = 2048 * 3584 * 2
KVP_STRIDE = (64 * 32 + 64) * 4


class K:
    def __init__(self, name):
        self.name = name
        self.lines = []
        self.nlab = 0
        self.max_v = 0
        self.max_s = 0

    def e(self, s):
        if s.startswith("buffer_"):
            m = re.search(r"offset:(\d+)", s)
            assert not m or int(m.group(1)) < 4096, s
        if s.startswith("ds_"):
            m = re.search(r"offset:(\d+)", s)
            assert not m or int(m.group(1)) < 65536, s
        self.lines.append("    " + s)

    def c(self, s):
        self.lines.append("    ; " + s)

    def lab(self, base="L"):
        self.nlab += 1
        return "%s_%s_%d" % (base, self.name, self.nlab)

    def L(self, l):
        self.lines.append(l + ":")

    def nop(self, n=0):
        self.e("s_nop %d" % n)

    def text(self, vgprs, sgprs=102, lds=0):
        v = (vgprs + 7) // 8 * 8
        acc = (vgprs + 3) // 4 * 4
        hdr = [
            ".globl %s" % self.name,
            ".p2align 8",
            ".type %s,@function" % self.name,
            "%s:" % self.name,
        ]
        return hdr + self.lines


def desc(name, vgprs, sgprs=104):
    v = (vgprs + 7) // 8 * 8
    return [
        ".amdhsa_kernel %s" % name,
        "  .amdhsa_next_free_vgpr %d" % v,
        "  .amdhsa_next_free_sgpr %d" % min(sgprs, 102),
        "  .amdhsa_accum_offset %d" % v,
        "  .amdhsa_group_segment_fixed_size 0",
        "  .amdhsa_kernarg_size 104",
        "  .amdhsa_user_sgpr_count 2",
        "  .amdhsa_user_sgpr_kernarg_segment_ptr 1",
        "  .amdhsa_system_sgpr_workgroup_id_x 1",
        ".end_amdhsa_kernel",
    ]


def vr(a, n=1):
    return "v%d" % a if n == 1 else "v[%d:%d]" % (a, a + n - 1)


def sr(a, n=1):
    return "s%d" % a if n == 1 else "s[%d:%d]" % (a, a + n - 1)


def load_ptr(k, dst, key):
    k.e("s_load_dwordx2 %s, s[0:1], %d" % (sr(dst, 2), KA[key]))


def make_srd(k, dst, ptr, off, size):
    k.e("s_add_u32 s%d, s%d, 0x%x" % (dst, ptr, off))
    k.e("s_addc_u32 s%d, s%d, 0" % (dst + 1, ptr + 1))
    k.e("s_mov_b32 s%d, 0x%x" % (dst + 2, size))
    k.e("s_mov_b32 s%d, 0x00020000" % (dst + 3))


LOG2E = 0x3FB8AA3B


def rnd_bf16(k, v, tmp=None):
    k.e("v_cvt_pk_bf16_f32 %s, %s, %s" % (vr(v), vr(v), vr(v)))
    k.e("v_lshlrev_b32 %s, 16, %s" % (vr(v), vr(v)))


def wave_reduce(k, v, vaddr, vtmp, op="v_add_f32"):
    for m in (1, 2, 4, 8, 16, 32):
        k.e("v_xor_b32 %s, %d, %s" % (vr(vtmp), m * 4, vr(vaddr)))
        k.e("ds_bpermute_b32 %s, %s, %s" % (vr(vtmp), vr(vtmp), vr(v)))
        k.e("s_waitcnt lgkmcnt(0)")
        k.e("%s %s, %s, %s" % (op, vr(v), vr(v), vr(vtmp)))


def emit_ln(k, s_row, srd_in, srd_out):
    k.e("v_and_b32 v1, 63, v0")
    k.e("v_lshlrev_b32 v2, 4, v1")
    k.e("s_lshl_b32 s40, s%d, 11" % s_row)
    k.e("v_add_u32 v2, s40, v2")
    k.e("buffer_load_dwordx4 v[8:11], v2, %s, 0 offen" % sr(srd_in, 4))
    k.e("buffer_load_dwordx4 v[12:15], v2, %s, 0 offen offset:1024" % sr(srd_in, 4))
    k.e("v_lshlrev_b32 v3, 2, v1")
    k.e("s_waitcnt vmcnt(0)")
    for i in range(8):
        k.e("v_lshlrev_b32 v%d, 16, v%d" % (16 + 2 * i, 8 + i))
        k.e("v_and_b32 v%d, 0xffff0000, v%d" % (17 + 2 * i, 8 + i))
    k.e("v_add_f32 v4, v16, v17")
    for i in range(2, 16):
        k.e("v_add_f32 v4, v4, v%d" % (16 + i))
    wave_reduce(k, 4, 3, 5)
    k.e("v_mul_f32 v4, 0x3a800000, v4")
    k.e("v_sub_f32 v5, v16, v4")
    k.e("v_mul_f32 v6, v5, v5")
    for i in range(1, 16):
        k.e("v_sub_f32 v5, v%d, v4" % (16 + i))
        k.e("v_fmac_f32 v6, v5, v5")
    wave_reduce(k, 6, 3, 5)
    k.e("v_mul_f32 v6, 0x3a800000, v6")
    rnd_bf16(k, 4)
    rnd_bf16(k, 6)
    k.e("v_add_f32 v6, 0x3727c5ac, v6")
    rnd_bf16(k, 6)
    k.e("v_sqrt_f32 v6, v6")
    k.nop(0)
    rnd_bf16(k, 6)
    k.e("v_rcp_f32 v7, v6")
    k.nop(0)
    for i in range(16):
        x = 16 + i
        k.e("v_sub_f32 v%d, v%d, v4" % (x, x))
        rnd_bf16(k, x)
        k.e("v_mul_f32 v5, v%d, v7" % x)
        k.e("v_fma_f32 v32, -v5, v6, v%d" % x)
        k.e("v_fma_f32 v%d, v32, v7, v5" % x)
    for i in range(8):
        k.e("v_cvt_pk_bf16_f32 v%d, v%d, v%d" % (8 + i, 16 + 2 * i, 17 + 2 * i))
    k.e("buffer_store_dwordx4 v[8:11], v2, %s, 0 offen" % sr(srd_out, 4))
    k.e("buffer_store_dwordx4 v[12:15], v2, %s, 0 offen offset:1024" % sr(srd_out, 4))


def gen_prep():
    k = K("prep_kernel")
    k.e("s_cmp_ge_u32 s2, 1024")
    end = k.lab("END")
    k.e("s_cbranch_scc1 %s" % end)
    load_ptr(k, 4, "A_x")
    load_ptr(k, 6, "ws")
    load_ptr(k, 8, "A_x")
    load_ptr(k, 10, "gate_w")
    k.e("v_lshrrev_b32 v1, 6, v0")
    k.nop(0)
    k.e("v_readfirstlane_b32 s12, v1")
    k.e("s_waitcnt lgkmcnt(0)")
    nz = k.lab("NOZERO")
    k.e("s_cmp_lg_u32 s2, 0")
    k.e("s_cbranch_scc1 %s" % nz)
    make_srd(k, 28, 6, WS_FLAG, 1024)
    k.e("v_lshlrev_b32 v1, 2, v0")
    k.e("v_mov_b32 v2, 0")
    k.e("buffer_store_dword v2, v1, s[28:31], 0 offen")
    k.L(nz)
    gate = k.lab("GATE")
    k.e("s_cmp_ge_u32 s2, 512")
    k.e("s_cbranch_scc1 %s" % gate)
    k.e("s_lshl_b32 s13, s2, 2")
    k.e("s_add_u32 s13, s13, s12")
    make_srd(k, 16, 4, 0, SZ_ACT)
    make_srd(k, 20, 6, WS_LNX, SZ_ACT)
    emit_ln(k, 13, 16, 20)
    k.e("s_endpgm")
    k.L(gate)
    k.e("s_sub_u32 s13, s2, 512")
    k.e("s_lshl_b32 s13, s13, 2")
    k.e("s_add_u32 s13, s13, s12")
    make_srd(k, 16, 8, 0, SZ_ACT)
    make_srd(k, 20, 10, 0, 2048)
    make_srd(k, 24, 6, WS_G, 2048 * 4)
    k.e("v_and_b32 v1, 63, v0")
    k.e("v_lshlrev_b32 v2, 4, v1")
    k.e("s_lshl_b32 s40, s13, 11")
    k.e("v_add_u32 v3, s40, v2")
    k.e("buffer_load_dwordx4 v[8:11], v3, s[16:19], 0 offen")
    k.e("buffer_load_dwordx4 v[12:15], v3, s[16:19], 0 offen offset:1024")
    k.e("buffer_load_dwordx4 v[32:35], v2, s[20:23], 0 offen")
    k.e("buffer_load_dwordx4 v[36:39], v2, s[20:23], 0 offen offset:1024")
    k.e("v_lshlrev_b32 v3, 2, v1")
    k.e("s_waitcnt vmcnt(0)")
    for i in range(8):
        k.e("v_lshlrev_b32 v%d, 16, v%d" % (16 + 2 * i, 8 + i))
        k.e("v_and_b32 v%d, 0xffff0000, v%d" % (17 + 2 * i, 8 + i))
        k.e("v_lshlrev_b32 v4, 16, v%d" % (32 + i))
        k.e("v_and_b32 v5, 0xffff0000, v%d" % (32 + i))
        k.e("v_mul_f32 v%d, v%d, v4" % (16 + 2 * i, 16 + 2 * i))
        k.e("v_mul_f32 v%d, v%d, v5" % (17 + 2 * i, 17 + 2 * i))
        k.e("v_cvt_pk_bf16_f32 v4, v%d, v%d" % (16 + 2 * i, 17 + 2 * i))
        k.e("v_lshlrev_b32 v%d, 16, v4" % (16 + 2 * i))
        k.e("v_and_b32 v%d, 0xffff0000, v4" % (17 + 2 * i))
    k.e("v_add_f32 v4, v16, v17")
    for i in range(2, 16):
        k.e("v_add_f32 v4, v4, v%d" % (16 + i))
    wave_reduce(k, 4, 3, 5)
    rnd_bf16(k, 4)
    k.e("v_mul_f32 v4, 0xbfb8aa3b, v4")
    k.e("v_exp_f32 v4, v4")
    k.nop(0)
    k.e("v_add_f32 v4, 1.0, v4")
    k.e("v_rcp_f32 v4, v4")
    k.nop(0)
    rnd_bf16(k, 4)
    k.e("v_cmp_eq_u32 vcc, 0, v1")
    k.e("s_and_saveexec_b64 s[42:43], vcc")
    k.e("s_lshl_b32 s40, s13, 2")
    k.e("v_mov_b32 v5, s40")
    k.e("buffer_store_dword v4, v5, s[24:27], 0 offen")
    k.L(end)
    k.e("s_endpgm")
    return k, 48


def gen_ln1():
    k = K("ln1_kernel")
    end = k.lab("END")
    k.e("s_cmp_ge_u32 s2, 512")
    k.e("s_cbranch_scc1 %s" % end)
    load_ptr(k, 6, "ws")
    k.e("v_lshrrev_b32 v1, 6, v0")
    k.nop(0)
    k.e("v_readfirstlane_b32 s12, v1")
    k.e("s_waitcnt lgkmcnt(0)")
    k.e("s_lshl_b32 s13, s2, 2")
    k.e("s_add_u32 s13, s13, s12")
    make_srd(k, 16, 6, WS_X1, SZ_ACT)
    make_srd(k, 20, 6, WS_LNX1, SZ_ACT)
    emit_ln(k, 13, 16, 20)
    k.L(end)
    k.e("s_endpgm")
    return k, 48


class GemmCfg:
    def __init__(self, WM, WN, TM, TN, NS=3):
        self.WM, self.WN, self.TM, self.TN, self.NS = WM, WN, TM, TN, NS
        self.BM = WM * TM * 32
        self.BN = WN * TN * 32
        self.NW = WM * WN
        self.XB = self.BM * 128
        self.RB = self.BN * 2
        self.WB = 64 * self.RB
        self.STAGE = self.XB + self.WB
        self.XI = self.XB // 1024 // self.NW
        self.WI = self.WB // 1024 // self.NW
        assert self.XI * 1024 * self.NW == self.XB and self.WI * 1024 * self.NW == self.WB
        self.PF = 0
        self.D = self.XI + self.WI
        self.R = TM + 2 * TN
        self.LDS = self.STAGE * NS


S_SRDX, S_SRDW, S_SRDC, S_SRDR, S_SRDG = 4, 8, 12, 16, 20
S_LDX, S_LDW, S_LDC, S_NK, S_M0, S_N0, S_WAVE, S_KT = 24, 25, 26, 27, 28, 29, 30, 31
S_KX, S_KW, S_CUR, S_OLD, S_DMX, S_DMW, S_T0, S_T1 = 32, 33, 34, 35, 36, 37, 38, 39
S_SHIFT, S_FLAG, S_T2, S_T3 = 40, 41, 42, 43


class GemmRegs:
    def __init__(self, cfg, shifted=False):
        c = cfg
        self.vt = list(range(1, 8))
        p = 8
        self.vxa = list(range(p, p + 4)); p += 4
        self.vwa = list(range(p, p + c.TN)); p += c.TN
        self.vxo = list(range(p, p + c.XI)); p += c.XI
        self.vwo = list(range(p, p + c.WI)); p += c.WI
        self.vxs = list(range(p, p + c.XI)) if shifted else None
        if shifted:
            p += c.XI
        p = (p + 3) // 4 * 4
        self.F = []
        for s in range(2):
            X = [p + 4 * i for i in range(c.TM)]; p += 4 * c.TM
            W = [p + 4 * i for i in range(c.TN)]; p += 4 * c.TN
            self.F.append((X, W))
        p = (p + 15) // 16 * 16
        self.acc = {}
        for tn in range(c.TN):
            for tm in range(c.TM):
                self.acc[(tn, tm)] = p; p += 16
        self.acc_base = self.acc[(0, 0)]
        self.nacc = 16 * c.TM * c.TN
        self.save = p
        self.end = p
        self.ep = None


def gemm_lane_setup(k, c, r):
    t0, t1, t2, t3 = r.vt[0:4]
    k.c("lane setup")
    k.e("v_and_b32 v%d, 63, v0" % t0)
    k.e("v_lshrrev_b32 v%d, 3, v%d" % (t1, t0))
    k.e("s_mul_i32 s%d, s%d, %d" % (S_T0, S_WAVE, c.XI * 8))
    k.e("v_add_u32 v%d, s%d, v%d" % (t1, S_T0, t1))
    k.e("v_mul_lo_u32 v%d, v%d, s%d" % (t1, t1, S_LDX))
    k.e("v_and_b32 v%d, 7, v%d" % (t2, t0))
    k.e("v_lshrrev_b32 v%d, 4, v%d" % (t3, t0))
    k.e("v_xor_b32 v%d, v%d, v%d" % (t2, t2, t3))
    for i in range(c.XI):
        k.e("s_mul_i32 s%d, s%d, %d" % (S_T0, S_WAVE, c.XI))
        k.e("s_add_u32 s%d, s%d, %d" % (S_T0, S_T0, i))
        k.e("s_and_b32 s%d, s%d, 1" % (S_T0, S_T0))
        k.e("s_lshl_b32 s%d, s%d, 2" % (S_T0, S_T0))
        k.e("v_xor_b32 v%d, s%d, v%d" % (t3, S_T0, t2))
        k.e("v_lshl_add_u32 v%d, v%d, 4, v%d" % (r.vxo[i], t3, t1))
        if i + 1 < c.XI:
            k.e("s_lshl_b32 s%d, s%d, 3" % (S_T0, S_LDX))
            k.e("v_add_u32 v%d, s%d, v%d" % (t1, S_T0, t1))
    if c.RB == 256:
        k.e("v_lshrrev_b32 v%d, 4, v%d" % (t1, t0))
        k.e("s_mul_i32 s%d, s%d, %d" % (S_T0, S_WAVE, c.WI * 4))
        k.e("v_add_u32 v%d, s%d, v%d" % (t2, S_T0, t1))
        k.e("v_mul_lo_u32 v%d, v%d, s%d" % (t2, t2, S_LDW))
        k.e("v_lshlrev_b32 v%d, 2, v%d" % (t1, t1))
        k.e("v_and_b32 v%d, 15, v%d" % (t3, t0))
        k.e("v_xor_b32 v%d, v%d, v%d" % (t3, t3, t1))
        for j in range(c.WI):
            k.e("v_lshl_add_u32 v%d, v%d, 4, v%d" % (r.vwo[j], t3, t2))
            if j + 1 < c.WI:
                k.e("s_lshl_b32 s%d, s%d, 2" % (S_T0, S_LDW))
                k.e("v_add_u32 v%d, s%d, v%d" % (t2, S_T0, t2))
    elif c.RB == 128:
        k.e("v_lshrrev_b32 v%d, 3, v%d" % (t1, t0))
        k.e("s_mul_i32 s%d, s%d, %d" % (S_T0, S_WAVE, c.WI * 8))
        k.e("v_add_u32 v%d, s%d, v%d" % (t2, S_T0, t1))
        k.e("v_mul_lo_u32 v%d, v%d, s%d" % (t2, t2, S_LDW))
        k.e("v_lshrrev_b32 v%d, 4, v%d" % (t1, t0))
        k.e("v_and_b32 v%d, 1, v%d" % (t1, t1))
        k.e("v_lshlrev_b32 v%d, 2, v%d" % (t1, t1))
        k.e("v_and_b32 v%d, 7, v%d" % (t3, t0))
        k.e("v_xor_b32 v%d, v%d, v%d" % (t3, t3, t1))
        for j in range(c.WI):
            k.e("v_lshl_add_u32 v%d, v%d, 4, v%d" % (r.vwo[j], t3, t2))
            if j + 1 < c.WI:
                k.e("s_lshl_b32 s%d, s%d, 3" % (S_T0, S_LDW))
                k.e("v_add_u32 v%d, s%d, v%d" % (t2, S_T0, t2))
    else:
        raise ValueError("RB")
    k.e("s_and_b32 s%d, s%d, %d" % (S_T2, S_WAVE, c.WM - 1))
    k.e("s_lshr_b32 s%d, s%d, %d" % (S_T3, S_WAVE, c.WM.bit_length() - 1))
    k.e("v_and_b32 v%d, 31, v%d" % (t1, t0))
    k.e("s_mul_i32 s%d, s%d, %d" % (S_T0, S_T2, c.TM * 32))
    k.e("v_add_u32 v%d, s%d, v%d" % (t1, S_T0, t1))
    k.e("v_lshlrev_b32 v%d, 7, v%d" % (t1, t1))
    k.e("v_lshrrev_b32 v%d, 5, v%d" % (t2, t0))
    k.e("v_bfe_u32 v%d, v%d, 1, 3" % (t3, t0))
    k.e("v_xor_b32 v%d, v%d, v%d" % (t2, t2, t3))
    for t in range(4):
        k.e("v_xor_b32 v%d, %d, v%d" % (t3, 2 * t, t2))
        k.e("v_lshl_add_u32 v%d, v%d, 4, v%d" % (r.vxa[t], t3, t1))
    k.e("v_bfe_u32 v%d, v%d, 2, 2" % (t1, t0))
    k.e("v_lshrrev_b32 v%d, 5, v%d" % (t2, t0))
    k.e("v_lshl_add_u32 v%d, v%d, 3, v%d" % (t2, t2, t1))
    k.e("v_mul_u32_u24 v%d, %d, v%d" % (t2, c.RB, t2))
    k.e("v_bfe_u32 v%d, v%d, 4, 1" % (t3, t0))
    k.e("v_lshl_add_u32 v%d, v%d, 5, v%d" % (t2, t3, t2))
    k.e("v_and_b32 v%d, 3, v%d" % (t3, t0))
    k.e("v_lshl_add_u32 v%d, v%d, 3, v%d" % (t2, t3, t2))
    k.e("v_add_u32 v%d, %d, v%d" % (t2, c.XB, t2))
    if c.RB == 128:
        k.e("v_lshrrev_b32 v%d, 1, v%d" % (t1, t1))
    for tn in range(c.TN):
        k.e("s_mul_i32 s%d, s%d, %d" % (S_T0, S_T3, c.TN))
        k.e("s_add_u32 s%d, s%d, %d" % (S_T0, S_T0, tn))
        k.e("v_xor_b32 v%d, s%d, v%d" % (t3, S_T0, t1))
        k.e("v_lshl_add_u32 v%d, v%d, 6, v%d" % (r.vwa[tn], t3, t2))
    k.e("s_mul_i32 s%d, s%d, %d" % (S_DMX, S_WAVE, c.XI * 1024))
    k.e("s_mul_i32 s%d, s%d, %d" % (S_DMW, S_WAVE, c.WI * 1024))
    k.e("s_add_u32 s%d, s%d, %d" % (S_DMW, S_DMW, c.XB))


def gemm_dma(k, c, r, s_stage, shifted):
    if 'nodma' in DBG:
        return
    xo = r.vxs if shifted else r.vxo
    k.e("s_add_u32 m0, s%d, s%d" % (s_stage, S_DMX))
    for i in range(c.XI):
        if i:
            k.e("s_add_u32 m0, m0, 1024")
        k.nop(0)
        k.e("buffer_load_dwordx4 v%d, %s, s%d offen lds" % (xo[i], sr(S_SRDX, 4), S_KX))
    k.e("s_add_u32 m0, s%d, s%d" % (s_stage, S_DMW))
    for j in range(c.WI):
        if j:
            k.e("s_add_u32 m0, m0, 1024")
        k.nop(0)
        k.e("buffer_load_dwordx4 v%d, %s, s%d offen lds" % (r.vwo[j], sr(S_SRDW, 4), S_KW))
    for p in range(c.PF):
        k.e("buffer_load_dword v%d, v%d, %s, s72 offen" % (r.vpf + 1, r.vpf, sr(64 + 4 * p, 4)))
    if c.PF:
        k.e("s_add_u32 s72, s72, 256")


def gemm_shift_update(k, c, r, s_kidx):
    k.e("s_lshr_b32 s%d, s%d, 2" % (S_T0, s_kidx))
    k.e("s_and_b32 s%d, s%d, 1" % (S_T1, S_T0))
    k.e("s_lshr_b32 s%d, s%d, 1" % (S_T0, S_T0))
    k.e("s_lshl_b32 s%d, 2048, s%d" % (S_SHIFT, S_T0))
    k.e("s_sub_u32 s%d, 0, s%d" % (S_T0, S_SHIFT))
    k.e("s_cmp_eq_u32 s%d, 1" % S_T1)
    k.e("s_cselect_b32 s%d, s%d, s%d" % (S_SHIFT, S_SHIFT, S_T0))
    k.e("s_lshl_b32 s%d, s%d, 11" % (S_T0, S_M0))
    k.e("s_add_u32 s%d, s%d, s%d" % (S_SHIFT, S_SHIFT, S_T0))
    for i in range(c.XI):
        k.e("v_add_u32 v%d, s%d, v%d" % (r.vxs[i], S_SHIFT, r.vxo[i]))


def gemm_reads(k, c, r, t, fs):
    if 'noreads' in DBG:
        return
    X, W = r.F[fs]
    for tm in range(c.TM):
        k.e("ds_read_b128 %s, v%d offset:%d" % (vr(X[tm], 4), r.vxa[t], tm * 4096))
    for tn in range(c.TN):
        for u in range(2):
            k.e("ds_read_b64_tr_b16 %s, v%d offset:%d" % (vr(W[tn] + 2 * u, 2), r.vwa[tn], (16 * t + 4 * u) * c.RB))


def gemm_mfma(k, c, r, fs, accmap=None):
    if 'nomfma' in DBG:
        return
    X, W = r.F[fs]
    for tn in range(c.TN):
        for tm in range(c.TM):
            a = r.acc[(tn, tm)]
            k.e("v_mfma_f32_32x32x16_bf16 %s, %s, %s, %s" % (vr(a, 16), vr(W[tn], 4), vr(X[tm], 4), vr(a, 16)))


def gemm_kloop(k, c, r, shifted=False):
    D, R, NS = c.D, c.R, c.NS
    k.c("K loop prologue")
    k.e("s_mov_b32 s%d, 0" % S_CUR)
    k.e("s_lshl_b32 s%d, s%d, 6" % (S_T2, S_LDW))
    for i in range(r.nacc):
        k.e("v_mov_b32 v%d, 0" % (r.acc_base + i))
    k.e("s_mov_b32 s%d, 0" % S_KT)
    for s in range(NS):
        if shifted:
            gemm_shift_update(k, c, r, S_KT)
        k.e("s_mov_b32 s%d, %d" % (S_OLD, s * c.STAGE))
        gemm_dma(k, c, r, S_OLD, shifted)
        k.e("s_add_u32 s%d, s%d, 128" % (S_KX, S_KX))
        k.e("s_add_u32 s%d, s%d, s%d" % (S_KW, S_KW, S_T2))
        k.e("s_add_u32 s%d, s%d, 1" % (S_KT, S_KT))
    k.e("s_waitcnt vmcnt(%d)" % ((NS - 1) * D))
    k.e("s_barrier")
    gemm_reads(k, c, r, 0, 0)
    k.e("s_mov_b32 s%d, 0" % S_T3)
    loop = k.lab("KLOOP")
    last = k.lab("KLAST")
    nod = k.lab("NODMA")
    w0 = k.lab("W0")
    w1 = k.lab("W1")
    done = k.lab("KDONE")
    k.L(loop)
    for t in range(3):
        gemm_reads(k, c, r, t + 1, (t + 1) & 1)
        k.e("s_waitcnt lgkmcnt(%d)" % R)
        gemm_mfma(k, c, r, t & 1)
    k.e("s_add_u32 s%d, s%d, 1" % (S_T3, S_T3))
    k.e("s_cmp_ge_u32 s%d, s%d" % (S_T3, S_NK))
    k.e("s_cbranch_scc1 %s" % last)
    k.e("s_add_u32 s%d, s%d, %d" % (S_T0, S_T3, NS - 1))
    k.e("s_cmp_eq_u32 s%d, s%d" % (S_T0, S_KT))
    k.e("s_cbranch_scc1 %s" % w0)
    k.e("s_waitcnt vmcnt(0) lgkmcnt(0)")
    k.e("s_branch %s" % w1)
    k.L(w0)
    k.e("s_waitcnt vmcnt(%d) lgkmcnt(0)" % ((NS - 2) * D))
    k.L(w1)
    k.e("s_barrier")
    k.e("s_mov_b32 s%d, s%d" % (S_OLD, S_CUR))
    k.e("s_add_u32 s%d, s%d, %d" % (S_CUR, S_CUR, c.STAGE))
    k.e("s_cmp_eq_u32 s%d, %d" % (S_CUR, c.STAGE * NS))
    k.e("s_cselect_b32 s%d, 0, s%d" % (S_CUR, S_CUR))
    k.e("s_sub_u32 s%d, s%d, s%d" % (S_T0, S_CUR, S_OLD))
    for v in r.vxa + r.vwa:
        k.e("v_add_u32 v%d, s%d, v%d" % (v, S_T0, v))
    gemm_reads(k, c, r, 0, 0)
    k.e("s_cmp_ge_u32 s%d, s%d" % (S_KT, S_NK))
    k.e("s_cbranch_scc1 %s" % nod)
    if shifted:
        gemm_shift_update(k, c, r, S_KT)
    gemm_dma(k, c, r, S_OLD, shifted)
    k.e("s_add_u32 s%d, s%d, 128" % (S_KX, S_KX))
    k.e("s_add_u32 s%d, s%d, s%d" % (S_KW, S_KW, S_T2))
    k.e("s_add_u32 s%d, s%d, 1" % (S_KT, S_KT))
    k.L(nod)
    gemm_mfma(k, c, r, 1)
    k.e("s_branch %s" % loop)
    k.L(last)
    k.e("s_waitcnt lgkmcnt(0)")
    gemm_mfma(k, c, r, 1)
    k.L(done)
    k.e("s_sub_u32 s%d, 0, s%d" % (S_T0, S_CUR))
    for v in r.vxa + r.vwa:
        k.e("v_add_u32 v%d, s%d, v%d" % (v, S_T0, v))


def emit_gelu(k, x, t0, t1):
    k.e("v_mul_f32 v%d, v%d, v%d" % (t0, x, x))
    k.e("v_mov_b32 v%d, 0x3d372713" % t1)
    k.e("v_fma_f32 v%d, v%d, v%d, 1.0" % (t0, t0, t1))
    k.e("v_mul_f32 v%d, v%d, v%d" % (t0, t0, x))
    k.e("v_mul_f32 v%d, 0xc0135761, v%d" % (t0, t0))
    k.e("v_exp_f32 v%d, v%d" % (t0, t0))
    k.nop(0)
    k.e("v_add_f32 v%d, 1.0, v%d" % (t0, t0))
    k.e("v_rcp_f32 v%d, v%d" % (t0, t0))
    k.nop(0)
    k.e("v_mul_f32 v%d, v%d, v%d" % (x, x, t0))


def gemm_epilogue(k, c, r, mode):
    t0, t1, t2, t3, t4, t5, t6 = r.vt
    if 'noepi' in DBG:
        return
    k.c("epilogue " + mode)
    k.nop(15)
    k.nop(7)
    k.e("s_and_b32 s%d, s%d, %d" % (S_T2, S_WAVE, c.WM - 1))
    k.e("s_lshr_b32 s%d, s%d, %d" % (S_T3, S_WAVE, c.WM.bit_length() - 1))
    k.e("s_mul_i32 s%d, s%d, %d" % (S_T0, S_T2, c.TM * 32))
    k.e("s_add_u32 s%d, s%d, s%d" % (S_T0, S_T0, S_M0))
    k.e("s_mul_i32 s%d, s%d, %d" % (S_T1, S_T3, c.TN * 32))
    k.e("s_add_u32 s%d, s%d, s%d" % (S_T1, S_T1, S_N0))
    k.e("s_lshl_b32 s%d, s%d, 1" % (S_T1, S_T1))
    k.e("v_and_b32 v%d, 31, v0" % t0)
    k.e("v_add_u32 v%d, s%d, v%d" % (t0, S_T0, t0))
    k.e("v_bfe_u32 v%d, v0, 5, 1" % t1)
    k.e("v_mul_lo_u32 v%d, v%d, s%d" % (t2, t0, S_LDC))
    k.e("v_add_u32 v%d, s%d, v%d" % (t2, S_T1, t2))
    k.e("v_lshl_add_u32 v%d, v%d, 4, v%d" % (t3, t1, t2))
    k.e("v_lshl_add_u32 v%d, v%d, 3, v%d" % (t4, t1, t2))
    k.e("v_lshlrev_b32 v%d, 2, v%d" % (t5, t0))
    ep = r.ep
    P = [ep + i for i in range(8)]
    RS = [ep + 8 + i for i in range(8)]
    a0, a1, a2, a3 = ep + 16, ep + 17, ep + 18, ep + 19
    for tm in range(c.TM):
        k.e("s_lshl_b32 s%d, s%d, 5" % (S_T0, S_LDC))
        k.e("s_mul_i32 s%d, s%d, %d" % (S_T0, S_T0, tm))
        if mode == 'final':
            k.e("buffer_load_dword v%d, v%d, %s, 0 offen offset:%d" % (a3, t5, sr(S_SRDG, 4), tm * 128))
        for tn in range(c.TN):
            a = r.acc[(tn, tm)]
            if mode in ('resid', 'final'):
                for q in range(4):
                    k.e("buffer_load_dwordx2 %s, v%d, %s, s%d offen offset:%d" %
                        (vr(RS[2 * q], 2), t4, sr(S_SRDR, 4), S_T0, tn * 64 + q * 16))
                k.e("s_waitcnt vmcnt(0)")
            for q in range(4):
                lo, hi = P[2 * q], P[2 * q + 1]
                k.e("v_cvt_pk_bf16_f32 v%d, v%d, v%d" % (lo, a + 4 * q, a + 4 * q + 1))
                k.e("v_cvt_pk_bf16_f32 v%d, v%d, v%d" % (hi, a + 4 * q + 2, a + 4 * q + 3))
                if mode == 'store':
                    continue
                for (pk, rs) in ((lo, RS[2 * q]), (hi, RS[2 * q + 1])):
                    k.e("v_lshlrev_b32 v%d, 16, v%d" % (a0, pk))
                    k.e("v_and_b32 v%d, 0xffff0000, v%d" % (a1, pk))
                    if mode == 'gelu':
                        emit_gelu(k, a0, a2, t6)
                        emit_gelu(k, a1, a2, t6)
                    else:
                        k.e("v_lshlrev_b32 v%d, 16, v%d" % (a2, rs))
                        k.e("v_add_f32 v%d, v%d, v%d" % (a0, a0, a2))
                        k.e("v_and_b32 v%d, 0xffff0000, v%d" % (a2, rs))
                        k.e("v_add_f32 v%d, v%d, v%d" % (a1, a1, a2))
                        if mode == 'final':
                            k.e("v_cvt_pk_bf16_f32 v%d, v%d, v%d" % (a2, a0, a1))
                            k.e("v_lshlrev_b32 v%d, 16, v%d" % (a0, a2))
                            k.e("v_and_b32 v%d, 0xffff0000, v%d" % (a1, a2))
                            k.e("v_sub_f32 v%d, 1.0, v%d" % (a2, a3))
                            rnd_bf16(k, a2)
                            k.e("v_mul_f32 v%d, v%d, v%d" % (a0, a0, a2))
                            k.e("v_mul_f32 v%d, v%d, v%d" % (a1, a1, a2))
                            k.e("v_cvt_pk_bf16_f32 v%d, v%d, v%d" % (a2, a0, a1))
                            k.e("v_lshlrev_b32 v%d, 16, v%d" % (a0, a2))
                            k.e("v_and_b32 v%d, 0xffff0000, v%d" % (a1, a2))
                            sa = r.save + (a - r.acc_base) + 4 * q + (0 if pk == lo else 2)
                            k.e("v_cvt_pk_bf16_f32 v%d, v%d, v%d" % (a2, sa, sa + 1))
                            k.e("v_lshlrev_b32 v%d, 16, v%d" % (t6, a2))
                            k.e("v_and_b32 v%d, 0xffff0000, v%d" % (a2, a2))
                            k.e("v_mul_f32 v%d, v%d, v%d" % (t6, t6, a3))
                            k.e("v_mul_f32 v%d, v%d, v%d" % (a2, a2, a3))
                            k.e("v_cvt_pk_bf16_f32 v%d, v%d, v%d" % (a2, t6, a2))
                            k.e("v_lshlrev_b32 v%d, 16, v%d" % (t6, a2))
                            k.e("v_and_b32 v%d, 0xffff0000, v%d" % (a2, a2))
                            k.e("v_add_f32 v%d, v%d, v%d" % (a0, a0, t6))
                            k.e("v_add_f32 v%d, v%d, v%d" % (a1, a1, a2))
                    k.e("v_cvt_pk_bf16_f32 v%d, v%d, v%d" % (pk, a0, a1))
            k.nop(1)
            for p in range(2):
                k.e("v_permlane32_swap_b32 v%d, v%d" % (P[4 * p], P[4 * p + 2]))
                k.e("v_permlane32_swap_b32 v%d, v%d" % (P[4 * p + 1], P[4 * p + 3]))
            k.nop(1)
            for p in range(2):
                k.e("buffer_store_dwordx4 %s, v%d, %s, s%d offen offset:%d" %
                    (vr(P[4 * p], 4), t3, sr(S_SRDC, 4), S_T0, tn * 64 + p * 32))
            k.nop(3)


class GemmRegsPP:
    def __init__(self, cfg, shifted=False, nsave=0):
        c = cfg
        self.vt = list(range(1, 8))
        p = 8
        self.vpf = p; p += 2
        self.vxa = list(range(p, p + 4)); p += 4
        self.vwa = list(range(p, p + c.TN)); p += c.TN
        self.vxo = list(range(p, p + c.XI)); p += c.XI
        self.vwo = list(range(p, p + c.WI)); p += c.WI
        self.vxs = list(range(p, p + c.XI)) if shifted else None
        if shifted:
            p += c.XI
        p = (p + 3) // 4 * 4
        self.FX = [[p + 4 * (tm * 4 + t) for t in range(4)] for tm in range(c.TM)]; p += 16 * c.TM
        self.FW = [[p + 4 * (tn * 4 + t) for t in range(4)] for tn in range(c.TN)]; p += 16 * c.TN
        p = (p + 15) // 16 * 16
        self.acc = {}
        for tn in range(c.TN):
            for tm in range(c.TM):
                self.acc[(tn, tm)] = p; p += 16
        self.acc_base = self.acc[(0, 0)]
        self.nacc = 16 * c.TM * c.TN
        self.save = p
        p += nsave
        self.end = p
        self.ep = self.FX[0][0]


def pp_reads(k, c, r):
    if 'noreads' in DBG:
        return
    for t in range(4):
        for tm in range(c.TM):
            k.e("ds_read_b128 %s, v%d offset:%d" % (vr(r.FX[tm][t], 4), r.vxa[t], tm * 4096))
        for tn in range(c.TN):
            for u in range(2):
                k.e("ds_read_b64_tr_b16 %s, v%d offset:%d" % (vr(r.FW[tn][t] + 2 * u, 2), r.vwa[tn], (16 * t + 4 * u) * c.RB))


def pp_mfma(k, c, r):
    if 'nomfma' in DBG:
        return
    for t in range(4):
        for tn in range(c.TN):
            for tm in range(c.TM):
                a = r.acc[(tn, tm)]
                k.e("v_mfma_f32_32x32x16_bf16 %s, %s, %s, %s" % (vr(a, 16), vr(r.FW[tn][t], 4), vr(r.FX[tm][t], 4), vr(a, 16)))


def pp_loop_body(k, c, r, grpB, shifted):
    D = c.D
    loop = k.lab("PPL"); nod = k.lab("PPN"); w0 = k.lab("PW0"); w1 = k.lab("PW1"); x0 = k.lab("PX0"); x1 = k.lab("PX1")
    k.L(loop)
    pp_reads(k, c, r)
    k.e("s_cmp_ge_u32 s%d, s%d" % (S_KT, S_NK))
    k.e("s_cbranch_scc1 %s" % nod)
    if shifted:
        gemm_shift_update(k, c, r, S_KT)
    gemm_dma(k, c, r, S_OLD, shifted)
    k.e("s_add_u32 s%d, s%d, 128" % (S_KX, S_KX))
    k.e("s_add_u32 s%d, s%d, s%d" % (S_KW, S_KW, S_T2))
    k.e("s_add_u32 s%d, s%d, 1" % (S_KT, S_KT))
    k.L(nod)
    if grpB:
        k.e("s_add_u32 s%d, s%d, %d" % (S_T0, S_T3, c.NS))
        k.e("s_cmp_eq_u32 s%d, s%d" % (S_T0, S_KT))
        k.e("s_cbranch_scc1 %s" % w0)
        k.e("s_waitcnt vmcnt(0) lgkmcnt(0)")
        k.e("s_branch %s" % w1)
        k.L(w0)
        k.e("s_waitcnt vmcnt(%d) lgkmcnt(0)" % ((c.NS - 2) * D))
        k.L(w1)
    else:
        k.e("s_waitcnt lgkmcnt(0)")
    k.e("s_barrier")
    k.e("s_setprio 1")
    pp_mfma(k, c, r)
    k.e("s_setprio 0")
    k.e("s_mov_b32 s%d, s%d" % (S_T1, S_CUR))
    k.e("s_add_u32 s%d, s%d, %d" % (S_CUR, S_CUR, c.STAGE))
    k.e("s_cmp_eq_u32 s%d, %d" % (S_CUR, c.STAGE * c.NS))
    k.e("s_cselect_b32 s%d, 0, s%d" % (S_CUR, S_CUR))
    k.e("s_sub_u32 s%d, s%d, s%d" % (S_T0, S_CUR, S_T1))
    for v in r.vxa + r.vwa:
        k.e("v_add_u32 v%d, s%d, v%d" % (v, S_T0, v))
    k.e("s_add_u32 s%d, s%d, %d" % (S_OLD, S_OLD, c.STAGE))
    k.e("s_cmp_eq_u32 s%d, %d" % (S_OLD, c.STAGE * c.NS))
    k.e("s_cselect_b32 s%d, 0, s%d" % (S_OLD, S_OLD))
    k.e("s_add_u32 s%d, s%d, 1" % (S_T3, S_T3))
    if not grpB:
        k.e("s_add_u32 s%d, s%d, %d" % (S_T0, S_T3, c.NS - 1))
        k.e("s_cmp_eq_u32 s%d, s%d" % (S_T0, S_KT))
        k.e("s_cbranch_scc1 %s" % x0)
        k.e("s_waitcnt vmcnt(0)")
        k.e("s_branch %s" % x1)
        k.L(x0)
        k.e("s_waitcnt vmcnt(%d)" % ((c.NS - 2) * D))
        k.L(x1)
    k.e("s_barrier")
    k.e("s_cmp_lt_u32 s%d, s%d" % (S_T3, S_NK))
    k.e("s_cbranch_scc1 %s" % loop)


def gemm_kloop_pp(k, c, r, shifted=False):
    assert c.NW == 8
    D = c.D
    k.c("K loop (ping-pong) prologue")
    k.e("s_lshl_b32 s%d, s%d, 6" % (S_T2, S_LDW))
    for i in range(r.nacc):
        k.e("v_mov_b32 v%d, 0" % (r.acc_base + i))
    k.e("s_mov_b32 s%d, 0" % S_KT)
    for s in range(c.NS - 1):
        if shifted:
            gemm_shift_update(k, c, r, S_KT)
        k.e("s_mov_b32 s%d, %d" % (S_OLD, s * c.STAGE))
        gemm_dma(k, c, r, S_OLD, shifted)
        k.e("s_add_u32 s%d, s%d, 128" % (S_KX, S_KX))
        k.e("s_add_u32 s%d, s%d, s%d" % (S_KW, S_KW, S_T2))
        k.e("s_add_u32 s%d, s%d, 1" % (S_KT, S_KT))
    k.e("s_mov_b32 s%d, %d" % (S_OLD, (c.NS - 1) * c.STAGE))
    k.e("s_mov_b32 s%d, 0" % S_CUR)
    k.e("s_mov_b32 s%d, 0" % S_T3)
    k.e("s_waitcnt vmcnt(%d)" % ((c.NS - 2) * D))
    k.e("s_barrier")
    gb = k.lab("GRPB"); done = k.lab("PPD")
    k.e("s_cmp_ge_u32 s%d, 4" % S_WAVE)
    k.e("s_cbranch_scc1 %s" % gb)
    pp_loop_body(k, c, r, False, shifted)
    k.e("s_barrier")
    k.e("s_branch %s" % done)
    k.L(gb)
    k.e("s_barrier")
    pp_loop_body(k, c, r, True, shifted)
    k.L(done)
    k.e("s_sub_u32 s%d, 0, s%d" % (S_T0, S_CUR))
    for v in r.vxa + r.vwa:
        k.e("v_add_u32 v%d, s%d, v%d" % (v, S_T0, v))


def gemm_epilogue_lds(k, c, r, mode, lds_base=0):
    if 'noepi' in DBG:
        return
    t0, t1, t2, t3, t4, t5, t6 = r.vt
    RC = c.BN * 2
    TILE = c.BM * RC
    ep = r.ep
    P = [ep + i for i in range(8)]
    a0, a1, a2, a3 = ep + 8, ep + 9, ep + 10, ep + 11
    k.c("epilogue(lds) " + mode)
    k.nop(15)
    k.nop(7)
    k.e("s_and_b32 s%d, s%d, %d" % (S_T2, S_WAVE, c.WM - 1))
    k.e("s_lshr_b32 s%d, s%d, %d" % (S_T3, S_WAVE, c.WM.bit_length() - 1))
    k.e("v_and_b32 v%d, 31, v0" % t0)
    k.e("s_mul_i32 s%d, s%d, %d" % (S_T0, S_T2, c.TM * 32))
    k.e("v_add_u32 v%d, s%d, v%d" % (t0, S_T0, t0))
    k.e("v_mul_u32_u24 v%d, %d, v%d" % (t1, RC, t0))
    k.e("v_and_b32 v%d, 7, v0" % t0)
    k.e("v_lshl_or_b32 v%d, v%d, 4, v%d" % (t1, t0, t1))
    k.e("v_bfe_u32 v%d, v0, 5, 1" % t0)
    k.e("v_lshl_or_b32 v%d, v%d, 3, v%d" % (t1, t0, t1))
    k.e("s_mul_i32 s%d, s%d, %d" % (S_T0, S_T3, c.TN * 64))
    k.e("v_xor_b32 v%d, s%d, v%d" % (t1, S_T0, t1))
    sets = [(r.acc, 0)] if mode != 'final' else [(r.acc, 0), (None, TILE)]
    for which, (accmap, lbase) in enumerate(sets):
        for tm in range(c.TM):
            for tn in range(c.TN):
                a = r.acc[(tn, tm)] if which == 0 else r.save + (r.acc[(tn, tm)] - r.acc_base)
                for q in range(4):
                    lo, hi = P[0], P[1]
                    k.e("v_cvt_pk_bf16_f32 v%d, v%d, v%d" % (lo, a + 4 * q, a + 4 * q + 1))
                    k.e("v_cvt_pk_bf16_f32 v%d, v%d, v%d" % (hi, a + 4 * q + 2, a + 4 * q + 3))
                    if mode == 'gelu':
                        for pk in (lo, hi):
                            k.e("v_lshlrev_b32 v%d, 16, v%d" % (a0, pk))
                            k.e("v_and_b32 v%d, 0xffff0000, v%d" % (a1, pk))
                            emit_gelu(k, a0, a2, t6)
                            emit_gelu(k, a1, a2, t6)
                            k.e("v_cvt_pk_bf16_f32 v%d, v%d, v%d" % (pk, a0, a1))
                    k.e("v_xor_b32 v%d, %d, v%d" % (t0, (tn * 4 + q) << 4, t1))
                    k.e("ds_write_b64 v%d, v[%d:%d] offset:%d" % (t0, lo, hi, lds_base + lbase + tm * 32 * RC))
    k.e("s_waitcnt lgkmcnt(0)")
    k.e("s_barrier")
    CPR = RC // 16
    RPI = 64 // CPR
    NI = TILE // 1024 // c.NW
    sh = CPR.bit_length() - 1
    k.e("v_and_b32 v%d, 63, v0" % t0)
    k.e("v_lshrrev_b32 v%d, %d, v%d" % (t1, sh, t0))
    k.e("s_mul_i32 s%d, s%d, %d" % (S_T0, S_WAVE, NI * RPI))
    k.e("v_add_u32 v%d, s%d, v%d" % (t1, S_T0, t1))
    k.e("v_and_b32 v%d, %d, v%d" % (t2, CPR - 1, t0))
    k.e("v_and_b32 v%d, 7, v%d" % (t3, t1))
    k.e("v_xor_b32 v%d, v%d, v%d" % (t3, t3, t2))
    k.e("v_mul_u32_u24 v%d, %d, v%d" % (t4, RC, t1))
    k.e("v_lshl_add_u32 v%d, v%d, 4, v%d" % (t4, t3, t4))
    k.e("v_add_u32 v%d, s%d, v%d" % (t3, S_M0, t1))
    k.e("v_mul_lo_u32 v%d, v%d, s%d" % (t5, t3, S_LDC))
    k.e("v_lshl_add_u32 v%d, v%d, 4, v%d" % (t5, t2, t5))
    k.e("s_lshl_b32 s%d, s%d, 1" % (S_T0, S_N0))
    k.e("v_add_u32 v%d, s%d, v%d" % (t5, S_T0, t5))
    k.e("v_lshlrev_b32 v%d, 2, v%d" % (t6, t3))
    assert RPI % 8 == 0 or RPI == 4
    for i in range(NI):
        if RPI == 4 and i > 0:
            k.e("v_add_u32 v%d, %d, v%d" % (t1, RPI, t1))
            k.e("v_and_b32 v%d, 7, v%d" % (t3, t1))
            k.e("v_xor_b32 v%d, v%d, v%d" % (t3, t3, t2))
            k.e("v_mul_u32_u24 v%d, %d, v%d" % (t4, RC, t1))
            k.e("v_lshl_add_u32 v%d, v%d, 4, v%d" % (t4, t3, t4))
        loff = 0 if RPI == 4 else i * 1024
        k.e("s_mul_i32 s%d, s%d, %d" % (S_T1, S_LDC, i * RPI))
        X = ep + 12
        Y = ep + 16
        Z = ep + 20
        k.e("ds_read_b128 %s, v%d offset:%d" % (vr(X, 4), t4, lds_base + loff))
        if mode == 'resid':
            k.e("buffer_load_dwordx4 %s, v%d, %s, s%d offen" % (vr(Y, 4), t5, sr(S_SRDR, 4), S_T1))
            k.e("s_waitcnt vmcnt(0) lgkmcnt(0)")
            for j in range(4):
                k.e("v_lshlrev_b32 v%d, 16, v%d" % (a0, X + j))
                k.e("v_and_b32 v%d, 0xffff0000, v%d" % (a1, X + j))
                k.e("v_lshlrev_b32 v%d, 16, v%d" % (a2, Y + j))
                k.e("v_and_b32 v%d, 0xffff0000, v%d" % (a3, Y + j))
                k.e("v_add_f32 v%d, v%d, v%d" % (a0, a0, a2))
                k.e("v_add_f32 v%d, v%d, v%d" % (a1, a1, a3))
                k.e("v_cvt_pk_bf16_f32 v%d, v%d, v%d" % (X + j, a0, a1))
        elif mode == 'final':
            k.e("ds_read_b128 %s, v%d offset:%d" % (vr(Z, 4), t4, lds_base + TILE + loff))
            k.e("buffer_load_dwordx4 %s, v%d, %s, s%d offen" % (vr(Y, 4), t5, sr(S_SRDR, 4), S_T1))
            k.e("buffer_load_dword v%d, v%d, %s, 0 offen offset:%d" % (P[2], t6, sr(S_SRDG, 4), i * RPI * 4))
            k.e("s_waitcnt vmcnt(0) lgkmcnt(0)")
            k.e("v_sub_f32 v%d, 1.0, v%d" % (P[3], P[2]))
            rnd_bf16(k, P[3])
            for j in range(4):
                k.e("v_lshlrev_b32 v%d, 16, v%d" % (a0, X + j))
                k.e("v_and_b32 v%d, 0xffff0000, v%d" % (a1, X + j))
                k.e("v_lshlrev_b32 v%d, 16, v%d" % (a2, Y + j))
                k.e("v_and_b32 v%d, 0xffff0000, v%d" % (a3, Y + j))
                k.e("v_add_f32 v%d, v%d, v%d" % (a0, a0, a2))
                k.e("v_add_f32 v%d, v%d, v%d" % (a1, a1, a3))
                k.e("v_cvt_pk_bf16_f32 v%d, v%d, v%d" % (a2, a0, a1))
                k.e("v_lshlrev_b32 v%d, 16, v%d" % (a0, a2))
                k.e("v_and_b32 v%d, 0xffff0000, v%d" % (a1, a2))
                k.e("v_mul_f32 v%d, v%d, v%d" % (a0, a0, P[3]))
                k.e("v_mul_f32 v%d, v%d, v%d" % (a1, a1, P[3]))
                k.e("v_cvt_pk_bf16_f32 v%d, v%d, v%d" % (a2, a0, a1))
                k.e("v_lshlrev_b32 v%d, 16, v%d" % (a0, a2))
                k.e("v_and_b32 v%d, 0xffff0000, v%d" % (a1, a2))
                k.e("v_lshlrev_b32 v%d, 16, v%d" % (a2, Z + j))
                k.e("v_and_b32 v%d, 0xffff0000, v%d" % (a3, Z + j))
                k.e("v_mul_f32 v%d, v%d, v%d" % (a2, a2, P[2]))
                k.e("v_mul_f32 v%d, v%d, v%d" % (a3, a3, P[2]))
                k.e("v_cvt_pk_bf16_f32 v%d, v%d, v%d" % (a3, a2, a3))
                k.e("v_lshlrev_b32 v%d, 16, v%d" % (a2, a3))
                k.e("v_and_b32 v%d, 0xffff0000, v%d" % (a3, a3))
                k.e("v_add_f32 v%d, v%d, v%d" % (a0, a0, a2))
                k.e("v_add_f32 v%d, v%d, v%d" % (a1, a1, a3))
                k.e("v_cvt_pk_bf16_f32 v%d, v%d, v%d" % (X + j, a0, a1))
        else:
            k.e("s_waitcnt lgkmcnt(0)")
        sfx = ""
        if 'stnt' in DBG: sfx = " nt"
        if 'stsc1' in DBG: sfx = " sc1"
        if 'stsc01' in DBG: sfx = " sc0 sc1"
        if 'nost' not in DBG:
            k.e("buffer_store_dwordx4 %s, v%d, %s, s%d offen%s" % (vr(X, 4), t5, sr(S_SRDC, 4), S_T1, sfx))
        k.nop(1)


def emit_gelu2(k, x0, x1, t0, t1, c1, c2):
    k.e("v_pk_mul_f32 v[%d:%d], v[%d:%d], v[%d:%d]" % (t0, t0 + 1, x0, x0 + 1, x0, x0 + 1))
    k.e("v_pk_fma_f32 v[%d:%d], v[%d:%d], v[%d:%d], 1.0 op_sel_hi:[1,1,0]" % (t0, t0 + 1, t0, t0 + 1, c1, c1 + 1))
    k.e("v_pk_mul_f32 v[%d:%d], v[%d:%d], v[%d:%d]" % (t0, t0 + 1, t0, t0 + 1, x0, x0 + 1))
    k.e("v_pk_mul_f32 v[%d:%d], v[%d:%d], v[%d:%d]" % (t0, t0 + 1, t0, t0 + 1, c2, c2 + 1))
    k.e("v_exp_f32 v%d, v%d" % (t0, t0))
    k.e("v_exp_f32 v%d, v%d" % (t0 + 1, t0 + 1))
    k.nop(0)
    k.e("v_pk_add_f32 v[%d:%d], v[%d:%d], 1.0 op_sel_hi:[1,0]" % (t0, t0 + 1, t0, t0 + 1))
    k.e("v_rcp_f32 v%d, v%d" % (t0, t0))
    k.e("v_rcp_f32 v%d, v%d" % (t0 + 1, t0 + 1))
    k.nop(0)
    k.e("v_pk_mul_f32 v[%d:%d], v[%d:%d], v[%d:%d]" % (x0, x0 + 1, x0, x0 + 1, t0, t0 + 1))


def gemm_epilogue2(k, c, r, mode):
    if 'noepi' in DBG:
        return
    t0, t1, t2, t3, t4, t5, t6 = r.vt
    RCF = c.BN * 4
    TILE = c.BM * RCF
    ep = r.ep
    CPR = c.BN // 8
    RPI = 64 // CPR
    NI = c.BM // RPI // c.NW
    sh = CPR.bit_length() - 1
    pre = mode in ('resid', 'final')
    k.c("epilogue2 " + mode)
    k.e("v_and_b32 v%d, 63, v0" % t0)
    k.e("v_lshrrev_b32 v%d, %d, v%d" % (t1, sh, t0))
    k.e("s_mul_i32 s%d, s%d, %d" % (S_T0, S_WAVE, NI * RPI))
    k.e("v_add_u32 v%d, s%d, v%d" % (t1, S_T0, t1))
    k.e("v_and_b32 v%d, %d, v%d" % (t2, CPR - 1, t0))
    k.e("v_and_b32 v%d, 7, v%d" % (t3, t1))
    k.e("v_lshlrev_b32 v%d, 1, v%d" % (t4, t2))
    k.e("v_xor_b32 v%d, v%d, v%d" % (t3, t3, t4))
    k.e("v_mul_u32_u24 v%d, %d, v%d" % (t4, RCF, t1))
    k.e("v_lshl_add_u32 v%d, v%d, 4, v%d" % (t4, t3, t4))
    k.e("v_add_u32 v%d, s%d, v%d" % (t3, S_M0, t1))
    k.e("v_mul_lo_u32 v%d, v%d, s%d" % (t5, t3, S_LDC))
    k.e("v_lshl_add_u32 v%d, v%d, 4, v%d" % (t5, t2, t5))
    k.e("s_lshl_b32 s%d, s%d, 1" % (S_T0, S_N0))
    k.e("v_add_u32 v%d, s%d, v%d" % (t5, S_T0, t5))
    k.e("v_lshlrev_b32 v%d, 2, v%d" % (t6, t3))
    X = ep; X2 = ep + 4; Z = ep + 8; Z2 = ep + 12
    T = ep + 16; G1 = ep + 18; C1 = ep + 20; C2 = ep + 22; U = ep + 24
    YB = ep + 28
    GB = YB + 4 * NI
    if pre:
        for i in range(NI):
            k.e("s_mul_i32 s%d, s%d, %d" % (S_T1, S_LDC, i * RPI))
            k.e("buffer_load_dwordx4 %s, v%d, %s, s%d offen" % (vr(YB + 4 * i, 4), t5, sr(S_SRDR, 4), S_T1))
            if mode == 'final':
                k.e("buffer_load_dword v%d, v%d, %s, 0 offen offset:%d" % (GB + i, t6, sr(S_SRDG, 4), i * RPI * 4))
    k.nop(15)
    k.nop(7)
    k.e("s_and_b32 s%d, s%d, %d" % (S_T2, S_WAVE, c.WM - 1))
    k.e("s_lshr_b32 s%d, s%d, %d" % (S_T3, S_WAVE, c.WM.bit_length() - 1))
    k.e("v_and_b32 v%d, 31, v0" % t0)
    k.e("s_mul_i32 s%d, s%d, %d" % (S_T0, S_T2, c.TM * 32))
    k.e("v_add_u32 v%d, s%d, v%d" % (t0, S_T0, t0))
    k.e("v_mul_u32_u24 v%d, %d, v%d" % (t1, RCF, t0))
    k.e("v_and_b32 v%d, 7, v0" % t0)
    k.e("v_bfe_u32 v%d, v0, 5, 1" % t2)
    k.e("v_xor_b32 v%d, v%d, v%d" % (t0, t0, t2))
    k.e("s_mul_i32 s%d, s%d, %d" % (S_T0, S_T3, c.TN * 8))
    k.e("v_xor_b32 v%d, s%d, v%d" % (t0, S_T0, t0))
    k.e("v_lshl_add_u32 v%d, v%d, 4, v%d" % (t1, t0, t1))
    nset = 2 if mode == 'final' else 1
    for which in range(nset):
        if which == 1:
            k.e("v_add_u32 v%d, %d, v%d" % (t1, TILE, t1))
        for tm in range(c.TM):
            for tn in range(c.TN):
                a = r.acc[(tn, tm)] if which == 0 else r.save + (r.acc[(tn, tm)] - r.acc_base)
                for q in range(4):
                    k.e("v_xor_b32 v%d, %d, v%d" % (t0, (2 * q + 8 * tn) << 4, t1))
                    k.e("ds_write_b128 v%d, v[%d:%d] offset:%d" % (t0, a + 4 * q, a + 4 * q + 3, tm * 32 * RCF))
    k.e("s_waitcnt lgkmcnt(0)")
    k.e("s_barrier")
    k.e("s_mov_b32 s%d, 0" % S_T1)
    k.e("s_mul_i32 s%d, s%d, %d" % (S_T3, S_LDC, RPI))
    if mode == 'gelu':
        k.e("v_mov_b32 v%d, 0x3d372713" % C1); k.e("v_mov_b32 v%d, 0x3d372713" % (C1 + 1))
        k.e("v_mov_b32 v%d, 0xc0135761" % C2); k.e("v_mov_b32 v%d, 0xc0135761" % (C2 + 1))

    def body(i):
        k.e("v_xor_b32 v%d, 16, v%d" % (t0, t4))
        k.e("ds_read_b128 %s, v%d" % (vr(X, 4), t4))
        k.e("ds_read_b128 %s, v%d" % (vr(X2, 4), t0))
        if mode == 'final':
            k.e("v_add_u32 v%d, %d, v%d" % (t1, TILE, t4))
            k.e("v_add_u32 v%d, %d, v%d" % (t2, TILE, t0))
            k.e("ds_read_b128 %s, v%d" % (vr(Z, 4), t1))
            k.e("ds_read_b128 %s, v%d" % (vr(Z2, 4), t2))
        if pre and i == 0:
            k.e("s_waitcnt vmcnt(0) lgkmcnt(0)")
        else:
            k.e("s_waitcnt lgkmcnt(0)")
        G = GB + i if pre else None
        if mode == 'final':
            k.e("v_sub_f32 v%d, 1.0, v%d" % (G1, G))
            rnd_bf16(k, G1)
        for j in range(4):
            xa = X + 2 * j
            if mode == 'store':
                k.e("v_cvt_pk_bf16_f32 v%d, v%d, v%d" % (U + j, xa, xa + 1))
                continue
            k.e("v_cvt_pk_bf16_f32 v%d, v%d, v%d" % (T, xa, xa + 1))
            k.e("v_lshlrev_b32 v%d, 16, v%d" % (xa, T))
            k.e("v_and_b32 v%d, 0xffff0000, v%d" % (xa + 1, T))
            if mode == 'gelu':
                emit_gelu2(k, xa, xa + 1, T, None, C1, C2)
            else:
                Y = YB + 4 * i
                k.e("v_lshlrev_b32 v%d, 16, v%d" % (T, Y + j))
                k.e("v_and_b32 v%d, 0xffff0000, v%d" % (T + 1, Y + j))
                k.e("v_pk_add_f32 v[%d:%d], v[%d:%d], v[%d:%d]" % (xa, xa + 1, xa, xa + 1, T, T + 1))
                if mode == 'final':
                    k.e("v_cvt_pk_bf16_f32 v%d, v%d, v%d" % (T, xa, xa + 1))
                    k.e("v_lshlrev_b32 v%d, 16, v%d" % (xa, T))
                    k.e("v_and_b32 v%d, 0xffff0000, v%d" % (xa + 1, T))
                    k.e("v_mul_f32 v%d, v%d, v%d" % (xa, xa, G1))
                    k.e("v_mul_f32 v%d, v%d, v%d" % (xa + 1, xa + 1, G1))
                    k.e("v_cvt_pk_bf16_f32 v%d, v%d, v%d" % (T, xa, xa + 1))
                    k.e("v_lshlrev_b32 v%d, 16, v%d" % (xa, T))
                    k.e("v_and_b32 v%d, 0xffff0000, v%d" % (xa + 1, T))
                    za = Z + 2 * j
                    k.e("v_cvt_pk_bf16_f32 v%d, v%d, v%d" % (T, za, za + 1))
                    k.e("v_lshlrev_b32 v%d, 16, v%d" % (za, T))
                    k.e("v_and_b32 v%d, 0xffff0000, v%d" % (za + 1, T))
                    k.e("v_mul_f32 v%d, v%d, v%d" % (za, za, G))
                    k.e("v_mul_f32 v%d, v%d, v%d" % (za + 1, za + 1, G))
                    k.e("v_cvt_pk_bf16_f32 v%d, v%d, v%d" % (T, za, za + 1))
                    k.e("v_lshlrev_b32 v%d, 16, v%d" % (za, T))
                    k.e("v_and_b32 v%d, 0xffff0000, v%d" % (za + 1, T))
                    k.e("v_pk_add_f32 v[%d:%d], v[%d:%d], v[%d:%d]" % (xa, xa + 1, xa, xa + 1, za, za + 1))
            k.e("v_cvt_pk_bf16_f32 v%d, v%d, v%d" % (U + j, xa, xa + 1))
        k.e("buffer_store_dwordx4 %s, v%d, %s, s%d offen" % (vr(U, 4), t5, sr(S_SRDC, 4), S_T1))
        k.e("v_add_u32 v%d, %d, v%d" % (t4, RPI * RCF, t4))
        if RPI == 4:
            k.e("v_xor_b32 v%d, 64, v%d" % (t4, t4))
        k.e("s_add_u32 s%d, s%d, s%d" % (S_T1, S_T1, S_T3))

    if pre:
        for i in range(NI):
            body(i)
    else:
        k.e("s_mov_b32 s%d, %d" % (S_KT, NI))
        loop = k.lab("EPL")
        k.L(loop)
        body(0)
        k.e("s_sub_u32 s%d, s%d, 1" % (S_KT, S_KT))
        k.e("s_cmp_lg_u32 s%d, 0" % S_KT)
        k.e("s_cbranch_scc1 %s" % loop)


def stamp(k, idx):
    if 'stamp' not in DBG:
        return
    k.e("s_memtime s[%d:%d]" % (80 + 2 * idx, 81 + 2 * idx))


def stamp_flush(k, n):
    if 'stamp' not in DBG:
        return
    skip = k.lab("SKIPST")
    k.e("s_waitcnt lgkmcnt(0)")
    k.e("s_cmp_lg_u32 s2, 5")
    k.e("s_cbranch_scc1 %s" % skip)
    k.e("s_cmp_lg_u32 s%d, 0" % S_WAVE)
    k.e("s_cbranch_scc1 %s" % skip)
    k.e("s_load_dwordx2 s[56:57], s[0:1], 88")
    k.e("s_waitcnt lgkmcnt(0)")
    k.e("s_mov_b32 s58, 256")
    k.e("s_mov_b32 s59, 0x00020000")
    for i in range(n):
        k.e("v_mov_b32 v1, s%d" % (80 + 2 * i))
        k.e("v_mov_b32 v2, %d" % (4 * i))
        k.e("buffer_store_dword v1, v2, s[56:59], 0 offen")
    k.L(skip)


def rstamp_begin(k):
    if 'rstamp' in DBG:
        k.e("s_memrealtime s[70:71]")


def rstamp_end(k):
    if 'rstamp' not in DBG:
        return
    skip = k.lab("SKIPRS")
    k.e("s_memrealtime s[72:73]")
    k.e("s_waitcnt lgkmcnt(0)")
    k.e("s_cmp_lg_u32 s%d, 0" % S_WAVE)
    k.e("s_cbranch_scc1 %s" % skip)
    k.e("s_load_dwordx2 s[56:57], s[0:1], 96")
    k.e("s_waitcnt lgkmcnt(0)")
    k.e("s_add_u32 s56, s56, 0xc800000")
    k.e("s_addc_u32 s57, s57, 0")
    k.e("s_mov_b32 s58, 65536")
    k.e("s_mov_b32 s59, 0x00020000")
    k.e("s_lshl_b32 s74, s2, 3")
    k.e("v_mov_b32 v2, s70")
    k.e("v_mov_b32 v3, s72")
    k.e("v_mov_b32 v4, s74")
    k.e("buffer_store_dwordx2 v[2:3], v4, s[56:59], 0 offen")
    k.L(skip)


def gemm_head(k, nwg):
    end = k.lab("END")
    for d in DBG:
        if d.startswith('lim'):
            nwg = int(d[3:])
    k.e("s_cmp_ge_u32 s2, %d" % nwg)
    k.e("s_cbranch_scc1 %s" % end)
    k.e("v_lshrrev_b32 v1, 6, v0")
    k.nop(0)
    k.e("v_readfirstlane_b32 s%d, v1" % S_WAVE)
    return end


def setup_prefetch(k, c, r, items):
    c.PF = len(items)
    c.D = c.XI + c.WI + c.PF
    for p, (key, nb) in enumerate(items):
        load_ptr(k, 74, key)
        k.e("s_waitcnt lgkmcnt(0)")
        make_srd(k, 64 + 4 * p, 74, 0, nb)
    k.e("v_and_b32 v%d, 63, v0" % r.vpf)
    k.e("v_cmp_gt_u32 vcc, 2, v%d" % r.vpf)
    k.e("v_lshlrev_b32 v%d, 7, v%d" % (r.vpf, r.vpf))
    k.e("v_mov_b32 v%d, 0x7ffffff0" % (r.vpf + 1))
    k.e("v_cndmask_b32 v%d, v%d, v%d, vcc" % (r.vpf, r.vpf + 1, r.vpf))
    k.e("s_lshl_b32 s72, s2, 3")
    k.e("s_add_u32 s72, s72, s%d" % S_WAVE)
    k.e("s_mul_i32 s72, s72, s%d" % S_NK)
    k.e("s_lshl_b32 s72, s72, 8")


def gen_gemm1():
    c = GemmCfg(4, 2, 2, 2)
    r = GemmRegsPP(c)
    k = K("gemm1_kernel")
    end = gemm_head(k, 256)
    stamp(k, 0)
    rstamp_begin(k)
    load_ptr(k, 44, "A_x"); load_ptr(k, 46, "wqkv"); load_ptr(k, 48, "ws"); load_ptr(k, 50, "w1")
    k.e("s_waitcnt lgkmcnt(0)")
    pb = k.lab("PB"); go = k.lab("GO")
    k.e("s_and_b32 s%d, s2, 1" % S_M0)
    k.e("s_lshl_b32 s%d, s%d, 2" % (S_M0, S_M0))
    k.e("s_bfe_u32 s%d, s2, 0x20003" % S_T0)
    k.e("s_add_u32 s%d, s%d, s%d" % (S_M0, S_M0, S_T0))
    k.e("s_lshl_b32 s%d, s%d, 8" % (S_M0, S_M0))
    k.e("s_bfe_u32 s%d, s2, 0x20001" % S_T1)
    k.e("s_lshl_b32 s%d, s%d, 3" % (S_T1, S_T1))
    k.e("s_lshr_b32 s%d, s2, 5" % S_T0)
    k.e("s_add_u32 s%d, s%d, s%d" % (S_T1, S_T1, S_T0))
    k.e("s_cmp_ge_u32 s%d, 24" % S_T1)
    k.e("s_cbranch_scc1 %s" % pb)
    make_srd(k, S_SRDX, 44, 0, SZ_ACT)
    make_srd(k, S_SRDW, 46, 0, 1024 * 3072 * 2)
    make_srd(k, S_SRDC, 48, WS_QKV, SZ_QKV)
    k.e("s_mov_b32 s%d, 2048" % S_LDX); k.e("s_mov_b32 s%d, 6144" % S_LDW); k.e("s_mov_b32 s%d, 6144" % S_LDC)
    k.e("s_mov_b32 s%d, 0" % S_FLAG)
    k.e("s_branch %s" % go)
    k.L(pb)
    make_srd(k, S_SRDX, 48, WS_LNX, SZ_ACT)
    make_srd(k, S_SRDW, 50, 0, 1024 * 1024 * 2)
    make_srd(k, S_SRDC, 48, WS_H, SZ_ACT)
    k.e("s_mov_b32 s%d, 2048" % S_LDX); k.e("s_mov_b32 s%d, 2048" % S_LDW); k.e("s_mov_b32 s%d, 2048" % S_LDC)
    k.e("s_mov_b32 s%d, 1" % S_FLAG)
    k.e("s_sub_u32 s%d, s%d, 24" % (S_T1, S_T1))
    k.L(go)
    k.e("s_mov_b32 s%d, 16" % S_NK)
    k.e("s_lshl_b32 s%d, s%d, 7" % (S_N0, S_T1))
    setup_prefetch(k, c, r, [('w3', 1024 * 3584 * 2), ('w2', 1024 * 1024 * 2)])
    gemm_lane_setup(k, c, r)
    k.e("s_mul_i32 s%d, s%d, s%d" % (S_KX, S_M0, S_LDX))
    k.e("s_lshl_b32 s%d, s%d, 1" % (S_KW, S_N0))
    stamp(k, 1)
    gemm_kloop_pp(k, c, r)
    stamp(k, 2)
    eg = k.lab("EG")
    k.e("s_cmp_eq_u32 s%d, 1" % S_FLAG)
    k.e("s_cbranch_scc1 %s" % eg)
    gemm_epilogue2(k, c, r, 'store')
    stamp(k, 3)
    k.e('s_waitcnt vmcnt(0)')
    stamp(k, 4)
    stamp_flush(k, 5)
    rstamp_end(k)
    k.e("s_endpgm")
    k.L(eg)
    gemm_epilogue2(k, c, r, 'gelu')
    k.L(end)
    k.e("s_endpgm")
    return k, r.end, c.LDS, 512


def gen_gemm2():
    c = GemmCfg(2, 2, 2, 1)
    r = GemmRegs(c, shifted=True)
    r.ep = r.end
    k = K("gemm2_kernel")
    end = gemm_head(k, 256)
    load_ptr(k, 44, "A_x"); load_ptr(k, 46, "w2"); load_ptr(k, 48, "ws")
    k.e("s_waitcnt lgkmcnt(0)")
    make_srd(k, S_SRDX, 48, WS_H, SZ_ACT)
    make_srd(k, S_SRDW, 46, 0, 1024 * 1024 * 2)
    make_srd(k, S_SRDC, 48, WS_X1, SZ_ACT)
    make_srd(k, S_SRDR, 44, 0, SZ_ACT)
    k.e("s_mov_b32 s%d, 2048" % S_LDX); k.e("s_mov_b32 s%d, 2048" % S_LDW); k.e("s_mov_b32 s%d, 2048" % S_LDC)
    k.e("s_mov_b32 s%d, 16" % S_NK)
    k.e("s_and_b32 s%d, s2, 15" % S_M0)
    k.e("s_lshl_b32 s%d, s%d, 7" % (S_M0, S_M0))
    k.e("s_lshr_b32 s%d, s2, 4" % S_N0)
    k.e("s_lshl_b32 s%d, s%d, 6" % (S_N0, S_N0))
    gemm_lane_setup(k, c, r)
    k.e("s_mov_b32 s%d, 0" % S_KX)
    k.e("s_lshl_b32 s%d, s%d, 1" % (S_KW, S_N0))
    gemm_kloop(k, c, r, shifted=True)
    k.e('s_barrier')
    gemm_epilogue2(k, c, r, 'resid')
    k.L(end)
    k.e("s_endpgm")
    return k, r.ep + 48, c.LDS, 256


def gen_gemm4():
    c = GemmCfg(4, 2, 2, 2)
    r = GemmRegsPP(c)
    k = K("gemm4_kernel")
    end = gemm_head(k, 224)
    load_ptr(k, 46, "w3"); load_ptr(k, 48, "ws")
    k.e("s_waitcnt lgkmcnt(0)")
    make_srd(k, S_SRDX, 48, WS_LNX1, SZ_ACT)
    make_srd(k, S_SRDW, 46, 0, 1024 * 3584 * 2)
    make_srd(k, S_SRDC, 48, WS_H3, SZ_H3)
    k.e("s_mov_b32 s%d, 2048" % S_LDX); k.e("s_mov_b32 s%d, 7168" % S_LDW); k.e("s_mov_b32 s%d, 7168" % S_LDC)
    k.e("s_mov_b32 s%d, 16" % S_NK)
    k.e("s_and_b32 s%d, s2, 7" % S_M0)
    k.e("s_lshl_b32 s%d, s%d, 8" % (S_M0, S_M0))
    k.e("s_lshr_b32 s%d, s2, 3" % S_N0)
    k.e("s_lshl_b32 s%d, s%d, 7" % (S_N0, S_N0))
    setup_prefetch(k, c, r, [('w4', 1024 * 3584 * 2), ('wo', 1024 * 1024 * 2)])
    gemm_lane_setup(k, c, r)
    k.e("s_mul_i32 s%d, s%d, s%d" % (S_KX, S_M0, S_LDX))
    k.e("s_lshl_b32 s%d, s%d, 1" % (S_KW, S_N0))
    gemm_kloop_pp(k, c, r)
    gemm_epilogue2(k, c, r, 'gelu')
    k.L(end)
    k.e("s_endpgm")
    return k, r.end, c.LDS, 512


def gen_gemm5():
    c = GemmCfg(2, 4, 2, 1, NS=4)
    r = GemmRegsPP(c, nsave=32)
    k = K("gemm5_kernel")
    end = gemm_head(k, 256)
    stamp(k, 0)
    load_ptr(k, 44, "wo"); load_ptr(k, 46, "w4"); load_ptr(k, 48, "ws"); load_ptr(k, 50, "out")
    k.e("s_waitcnt lgkmcnt(0)")
    make_srd(k, S_SRDC, 50, 0, SZ_ACT)
    make_srd(k, S_SRDR, 48, WS_X1, SZ_ACT)
    make_srd(k, S_SRDG, 48, WS_G, 2048 * 4)
    make_srd(k, 52, 48, WS_PART, 128 * 65536)
    make_srd(k, 56, 48, WS_FLAG, 1024)
    k.e("s_mov_b32 s%d, 2048" % S_LDW); k.e("s_mov_b32 s%d, 2048" % S_LDC)
    k.e("s_bfe_u32 s%d, s2, 0x10003" % S_FLAG)
    k.e("s_lshr_b32 s60, s2, 4")
    k.e("s_lshl_b32 s60, s60, 3")
    k.e("s_and_b32 s61, s2, 7")
    k.e("s_add_u32 s60, s60, s61")
    k.e("s_and_b32 s%d, s60, 15" % S_M0)
    k.e("s_lshl_b32 s%d, s%d, 7" % (S_M0, S_M0))
    k.e("s_lshr_b32 s%d, s60, 4" % S_N0)
    k.e("s_lshl_b32 s%d, s%d, 7" % (S_N0, S_N0))
    h1 = k.lab("HALF1"); fin = k.lab("FIN")
    k.e("s_cmp_eq_u32 s%d, 1" % S_FLAG)
    k.e("s_cbranch_scc1 %s" % h1)
    make_srd(k, S_SRDX, 48, WS_O, SZ_ACT)
    make_srd(k, S_SRDW, 44, 0, 1024 * 1024 * 2)
    k.e("s_mov_b32 s%d, 2048" % S_LDX)
    k.e("s_mov_b32 s%d, 16" % S_NK)
    gemm_lane_setup(k, c, r)
    k.e("s_mul_i32 s%d, s%d, s%d" % (S_KX, S_M0, S_LDX))
    k.e("s_lshl_b32 s%d, s%d, 1" % (S_KW, S_N0))
    gemm_kloop_pp(k, c, r)
    stamp(k, 1)
    k.nop(15); k.nop(7)
    for i in range(r.nacc):
        k.e("v_mov_b32 v%d, v%d" % (r.save + i, r.acc_base + i))
    make_srd(k, S_SRDX, 48, WS_H3, SZ_H3)
    make_srd(k, S_SRDW, 46, 0, 3584 * 1024 * 2)
    k.e("s_mov_b32 s%d, 7168" % S_LDX)
    k.e("s_mov_b32 s%d, 20" % S_NK)
    gemm_lane_setup(k, c, r)
    k.e("s_mul_i32 s%d, s%d, s%d" % (S_KX, S_M0, S_LDX))
    k.e("s_lshl_b32 s%d, s%d, 1" % (S_KW, S_N0))
    gemm_kloop_pp(k, c, r)
    stamp(k, 2)
    k.nop(15); k.nop(7)
    poll = k.lab("POLL"); got = k.lab("GOT")
    k.e("s_lshl_b32 s61, s60, 2")
    k.e("v_mov_b32 v1, s61")
    k.e("s_mov_b32 s62, 0")
    k.L(poll)
    k.e("buffer_load_dword v2, v1, s[56:59], 0 offen sc1")
    k.e("s_waitcnt vmcnt(0)")
    k.e("v_readfirstlane_b32 s63, v2")
    k.e("s_cmp_eq_u32 s63, 0x5a5a")
    k.e("s_cbranch_scc1 %s" % got)
    k.e("s_sleep 2")
    k.e("s_add_u32 s62, s62, 1")
    k.e("s_cmp_lt_u32 s62, 0x400000")
    k.e("s_cbranch_scc1 %s" % poll)
    k.L(got)
    stamp(k, 3)
    k.e("s_barrier")
    k.e("s_lshl_b32 s61, s60, 16")
    k.e("s_mul_i32 s62, s%d, 8192" % S_WAVE)
    k.e("s_add_u32 s61, s61, s62")
    k.e("v_and_b32 v1, 63, v0")
    k.e("v_lshlrev_b32 v1, 4, v1")
    F = r.FX[0][0]
    for i in range(8):
        k.e("buffer_load_dwordx4 %s, v1, s[52:55], s61 offen offset:%d sc1" % (vr(F + 4 * i, 4), (i & 3) * 1024))
        if i == 3:
            k.e("s_add_u32 s61, s61, 4096")
    k.e("s_waitcnt vmcnt(0)")
    for i in range(32):
        k.e("v_add_f32 v%d, v%d, v%d" % (r.acc_base + i, r.acc_base + i, F + i))
    gemm_epilogue2(k, c, r, 'final')
    stamp(k, 4)
    stamp_flush(k, 5)
    k.e("s_endpgm")
    k.L(h1)
    make_srd(k, S_SRDX, 48, WS_H3, SZ_H3)
    make_srd(k, S_SRDW, 46, 0, 3584 * 1024 * 2)
    k.e("s_mov_b32 s%d, 7168" % S_LDX)
    k.e("s_mov_b32 s%d, 36" % S_NK)
    gemm_lane_setup(k, c, r)
    k.e("s_mul_i32 s%d, s%d, s%d" % (S_KX, S_M0, S_LDX))
    k.e("s_add_u32 s%d, s%d, %d" % (S_KX, S_KX, 20 * 128))
    k.e("s_lshl_b32 s%d, s%d, 1" % (S_KW, S_N0))
    k.e("s_add_u32 s%d, s%d, %d" % (S_KW, S_KW, 20 * 64 * 2048))
    gemm_kloop_pp(k, c, r)
    k.nop(15); k.nop(7)
    k.e("s_lshl_b32 s61, s60, 16")
    k.e("s_mul_i32 s62, s%d, 8192" % S_WAVE)
    k.e("s_add_u32 s61, s61, s62")
    k.e("v_and_b32 v1, 63, v0")
    k.e("v_lshlrev_b32 v1, 4, v1")
    for i in range(8):
        k.e("buffer_store_dwordx4 %s, v1, s[52:55], s61 offen offset:%d sc1" % (vr(r.acc_base + 4 * i, 4), (i & 3) * 1024))
        if i == 3:
            k.e("s_add_u32 s61, s61, 4096")
    k.e("s_waitcnt vmcnt(0)")
    k.e("s_barrier")
    k.e("s_cmp_lg_u32 s%d, 0" % S_WAVE)
    k.e("s_cbranch_scc1 %s" % end)
    k.e("s_lshl_b32 s61, s60, 2")
    k.e("v_mov_b32 v1, s61")
    k.e("v_mov_b32 v2, 0x5a5a")
    k.e("v_cmp_eq_u32 vcc, 0, v0")
    k.e("s_and_saveexec_b64 s[62:63], vcc")
    k.e("buffer_store_dword v2, v1, s[56:59], 0 offen sc1")
    k.L(end)
    k.e("s_endpgm")
    return k, r.end, c.LDS, 512


def emit_softmax_pm(k, d, ep_, em_, tmp, vperm):
    mx, mn, t0, t1, sp, sm = tmp, tmp + 1, tmp + 2, tmp + 3, tmp + 4, tmp + 5
    E = tmp + 6
    for i in range(8):
        k.e("v_cvt_pk_bf16_f32 v%d, v%d, v%d" % (t0, d + 2 * i, d + 2 * i + 1))
        k.e("v_lshlrev_b32 v%d, 16, v%d" % (d + 2 * i, t0))
        k.e("v_and_b32 v%d, 0xffff0000, v%d" % (d + 2 * i + 1, t0))
    k.e("v_max_f32 v%d, v%d, v%d" % (mx, d, d + 1))
    k.e("v_min_f32 v%d, v%d, v%d" % (mn, d, d + 1))
    for i in range(1, 8):
        k.e("v_max3_f32 v%d, v%d, v%d, v%d" % (mx, mx, d + 2 * i, d + 2 * i + 1))
        k.e("v_min3_f32 v%d, v%d, v%d, v%d" % (mn, mn, d + 2 * i, d + 2 * i + 1))
    k.e("ds_bpermute_b32 v%d, v%d, v%d" % (t0, vperm, mx))
    k.e("ds_bpermute_b32 v%d, v%d, v%d" % (t1, vperm, mn))
    k.e("s_waitcnt lgkmcnt(0)")
    k.e("v_max_f32 v%d, v%d, v%d" % (mx, mx, t0))
    k.e("v_min_f32 v%d, v%d, v%d" % (mn, mn, t1))
    k.e("v_mul_f32 v%d, 0x%x, v%d" % (mx, LOG2E ^ 0x80000000, mx))
    k.e("v_mul_f32 v%d, 0x%x, v%d" % (mn, LOG2E, mn))
    k.e("v_mov_b32 v%d, 0x%x" % (t0, LOG2E))
    for i in range(16):
        k.e("v_fma_f32 v%d, v%d, v%d, v%d" % (E + i, d + i, t0, mx))
        k.e("v_fma_f32 v%d, -v%d, v%d, v%d" % (E + 16 + i, d + i, t0, mn))
        k.e("v_exp_f32 v%d, v%d" % (E + i, E + i))
        k.e("v_exp_f32 v%d, v%d" % (E + 16 + i, E + 16 + i))
    k.nop(0)
    k.e("v_add_f32 v%d, v%d, v%d" % (sp, E, E + 1))
    k.e("v_add_f32 v%d, v%d, v%d" % (sm, E + 16, E + 17))
    for i in range(2, 16):
        k.e("v_add_f32 v%d, v%d, v%d" % (sp, sp, E + i))
        k.e("v_add_f32 v%d, v%d, v%d" % (sm, sm, E + 16 + i))
    k.e("ds_bpermute_b32 v%d, v%d, v%d" % (t0, vperm, sp))
    k.e("ds_bpermute_b32 v%d, v%d, v%d" % (t1, vperm, sm))
    k.e("s_waitcnt lgkmcnt(0)")
    k.e("v_add_f32 v%d, v%d, v%d" % (sp, sp, t0))
    k.e("v_add_f32 v%d, v%d, v%d" % (sm, sm, t1))
    k.e("v_rcp_f32 v%d, v%d" % (sp, sp))
    k.e("v_rcp_f32 v%d, v%d" % (sm, sm))
    k.nop(0)
    for i in range(8):
        k.e("v_mul_f32 v%d, v%d, v%d" % (E + 2 * i, E + 2 * i, sp))
        k.e("v_mul_f32 v%d, v%d, v%d" % (E + 2 * i + 1, E + 2 * i + 1, sp))
        k.e("v_cvt_pk_bf16_f32 v%d, v%d, v%d" % (ep_ + i, E + 2 * i, E + 2 * i + 1))
        k.e("v_mul_f32 v%d, v%d, v%d" % (E + 16 + 2 * i, E + 16 + 2 * i, sm))
        k.e("v_mul_f32 v%d, v%d, v%d" % (E + 16 + 2 * i + 1, E + 16 + 2 * i + 1, sm))
        k.e("v_cvt_pk_bf16_f32 v%d, v%d, v%d" % (em_ + i, E + 16 + 2 * i, E + 16 + 2 * i + 1))


def emit_wphi_load(k, srd, s_hd, wp, vlane31, vh, t0, tmp=144):
    k.e("v_lshlrev_b32 v%d, 9, v%d" % (t0, vh))
    k.e("v_lshl_add_u32 v%d, v%d, 1, v%d" % (t0, vlane31, t0))
    k.e("s_lshl_b32 s40, s%d, 11" % s_hd)
    for t in range(2):
        for e in range(8):
            k.e("buffer_load_ushort v%d, v%d, %s, s40 offen offset:%d" % (tmp + 8 * t + e, t0, sr(srd, 4), (16 * t + e) * 64))
    k.e("s_waitcnt vmcnt(0)")
    for t in range(2):
        for e in range(0, 8, 2):
            k.e("v_lshl_or_b32 v%d, v%d, 16, v%d" % (wp + 4 * t + e // 2, tmp + 8 * t + e + 1, tmp + 8 * t + e))


def gen_kv():
    k = K("kv_kernel")
    end = k.lab("END")
    k.e("s_cmp_ge_u32 s2, 256")
    k.e("s_cbranch_scc1 %s" % end)
    load_ptr(k, 4, "ws"); load_ptr(k, 6, "w_phi")
    k.e("v_lshrrev_b32 v1, 6, v0")
    k.nop(0)
    k.e("v_readfirstlane_b32 s12, v1")
    k.e("s_waitcnt lgkmcnt(0)")
    make_srd(k, 16, 4, WS_QKV, SZ_QKV)
    make_srd(k, 20, 6, 0, 32 * 32 * 32 * 2)
    make_srd(k, 24, 4, WS_KVP, 256 * KVP_STRIDE)
    k.e("s_and_b32 s13, s2, 31")
    k.e("s_lshr_b32 s14, s2, 5")
    k.e("v_and_b32 v1, 63, v0")
    k.e("v_and_b32 v2, 31, v0")
    k.e("v_bfe_u32 v3, v0, 5, 1")
    k.e("v_xor_b32 v4, 32, v1")
    k.e("v_lshlrev_b32 v4, 2, v4")
    WP = 8
    emit_wphi_load(k, 20, 13, WP, 2, 3, 5)
    k.e("s_mul_i32 s15, s12, 6144")
    k.e("v_lshlrev_b32 v5, 8, v3")
    k.e("v_lshl_add_u32 v5, v2, 1, v5")
    k.e("v_add_u32 v5, s15, v5")
    k.e("v_lshlrev_b32 v6, 6, v2")
    k.e("v_lshl_add_u32 v6, v3, 4, v6")
    k.e("v_add_u32 v6, s15, v6")
    k.e("v_bfe_u32 v7, v0, 2, 2")
    k.e("v_lshl_add_u32 v7, v3, 3, v7")
    k.e("v_lshlrev_b32 v7, 6, v7")
    k.e("v_bfe_u32 v16, v0, 4, 1")
    k.e("v_lshl_add_u32 v7, v16, 5, v7")
    k.e("v_and_b32 v16, 3, v0")
    k.e("v_lshl_add_u32 v7, v16, 3, v7")
    k.e("v_add_u32 v7, s15, v7")
    k.e("v_add_u32 v7, 4096, v7")
    k.e("v_lshlrev_b32 v17, 4, v1")
    k.e("v_add_u32 v17, s15, v17")
    for i in range(4):
        k.e("v_mov_b32 v%d, 0x3f803f80" % (20 + i))
    D2 = [64, 80]
    D3 = [96, 112]
    for i in range(64):
        k.e("v_mov_b32 v%d, 0" % (64 + i))
    D1 = 128
    KF = 24
    VT = 32
    PP, PM = 40, 48
    AF = 56
    BF = 60
    TMP = 144
    for tile in range(2):
        k.e("s_lshl_b32 s30, s14, 8")
        k.e("s_lshl_b32 s31, s12, 6")
        k.e("s_add_u32 s30, s30, s31")
        k.e("s_add_u32 s30, s30, %d" % (tile * 32))
        k.e("s_mul_i32 s31, s30, 6144")
        k.e("s_lshl_b32 s32, s13, 6")
        k.e("s_add_u32 s31, s31, s32")
        k.e("v_mul_u32_u24 v18, 6144, v2")
        k.e("v_lshl_add_u32 v18, v3, 4, v18")
        k.e("s_add_u32 s33, s31, 2048")
        k.e("buffer_load_dwordx4 v[%d:%d], v18, s[16:19], s33 offen" % (KF, KF + 3))
        k.e("buffer_load_dwordx4 v[%d:%d], v18, s[16:19], s33 offen offset:32" % (KF + 4, KF + 7))
        k.e("v_lshrrev_b32 v19, 2, v1")
        k.e("v_mul_u32_u24 v19, 6144, v19")
        k.e("v_and_b32 v16, 3, v1")
        k.e("v_lshl_add_u32 v19, v16, 4, v19")
        k.e("s_add_u32 s33, s31, 4096")
        k.e("buffer_load_dwordx4 v[%d:%d], v19, s[16:19], s33 offen" % (VT, VT + 3))
        k.e("s_add_u32 s33, s33, %d" % (16 * 6144))
        k.e("buffer_load_dwordx4 v[%d:%d], v19, s[16:19], s33 offen" % (VT + 4, VT + 7))
        for i in range(16):
            k.e("v_mov_b32 v%d, 0" % (D1 + i))
        k.e("s_waitcnt vmcnt(0)")
        k.e("ds_write_b128 v17, v[%d:%d] offset:4096" % (VT, VT + 3))
        k.e("ds_write_b128 v17, v[%d:%d] offset:5120" % (VT + 4, VT + 7))
        for t in range(2):
            k.e("v_mfma_f32_32x32x16_bf16 %s, %s, %s, %s" % (vr(D1, 16), vr(WP + 4 * t, 4), vr(KF + 4 * t, 4), vr(D1, 16)))
        k.nop(15); k.nop(3)
        emit_softmax_pm(k, D1, PP, PM, TMP, 4)
        for half, P in ((0, PP), (1, PM)):
            for i in range(8):
                r0 = 2 * i
                f = 8 * (r0 >> 2) + (r0 & 3)
                k.e("ds_write_b16 v5, v%d offset:%d" % (P + i, half * 2048 + f * 64))
                k.e("ds_write_b16_d16_hi v5, v%d offset:%d" % (P + i, half * 2048 + (f + 1) * 64))
        k.e("s_waitcnt lgkmcnt(0)")
        for t in range(2):
            k.e("ds_read_b64_tr_b16 %s, v7 offset:%d" % (vr(BF, 2), (16 * t) * 64))
            k.e("ds_read_b64_tr_b16 %s, v7 offset:%d" % (vr(BF + 2, 2), (16 * t + 4) * 64))
            for ft in range(2):
                k.e("ds_read_b128 %s, v6 offset:%d" % (vr(AF, 4), ft * 2048 + t * 32))
                k.e("s_waitcnt lgkmcnt(0)")
                k.e("v_mfma_f32_32x32x16_bf16 %s, %s, %s, %s" % (vr(D2[ft], 16), vr(AF, 4), vr(BF, 4), vr(D2[ft], 16)))
                k.e("v_mfma_f32_32x32x16_bf16 %s, %s, %s, %s" % (vr(D3[ft], 16), vr(AF, 4), vr(20, 4), vr(D3[ft], 16)))
                k.nop(7)
        k.nop(7)
    k.nop(15); k.nop(3)
    k.e("s_mul_i32 s15, s12, 8448")
    k.e("v_lshlrev_b32 v5, 9, v3")
    k.e("v_lshl_add_u32 v5, v2, 2, v5")
    k.e("v_add_u32 v5, s15, v5")
    k.e("v_add_u32 v5, 24576, v5")
    for ft in range(2):
        for r_ in range(16):
            f = 32 * ft + 8 * (r_ >> 2) + (r_ & 3)
            k.e("ds_write_b32 v5, v%d offset:%d" % (D2[ft] + r_, f * 128))
    k.e("v_lshlrev_b32 v6, 4, v3")
    k.e("v_add_u32 v6, s15, v6")
    k.e("v_add_u32 v6, 24576, v6")
    for ft in range(2):
        for r_ in range(16):
            f = 32 * ft + 8 * (r_ >> 2) + (r_ & 3)
            k.e("ds_write_b32 v6, v%d offset:%d" % (D3[ft] + r_, 8192 + f * 4))
    k.e("s_waitcnt lgkmcnt(0)")
    k.e("s_barrier")
    k.e("s_lshl_b32 s30, s13, 3")
    k.e("s_add_u32 s30, s30, s14")
    k.e("s_mul_i32 s30, s30, %d" % KVP_STRIDE)
    k.e("v_lshlrev_b32 v5, 2, v0")
    for j in range(9):
        if j == 8:
            k.e("v_cmp_gt_u32 vcc, 64, v0")
            k.e("s_and_saveexec_b64 s[42:43], vcc")
        for w in range(4):
            k.e("ds_read_b32 v%d, v5 offset:%d" % (8 + w, 24576 + w * 8448 + j * 1024))
        k.e("s_waitcnt lgkmcnt(0)")
        k.e("v_add_f32 v8, v8, v9")
        k.e("v_add_f32 v10, v10, v11")
        k.e("v_add_f32 v8, v8, v10")
        k.e("s_add_u32 s31, s30, %d" % (j * 1024))
        k.e("buffer_store_dword v8, v5, s[24:27], s31 offen")
    k.L(end)
    k.e("s_endpgm")
    return k, 184, 24576 + 4 * 8448, 256


def gen_attn(nwaves=8):
    k = K("attn_kernel")
    end = k.lab("END")
    k.e("s_cmp_ge_u32 s2, 32")
    k.e("s_cbranch_scc1 %s" % end)
    load_ptr(k, 4, "ws"); load_ptr(k, 6, "w_phi")
    k.e("v_lshrrev_b32 v1, 6, v0")
    k.nop(0)
    k.e("v_readfirstlane_b32 s12, v1")
    k.e("s_waitcnt lgkmcnt(0)")
    make_srd(k, 16, 4, WS_QKV, SZ_QKV)
    make_srd(k, 20, 6, 0, 32 * 32 * 32 * 2)
    make_srd(k, 24, 4, WS_KVP, 256 * KVP_STRIDE)
    make_srd(k, 36, 4, WS_O, SZ_ACT)
    k.e("s_mov_b32 s13, s2")
    k.e("v_and_b32 v1, 63, v0")
    k.e("v_and_b32 v2, 31, v0")
    k.e("v_bfe_u32 v3, v0, 5, 1")
    k.e("v_xor_b32 v4, 32, v1")
    k.e("v_lshlrev_b32 v4, 2, v4")
    WP = 8
    s1done = k.lab("S1D")
    k.e("s_cmp_ge_u32 s12, 4")
    k.e("s_cbranch_scc1 %s" % s1done)
    k.e("s_mul_i32 s30, s13, %d" % (8 * KVP_STRIDE))
    k.e("v_lshlrev_b32 v5, 2, v0")
    k.e("v_lshlrev_b32 v6, 7, v2")
    k.e("v_lshrrev_b32 v7, 5, v0")
    k.e("v_lshl_add_u32 v6, v7, 1, v6")
    for j in range(8):
        for cch in range(8):
            k.e("s_add_u32 s31, s30, %d" % (cch * KVP_STRIDE + j * 1024))
            k.e("buffer_load_dword v%d, v5, s[24:27], s31 offen" % (64 + j * 8 + cch))
    k.e("v_cmp_gt_u32 vcc, 64, v0")
    k.e("s_and_saveexec_b64 s[42:43], vcc")
    for cch in range(8):
        k.e("s_add_u32 s31, s30, %d" % (cch * KVP_STRIDE + 8 * 1024))
        k.e("buffer_load_dword v%d, v5, s[24:27], s31 offen" % (128 + cch))
    k.e("s_mov_b64 exec, s[42:43]")
    k.e("s_waitcnt vmcnt(0)")
    for j in range(9):
        b = 64 + j * 8
        for cch in range(1, 8):
            k.e("v_add_f32 v%d, v%d, v%d" % (b, b, b + cch))
        k.e("v_cvt_pk_bf16_f32 v%d, v%d, v%d" % (b, b, b))
        if j < 8:
            k.e("ds_write_b16 v6, v%d offset:%d" % (b, 16 * j))
    k.e("v_lshlrev_b32 v6, 1, v0")
    k.e("v_add_u32 v6, 4096, v6")
    k.e("s_and_saveexec_b64 s[42:43], vcc")
    k.e("ds_write_b16 v6, v128")
    k.e("s_mov_b64 exec, s[42:43]")
    k.L(s1done)
    emit_wphi_load(k, 20, 13, WP, 2, 3, 5)
    k.e("s_waitcnt lgkmcnt(0)")
    k.e("s_barrier")
    k.e("v_lshlrev_b32 v5, 7, v2")
    k.e("v_lshl_add_u32 v5, v3, 3, v5")
    k.e("v_lshlrev_b32 v6, 3, v3")
    k.e("v_add_u32 v6, 4096, v6")
    QF = 24
    PP, PM = 40, 48
    AF, ZF = 56, 60
    DN, DD = 64, 80
    D1 = 128
    TMP = 144
    QN = 184
    k.e("s_mov_b32 s44, s12")
    k.e("v_mul_u32_u24 v19, 6144, v2")
    k.e("v_lshl_add_u32 v19, v3, 4, v19")
    k.e("s_lshl_b32 s32, s13, 6")
    k.e("s_mul_i32 s45, s44, %d" % (32 * 6144))
    k.e("s_add_u32 s45, s45, s32")
    k.e("buffer_load_dwordx4 v[%d:%d], v19, s[16:19], s45 offen" % (QN, QN + 3))
    k.e("buffer_load_dwordx4 v[%d:%d], v19, s[16:19], s45 offen offset:32" % (QN + 4, QN + 7))
    loop = k.lab("TL")
    k.L(loop)
    k.e("s_lshl_b32 s30, s44, 5")
    k.e("s_waitcnt vmcnt(0)")
    for i in range(8):
        k.e("v_mov_b32 v%d, v%d" % (QF + i, QN + i))
    k.e("s_add_u32 s45, s45, %d" % (nwaves * 32 * 6144))
    k.e("buffer_load_dwordx4 v[%d:%d], v19, s[16:19], s45 offen" % (QN, QN + 3))
    k.e("buffer_load_dwordx4 v[%d:%d], v19, s[16:19], s45 offen offset:32" % (QN + 4, QN + 7))
    for i in range(16):
        k.e("v_mov_b32 v%d, 0" % (D1 + i))
    for i in range(32):
        k.e("v_mov_b32 v%d, 0" % (DN + i))
    for t in range(2):
        k.e("v_mfma_f32_32x32x16_bf16 %s, %s, %s, %s" % (vr(D1, 16), vr(WP + 4 * t, 4), vr(QF + 4 * t, 4), vr(D1, 16)))
    k.nop(15); k.nop(3)
    emit_softmax_pm(k, D1, PP, PM, TMP, 4)
    for tt in range(4):
        B = (PP if tt < 2 else PM) + 4 * (tt & 1)
        k.e("ds_read_b64 %s, v5 offset:%d" % (vr(AF, 2), tt * 32))
        k.e("ds_read_b64 %s, v5 offset:%d" % (vr(AF + 2, 2), tt * 32 + 16))
        k.e("ds_read_b64 %s, v6 offset:%d" % (vr(ZF, 2), tt * 32))
        k.e("ds_read_b64 %s, v6 offset:%d" % (vr(ZF + 2, 2), tt * 32 + 16))
        k.e("s_waitcnt lgkmcnt(0)")
        k.e("v_mfma_f32_32x32x16_bf16 %s, %s, %s, %s" % (vr(DN, 16), vr(AF, 4), vr(B, 4), vr(DN, 16)))
        k.e("v_mfma_f32_32x32x16_bf16 %s, %s, %s, %s" % (vr(DD, 16), vr(ZF, 4), vr(B, 4), vr(DD, 16)))
        k.nop(7)
    k.nop(15); k.nop(3)
    rnd_bf16(k, DD)
    k.e("v_add_f32 v%d, 0x358637bd, v%d" % (DD, DD))
    rnd_bf16(k, DD)
    k.e("v_rcp_f32 v%d, v%d" % (DD + 1, DD))
    k.nop(0)
    k.e("v_lshlrev_b32 v18, 11, v2")
    k.e("v_lshl_add_u32 v18, v3, 3, v18")
    k.e("s_lshl_b32 s31, s30, 11")
    k.e("s_add_u32 s31, s31, s32")
    for q in range(4):
        for i in range(4):
            x = DN + 4 * q + i
            rnd_bf16(k, x)
            k.e("v_mul_f32 v16, v%d, v%d" % (x, DD + 1))
            k.e("v_fma_f32 v17, -v16, v%d, v%d" % (DD, x))
            k.e("v_fma_f32 v%d, v17, v%d, v16" % (x, DD + 1))
        k.e("v_cvt_pk_bf16_f32 v16, v%d, v%d" % (DN + 4 * q, DN + 4 * q + 1))
        k.e("v_cvt_pk_bf16_f32 v17, v%d, v%d" % (DN + 4 * q + 2, DN + 4 * q + 3))
        k.e("buffer_store_dwordx2 v[16:17], v18, s[36:39], s31 offen offset:%d" % (q * 16))
        k.nop(1)
    k.e("s_add_u32 s44, s44, %d" % nwaves)
    k.e("s_cmp_lt_u32 s44, 64")
    k.e("s_cbranch_scc1 %s" % loop)
    k.L(end)
    k.e("s_endpgm")
    return k, 192, 8192, 64 * nwaves


def gemm4_wrap():
    r = gen_gemm4()
    return r


def merge(name, g1, n1, g2):
    r1 = g1(); r2 = g2()
    k = K(name)
    l2 = k.lab("BODY2")
    k.e("s_cmp_ge_u32 s2, %d" % n1)
    k.e("s_cbranch_scc1 %s" % l2)
    k.lines += r1[0].lines
    k.L(l2)
    k.e("s_sub_u32 s2, s2, %d" % n1)
    k.lines += r2[0].lines
    lds = max(r1[2] if len(r1) > 2 else 0, r2[2] if len(r2) > 2 else 0)
    b1 = r1[3] if len(r1) > 3 else 256
    b2 = r2[3] if len(r2) > 3 else 256
    assert b1 == b2, (b1, b2)
    return k, max(r1[1], r2[1]), lds, b1


HEADER = open("gated_mix__linear_kernel_hedgehog__mixer_s_mlp__prompt.s.ref").read().split("; Override launch")[0]


def main(out):
    kernels = []
    launches = []

    def add(gen, grid, block=None, lds=None):
        res = gen()
        k, v = res[0], res[1]
        l = res[2] if len(res) > 2 else 0
        b = res[3] if len(res) > 3 else 256
        kernels.append((k, v))
        launches.append("; @launch kernel=%s grid=(%d,1,1) block=(%d,1,1) lds=%d" % (k.name, grid, b, l))

    add(gen_prep, 1024)
    add(gen_gemm1, 256)
    add(lambda: merge("g2kv_kernel", gen_gemm2, 256, gen_kv), 512)
    add(gen_ln1, 512)
    add(lambda: merge("g4at_kernel", gen_gemm4, 224, gen_attn), 256)
    add(gen_gemm5, 256)
    txt = [HEADER.rstrip("\n")] + launches + ['.amdgcn_target "amdgcn-amd-amdhsa--gfx950"', ".text"]
    for k, v in kernels:
        txt += k.text(v)
    txt += ['.section .rodata,"a"', ".p2align 6"]
    for k, v in kernels:
        txt += desc(k.name, v)
        txt += [".p2align 6"]
    open(out, "w").write("\n".join(txt) + "\n")


if __name__ == "__main__":
    main(sys.argv[1] if len(sys.argv) > 1 else "gated_mix__linear_kernel_hedgehog__mixer_s_mlp__prompt.s")
```

```python
import sys, re

import os
DBG = set(os.environ.get('GENDBG', '').split(','))
MB = 1 << 20
WS_LNX = 0
WS_QKV = 4 * MB
WS_H = 16 * MB
WS_X1 = 20 * MB
WS_LNX1 = 24 * MB
WS_H3 = 28 * MB
WS_O = 44 * MB
WS_KVP = 48 * MB
WS_G = 52 * MB
WS_FLAG = 53 * MB
WS_PART = 56 * MB

KA = dict(A_x=0, wqkv=8, w_phi=16, wo=24, B_x=32, w1=40, w2=48, w3=56, w4=64, gate_w=72, out=80, dbg=88, ws=96)
SZ_ACT = 2048 * 1024 * 2
SZ_QKV = 2048 * 3072 * 2
SZ_H3 = 2048 * 3584 * 2
KVP_STRIDE = (64 * 32 + 64) * 4


class K:
    def __init__(self, name):
        self.name = name
        self.lines = []
        self.nlab = 0
        self.max_v = 0
        self.max_s = 0

    def e(self, s):
        if s.startswith("buffer_"):
            m = re.search(r"offset:(\d+)", s)
            assert not m or int(m.group(1)) < 4096, s
        if s.startswith("ds_"):
            m = re.search(r"offset:(\d+)", s)
            assert not m or int(m.group(1)) < 65536, s
        self.lines.append("    " + s)

    def c(self, s):
        self.lines.append("    ; " + s)

    def lab(self, base="L"):
        self.nlab += 1
        return "%s_%s_%d" % (base, self.name, self.nlab)

    def L(self, l):
        self.lines.append(l + ":")

    def nop(self, n=0):
        self.e("s_nop %d" % n)

    def text(self, vgprs, sgprs=102, lds=0):
        v = (vgprs + 7) // 8 * 8
        acc = (vgprs + 3) // 4 * 4
        hdr = [
            ".globl %s" % self.name,
            ".p2align 8",
            ".type %s,@function" % self.name,
            "%s:" % self.name,
        ]
        return hdr + self.lines


def desc(name, vgprs, sgprs=104):
    v = (vgprs + 7) // 8 * 8
    return [
        ".amdhsa_kernel %s" % name,
        "  .amdhsa_next_free_vgpr %d" % v,
        "  .amdhsa_next_free_sgpr %d" % min(sgprs, 102),
        "  .amdhsa_accum_offset %d" % v,
        "  .amdhsa_group_segment_fixed_size 0",
        "  .amdhsa_kernarg_size 104",
        "  .amdhsa_user_sgpr_count 2",
        "  .amdhsa_user_sgpr_kernarg_segment_ptr 1",
        "  .amdhsa_system_sgpr_workgroup_id_x 1",
        ".end_amdhsa_kernel",
    ]


def vr(a, n=1):
    return "v%d" % a if n == 1 else "v[%d:%d]" % (a, a + n - 1)


def sr(a, n=1):
    return "s%d" % a if n == 1 else "s[%d:%d]" % (a, a + n - 1)


def load_ptr(k, dst, key):
    k.e("s_load_dwordx2 %s, s[0:1], %d" % (sr(dst, 2), KA[key]))


def make_srd(k, dst, ptr, off, size):
    k.e("s_add_u32 s%d, s%d, 0x%x" % (dst, ptr, off))
    k.e("s_addc_u32 s%d, s%d, 0" % (dst + 1, ptr + 1))
    k.e("s_mov_b32 s%d, 0x%x" % (dst + 2, size))
    k.e("s_mov_b32 s%d, 0x00020000" % (dst + 3))


LOG2E = 0x3FB8AA3B


def rnd_bf16(k, v, tmp=None):
    k.e("v_cvt_pk_bf16_f32 %s, %s, %s" % (vr(v), vr(v), vr(v)))
    k.e("v_lshlrev_b32 %s, 16, %s" % (vr(v), vr(v)))


def wave_reduce(k, v, vaddr, vtmp, op="v_add_f32"):
    for m in (1, 2, 4, 8, 16, 32):
        k.e("v_xor_b32 %s, %d, %s" % (vr(vtmp), m * 4, vr(vaddr)))
        k.e("ds_bpermute_b32 %s, %s, %s" % (vr(vtmp), vr(vtmp), vr(v)))
        k.e("s_waitcnt lgkmcnt(0)")
        k.e("%s %s, %s, %s" % (op, vr(v), vr(v), vr(vtmp)))


def emit_ln(k, s_row, srd_in, srd_out):
    k.e("v_and_b32 v1, 63, v0")
    k.e("v_lshlrev_b32 v2, 4, v1")
    k.e("s_lshl_b32 s40, s%d, 11" % s_row)
    k.e("v_add_u32 v2, s40, v2")
    k.e("buffer_load_dwordx4 v[8:11], v2, %s, 0 offen" % sr(srd_in, 4))
    k.e("buffer_load_dwordx4 v[12:15], v2, %s, 0 offen offset:1024" % sr(srd_in, 4))
    k.e("v_lshlrev_b32 v3, 2, v1")
    k.e("s_waitcnt vmcnt(0)")
    for i in range(8):
        k.e("v_lshlrev_b32 v%d, 16, v%d" % (16 + 2 * i, 8 + i))
        k.e("v_and_b32 v%d, 0xffff0000, v%d" % (17 + 2 * i, 8 + i))
    k.e("v_add_f32 v4, v16, v17")
    for i in range(2, 16):
        k.e("v_add_f32 v4, v4, v%d" % (16 + i))
    wave_reduce(k, 4, 3, 5)
    k.e("v_mul_f32 v4, 0x3a800000, v4")
    k.e("v_sub_f32 v5, v16, v4")
    k.e("v_mul_f32 v6, v5, v5")
    for i in range(1, 16):
        k.e("v_sub_f32 v5, v%d, v4" % (16 + i))
        k.e("v_fmac_f32 v6, v5, v5")
    wave_reduce(k, 6, 3, 5)
    k.e("v_mul_f32 v6, 0x3a800000, v6")
    rnd_bf16(k, 4)
    rnd_bf16(k, 6)
    k.e("v_add_f32 v6, 0x3727c5ac, v6")
    rnd_bf16(k, 6)
    k.e("v_sqrt_f32 v6, v6")
    k.nop(0)
    rnd_bf16(k, 6)
    k.e("v_rcp_f32 v7, v6")
    k.nop(0)
    for i in range(16):
        x = 16 + i
        k.e("v_sub_f32 v%d, v%d, v4" % (x, x))
        rnd_bf16(k, x)
        k.e("v_mul_f32 v5, v%d, v7" % x)
        k.e("v_fma_f32 v32, -v5, v6, v%d" % x)
        k.e("v_fma_f32 v%d, v32, v7, v5" % x)
    for i in range(8):
        k.e("v_cvt_pk_bf16_f32 v%d, v%d, v%d" % (8 + i, 16 + 2 * i, 17 + 2 * i))
    k.e("buffer_store_dwordx4 v[8:11], v2, %s, 0 offen" % sr(srd_out, 4))
    k.e("buffer_store_dwordx4 v[12:15], v2, %s, 0 offen offset:1024" % sr(srd_out, 4))


def gen_prep():
    k = K("prep_kernel")
    k.e("s_cmp_ge_u32 s2, 1024")
    end = k.lab("END")
    k.e("s_cbranch_scc1 %s" % end)
    load_ptr(k, 4, "A_x")
    load_ptr(k, 6, "ws")
    load_ptr(k, 8, "A_x")
    load_ptr(k, 10, "gate_w")
    k.e("v_lshrrev_b32 v1, 6, v0")
    k.nop(0)
    k.e("v_readfirstlane_b32 s12, v1")
    k.e("s_waitcnt lgkmcnt(0)")
    nz = k.lab("NOZERO")
    k.e("s_cmp_lg_u32 s2, 0")
    k.e("s_cbranch_scc1 %s" % nz)
    make_srd(k, 28, 6, WS_FLAG, 1024)
    k.e("v_lshlrev_b32 v1, 2, v0")
    k.e("v_mov_b32 v2, 0")
    k.e("buffer_store_dword v2, v1, s[28:31], 0 offen")
    k.L(nz)
    gate = k.lab("GATE")
    k.e("s_cmp_ge_u32 s2, 512")
    k.e("s_cbranch_scc1 %s" % gate)
    k.e("s_lshl_b32 s13, s2, 2")
    k.e("s_add_u32 s13, s13, s12")
    make_srd(k, 16, 4, 0, SZ_ACT)
    make_srd(k, 20, 6, WS_LNX, SZ_ACT)
    emit_ln(k, 13, 16, 20)
    k.e("s_endpgm")
    k.L(gate)
    k.e("s_sub_u32 s13, s2, 512")
    k.e("s_lshl_b32 s13, s13, 2")
    k.e("s_add_u32 s13, s13, s12")
    make_srd(k, 16, 8, 0, SZ_ACT)
    make_srd(k, 20, 10, 0, 2048)
    make_srd(k, 24, 6, WS_G, 2048 * 4)
    k.e("v_and_b32 v1, 63, v0")
    k.e("v_lshlrev_b32 v2, 4, v1")
    k.e("s_lshl_b32 s40, s13, 11")
    k.e("v_add_u32 v3, s40, v2")
    k.e("buffer_load_dwordx4 v[8:11], v3, s[16:19], 0 offen")
    k.e("buffer_load_dwordx4 v[12:15], v3, s[16:19], 0 offen offset:1024")
    k.e("buffer_load_dwordx4 v[32:35], v2, s[20:23], 0 offen")
    k.e("buffer_load_dwordx4 v[36:39], v2, s[20:23], 0 offen offset:1024")
    k.e("v_lshlrev_b32 v3, 2, v1")
    k.e("s_waitcnt vmcnt(0)")
    for i in range(8):
        k.e("v_lshlrev_b32 v%d, 16, v%d" % (16 + 2 * i, 8 + i))
        k.e("v_and_b32 v%d, 0xffff0000, v%d" % (17 + 2 * i, 8 + i))
        k.e("v_lshlrev_b32 v4, 16, v%d" % (32 + i))
        k.e("v_and_b32 v5, 0xffff0000, v%d" % (32 + i))
        k.e("v_mul_f32 v%d, v%d, v4" % (16 + 2 * i, 16 + 2 * i))
        k.e("v_mul_f32 v%d, v%d, v5" % (17 + 2 * i, 17 + 2 * i))
        k.e("v_cvt_pk_bf16_f32 v4, v%d, v%d" % (16 + 2 * i, 17 + 2 * i))
        k.e("v_lshlrev_b32 v%d, 16, v4" % (16 + 2 * i))
        k.e("v_and_b32 v%d, 0xffff0000, v4" % (17 + 2 * i))
    k.e("v_add_f32 v4, v16, v17")
    for i in range(2, 16):
        k.e("v_add_f32 v4, v4, v%d" % (16 + i))
    wave_reduce(k, 4, 3, 5)
    rnd_bf16(k, 4)
    k.e("v_mul_f32 v4, 0xbfb8aa3b, v4")
    k.e("v_exp_f32 v4, v4")
    k.nop(0)
    k.e("v_add_f32 v4, 1.0, v4")
    k.e("v_rcp_f32 v4, v4")
    k.nop(0)
    rnd_bf16(k, 4)
    k.e("v_cmp_eq_u32 vcc, 0, v1")
    k.e("s_and_saveexec_b64 s[42:43], vcc")
    k.e("s_lshl_b32 s40, s13, 2")
    k.e("v_mov_b32 v5, s40")
    k.e("buffer_store_dword v4, v5, s[24:27], 0 offen")
    k.L(end)
    k.e("s_endpgm")
    return k, 48


def gen_ln1():
    k = K("ln1_kernel")
    end = k.lab("END")
    k.e("s_cmp_ge_u32 s2, 512")
    k.e("s_cbranch_scc1 %s" % end)
    load_ptr(k, 6, "ws")
    k.e("v_lshrrev_b32 v1, 6, v0")
    k.nop(0)
    k.e("v_readfirstlane_b32 s12, v1")
    k.e("s_waitcnt lgkmcnt(0)")
    k.e("s_lshl_b32 s13, s2, 2")
    k.e("s_add_u32 s13, s13, s12")
    make_srd(k, 16, 6, WS_X1, SZ_ACT)
    make_srd(k, 20, 6, WS_LNX1, SZ_ACT)
    emit_ln(k, 13, 16, 20)
    k.L(end)
    k.e("s_endpgm")
    return k, 48


class GemmCfg:
    def __init__(self, WM, WN, TM, TN, NS=3, DW=None, LA=4):
        self.WM, self.WN, self.TM, self.TN, self.NS = WM, WN, TM, TN, NS
        self.LA = LA
        self.BM = WM * TM * 32
        self.BN = WN * TN * 32
        self.NW = WM * WN
        self.XB = self.BM * 128
        self.RB = self.BN * 2
        self.WB = 64 * self.RB
        self.STAGE = self.XB + self.WB
        self.DW = DW or self.NW
        self.SPLIT = self.DW < self.NW
        self.XI = self.XB // 1024 // self.DW
        self.WI = self.WB // 1024 // self.DW
        assert self.XI * 1024 * self.DW == self.XB and self.WI * 1024 * self.DW == self.WB
        self.PF = 0
        self.D = self.XI + self.WI
        self.R = TM + 2 * TN
        self.LDS = self.STAGE * NS


S_SRDX, S_SRDW, S_SRDC, S_SRDR, S_SRDG = 4, 8, 12, 16, 20
S_LDX, S_LDW, S_LDC, S_NK, S_M0, S_N0, S_WAVE, S_KT = 24, 25, 26, 27, 28, 29, 30, 31
S_KX, S_KW, S_CUR, S_OLD, S_DMX, S_DMW, S_T0, S_T1 = 32, 33, 34, 35, 36, 37, 38, 39
S_SHIFT, S_FLAG, S_T2, S_T3 = 40, 41, 42, 43


class GemmRegs:
    def __init__(self, cfg, shifted=False):
        c = cfg
        self.vt = list(range(1, 8))
        p = 8
        self.vxa = list(range(p, p + 4)); p += 4
        self.vwa = list(range(p, p + c.TN)); p += c.TN
        self.vxo = list(range(p, p + c.XI)); p += c.XI
        self.vwo = list(range(p, p + c.WI)); p += c.WI
        self.vxs = list(range(p, p + c.XI)) if shifted else None
        if shifted:
            p += c.XI
        p = (p + 3) // 4 * 4
        self.F = []
        for s in range(2):
            X = [p + 4 * i for i in range(c.TM)]; p += 4 * c.TM
            W = [p + 4 * i for i in range(c.TN)]; p += 4 * c.TN
            self.F.append((X, W))
        p = (p + 15) // 16 * 16
        self.acc = {}
        for tn in range(c.TN):
            for tm in range(c.TM):
                self.acc[(tn, tm)] = p; p += 16
        self.acc_base = self.acc[(0, 0)]
        self.nacc = 16 * c.TM * c.TN
        self.save = p
        self.end = p
        self.ep = None


def gemm_lane_setup(k, c, r):
    t0, t1, t2, t3 = r.vt[0:4]
    k.c("lane setup")
    k.e("v_and_b32 v%d, 63, v0" % t0)
    k.e("v_lshrrev_b32 v%d, 3, v%d" % (t1, t0))
    k.e("s_mul_i32 s%d, s%d, %d" % (S_T0, S_WAVE, c.XI * 8))
    k.e("v_add_u32 v%d, s%d, v%d" % (t1, S_T0, t1))
    k.e("v_mul_lo_u32 v%d, v%d, s%d" % (t1, t1, S_LDX))
    k.e("v_and_b32 v%d, 7, v%d" % (t2, t0))
    k.e("v_lshrrev_b32 v%d, 4, v%d" % (t3, t0))
    k.e("v_xor_b32 v%d, v%d, v%d" % (t2, t2, t3))
    for i in range(c.XI):
        k.e("s_mul_i32 s%d, s%d, %d" % (S_T0, S_WAVE, c.XI))
        k.e("s_add_u32 s%d, s%d, %d" % (S_T0, S_T0, i))
        k.e("s_and_b32 s%d, s%d, 1" % (S_T0, S_T0))
        k.e("s_lshl_b32 s%d, s%d, 2" % (S_T0, S_T0))
        k.e("v_xor_b32 v%d, s%d, v%d" % (t3, S_T0, t2))
        k.e("v_lshl_add_u32 v%d, v%d, 4, v%d" % (r.vxo[i], t3, t1))
        if i + 1 < c.XI:
            k.e("s_lshl_b32 s%d, s%d, 3" % (S_T0, S_LDX))
            k.e("v_add_u32 v%d, s%d, v%d" % (t1, S_T0, t1))
    if c.RB == 256:
        k.e("v_lshrrev_b32 v%d, 4, v%d" % (t1, t0))
        k.e("s_mul_i32 s%d, s%d, %d" % (S_T0, S_WAVE, c.WI * 4))
        k.e("v_add_u32 v%d, s%d, v%d" % (t2, S_T0, t1))
        k.e("v_mul_lo_u32 v%d, v%d, s%d" % (t2, t2, S_LDW))
        k.e("v_lshlrev_b32 v%d, 2, v%d" % (t1, t1))
        k.e("v_and_b32 v%d, 15, v%d" % (t3, t0))
        k.e("v_xor_b32 v%d, v%d, v%d" % (t3, t3, t1))
        for j in range(c.WI):
            k.e("v_lshl_add_u32 v%d, v%d, 4, v%d" % (r.vwo[j], t3, t2))
            if j + 1 < c.WI:
                k.e("s_lshl_b32 s%d, s%d, 2" % (S_T0, S_LDW))
                k.e("v_add_u32 v%d, s%d, v%d" % (t2, S_T0, t2))
    elif c.RB == 128:
        k.e("v_lshrrev_b32 v%d, 3, v%d" % (t1, t0))
        k.e("s_mul_i32 s%d, s%d, %d" % (S_T0, S_WAVE, c.WI * 8))
        k.e("v_add_u32 v%d, s%d, v%d" % (t2, S_T0, t1))
        k.e("v_mul_lo_u32 v%d, v%d, s%d" % (t2, t2, S_LDW))
        k.e("v_lshrrev_b32 v%d, 4, v%d" % (t1, t0))
        k.e("v_and_b32 v%d, 1, v%d" % (t1, t1))
        k.e("v_lshlrev_b32 v%d, 2, v%d" % (t1, t1))
        k.e("v_and_b32 v%d, 7, v%d" % (t3, t0))
        k.e("v_xor_b32 v%d, v%d, v%d" % (t3, t3, t1))
        for j in range(c.WI):
            k.e("v_lshl_add_u32 v%d, v%d, 4, v%d" % (r.vwo[j], t3, t2))
            if j + 1 < c.WI:
                k.e("s_lshl_b32 s%d, s%d, 3" % (S_T0, S_LDW))
                k.e("v_add_u32 v%d, s%d, v%d" % (t2, S_T0, t2))
    else:
        raise ValueError("RB")
    k.e("s_and_b32 s%d, s%d, %d" % (S_T2, S_WAVE, c.WM - 1))
    k.e("s_lshr_b32 s%d, s%d, %d" % (S_T3, S_WAVE, c.WM.bit_length() - 1))
    k.e("v_and_b32 v%d, 31, v%d" % (t1, t0))
    k.e("s_mul_i32 s%d, s%d, %d" % (S_T0, S_T2, c.TM * 32))
    k.e("v_add_u32 v%d, s%d, v%d" % (t1, S_T0, t1))
    k.e("v_lshlrev_b32 v%d, 7, v%d" % (t1, t1))
    k.e("v_lshrrev_b32 v%d, 5, v%d" % (t2, t0))
    k.e("v_bfe_u32 v%d, v%d, 1, 3" % (t3, t0))
    k.e("v_xor_b32 v%d, v%d, v%d" % (t2, t2, t3))
    for t in range(4):
        k.e("v_xor_b32 v%d, %d, v%d" % (t3, 2 * t, t2))
        k.e("v_lshl_add_u32 v%d, v%d, 4, v%d" % (r.vxa[t], t3, t1))
    k.e("v_bfe_u32 v%d, v%d, 2, 2" % (t1, t0))
    k.e("v_lshrrev_b32 v%d, 5, v%d" % (t2, t0))
    k.e("v_lshl_add_u32 v%d, v%d, 3, v%d" % (t2, t2, t1))
    k.e("v_mul_u32_u24 v%d, %d, v%d" % (t2, c.RB, t2))
    k.e("v_bfe_u32 v%d, v%d, 4, 1" % (t3, t0))
    k.e("v_lshl_add_u32 v%d, v%d, 5, v%d" % (t2, t3, t2))
    k.e("v_and_b32 v%d, 3, v%d" % (t3, t0))
    k.e("v_lshl_add_u32 v%d, v%d, 3, v%d" % (t2, t3, t2))
    k.e("v_add_u32 v%d, %d, v%d" % (t2, c.XB, t2))
    if c.RB == 128:
        k.e("v_lshrrev_b32 v%d, 1, v%d" % (t1, t1))
    for tn in range(c.TN):
        k.e("s_mul_i32 s%d, s%d, %d" % (S_T0, S_T3, c.TN))
        k.e("s_add_u32 s%d, s%d, %d" % (S_T0, S_T0, tn))
        k.e("v_xor_b32 v%d, s%d, v%d" % (t3, S_T0, t1))
        k.e("v_lshl_add_u32 v%d, v%d, 6, v%d" % (r.vwa[tn], t3, t2))
    k.e("s_mul_i32 s%d, s%d, %d" % (S_DMX, S_WAVE, c.XI * 1024))
    k.e("s_mul_i32 s%d, s%d, %d" % (S_DMW, S_WAVE, c.WI * 1024))
    k.e("s_add_u32 s%d, s%d, %d" % (S_DMW, S_DMW, c.XB))


def gemm_dma(k, c, r, s_stage, shifted):
    if 'nodma' in DBG:
        return
    xo = r.vxs if shifted else r.vxo
    k.e("s_add_u32 m0, s%d, s%d" % (s_stage, S_DMX))
    for i in range(c.XI):
        if i:
            k.e("s_add_u32 m0, m0, 1024")
        k.nop(0)
        k.e("buffer_load_dwordx4 v%d, %s, s%d offen lds" % (xo[i], sr(S_SRDX, 4), S_KX))
    k.e("s_add_u32 m0, s%d, s%d" % (s_stage, S_DMW))
    for j in range(c.WI):
        if j:
            k.e("s_add_u32 m0, m0, 1024")
        k.nop(0)
        k.e("buffer_load_dwordx4 v%d, %s, s%d offen lds" % (r.vwo[j], sr(S_SRDW, 4), S_KW))
    if not getattr(c, 'SPLIT', False):
        gemm_mall_pf(k, c, r)


def gemm_mall_pf(k, c, r):
    for p in range(c.PF):
        k.e("buffer_load_dword v%d, v%d, %s, s72 offen" % (r.vpf + 1, r.vpf, sr(64 + 4 * p, 4)))
    if c.PF:
        k.e("s_add_u32 s72, s72, %d" % (512 if c.SPLIT else 256))


def l2pf_setup(k, c, r):
    t0, t1, t2 = r.vt[0:3]
    k.e("v_and_b32 v%d, 63, v0" % t0)
    k.e("s_sub_u32 s%d, s%d, 4" % (S_T0, S_WAVE))
    xr = c.BM // 4
    k.e("s_mul_i32 s%d, s%d, %d" % (S_T1, S_T0, xr))
    k.e("v_add_u32 v%d, s%d, v%d" % (t1, S_T1, t0))
    k.e("v_mul_lo_u32 v%d, v%d, s%d" % (r.vpx, t1, S_LDX))
    if xr < 64:
        k.e("v_mov_b32 v%d, 0x7ffffff0" % t2)
        k.e("v_cmp_gt_u32 vcc, %d, v%d" % (xr, t0))
        k.e("v_cndmask_b32 v%d, v%d, v%d, vcc" % (r.vpx, t2, r.vpx))
    lpr = c.RB // 128
    g = 64 * lpr // 4
    k.e("s_mul_i32 s%d, s%d, %d" % (S_T1, S_T0, g))
    k.e("v_add_u32 v%d, s%d, v%d" % (t1, S_T1, t0))
    if lpr == 2:
        k.e("v_lshrrev_b32 v%d, 1, v%d" % (t2, t1))
        k.e("v_mul_lo_u32 v%d, v%d, s%d" % (r.vpw, t2, S_LDW))
        k.e("v_and_b32 v%d, 1, v%d" % (t2, t1))
        k.e("v_lshl_add_u32 v%d, v%d, 7, v%d" % (r.vpw, t2, r.vpw))
    else:
        k.e("v_mul_lo_u32 v%d, v%d, s%d" % (r.vpw, t1, S_LDW))
    k.e("v_mov_b32 v%d, 0x7ffffff0" % t2)
    k.e("v_cmp_gt_u32 vcc, %d, v%d" % (g, t0))
    k.e("v_cndmask_b32 v%d, v%d, v%d, vcc" % (r.vpw, t2, r.vpw))
    k.e("s_add_u32 s76, s%d, %d" % (S_KX, 128 * (c.NS - 1)))
    k.e("s_mul_i32 s%d, s%d, %d" % (S_T0, S_LDW, 64 * (c.NS - 1)))
    k.e("s_add_u32 s77, s%d, s%d" % (S_KW, S_T0))
    k.e("s_mov_b32 s78, %d" % (c.NS - 1))


def l2pf_step(k, c, r, guard=True):
    skip = k.lab("PFS")
    if guard:
        k.e("s_cmp_ge_u32 s78, s%d" % S_NK)
        k.e("s_cbranch_scc1 %s" % skip)
    k.e("buffer_load_dword v%d, v%d, %s, s76 offen" % (r.vpf + 1, r.vpx, sr(S_SRDX, 4)))
    k.e("buffer_load_dword v%d, v%d, %s, s77 offen" % (r.vpf + 1, r.vpw, sr(S_SRDW, 4)))
    k.e("s_add_u32 s76, s76, 128")
    k.e("s_add_u32 s77, s77, s%d" % S_T2)
    k.e("s_add_u32 s78, s78, 1")
    k.L(skip)


def gemm_shift_update(k, c, r, s_kidx):
    k.e("s_lshr_b32 s%d, s%d, 2" % (S_T0, s_kidx))
    k.e("s_and_b32 s%d, s%d, 1" % (S_T1, S_T0))
    k.e("s_lshr_b32 s%d, s%d, 1" % (S_T0, S_T0))
    k.e("s_lshl_b32 s%d, 2048, s%d" % (S_SHIFT, S_T0))
    k.e("s_sub_u32 s%d, 0, s%d" % (S_T0, S_SHIFT))
    k.e("s_cmp_eq_u32 s%d, 1" % S_T1)
    k.e("s_cselect_b32 s%d, s%d, s%d" % (S_SHIFT, S_SHIFT, S_T0))
    k.e("s_lshl_b32 s%d, s%d, 11" % (S_T0, S_M0))
    k.e("s_add_u32 s%d, s%d, s%d" % (S_SHIFT, S_SHIFT, S_T0))
    for i in range(c.XI):
        k.e("v_add_u32 v%d, s%d, v%d" % (r.vxs[i], S_SHIFT, r.vxo[i]))


def gemm_reads(k, c, r, t, fs):
    if 'noreads' in DBG:
        return
    X, W = r.F[fs]
    for tm in range(c.TM):
        k.e("ds_read_b128 %s, v%d offset:%d" % (vr(X[tm], 4), r.vxa[t], tm * 4096))
    for tn in range(c.TN):
        for u in range(2):
            k.e("ds_read_b64_tr_b16 %s, v%d offset:%d" % (vr(W[tn] + 2 * u, 2), r.vwa[tn], (16 * t + 4 * u) * c.RB))


def gemm_mfma(k, c, r, fs, accmap=None):
    if 'nomfma' in DBG:
        return
    X, W = r.F[fs]
    for tn in range(c.TN):
        for tm in range(c.TM):
            a = r.acc[(tn, tm)]
            k.e("v_mfma_f32_32x32x16_bf16 %s, %s, %s, %s" % (vr(a, 16), vr(W[tn], 4), vr(X[tm], 4), vr(a, 16)))


def gemm_kloop(k, c, r, shifted=False):
    D, R, NS = c.D, c.R, c.NS
    k.c("K loop prologue")
    k.e("s_mov_b32 s%d, 0" % S_CUR)
    k.e("s_lshl_b32 s%d, s%d, 6" % (S_T2, S_LDW))
    for i in range(r.nacc):
        k.e("v_mov_b32 v%d, 0" % (r.acc_base + i))
    k.e("s_mov_b32 s%d, 0" % S_KT)
    for s in range(NS):
        if shifted:
            gemm_shift_update(k, c, r, S_KT)
        k.e("s_mov_b32 s%d, %d" % (S_OLD, s * c.STAGE))
        gemm_dma(k, c, r, S_OLD, shifted)
        k.e("s_add_u32 s%d, s%d, 128" % (S_KX, S_KX))
        k.e("s_add_u32 s%d, s%d, s%d" % (S_KW, S_KW, S_T2))
        k.e("s_add_u32 s%d, s%d, 1" % (S_KT, S_KT))
    k.e("s_waitcnt vmcnt(%d)" % ((NS - 1) * D))
    k.e("s_barrier")
    gemm_reads(k, c, r, 0, 0)
    k.e("s_mov_b32 s%d, 0" % S_T3)
    loop = k.lab("KLOOP")
    last = k.lab("KLAST")
    nod = k.lab("NODMA")
    w0 = k.lab("W0")
    w1 = k.lab("W1")
    done = k.lab("KDONE")
    k.L(loop)
    for t in range(3):
        gemm_reads(k, c, r, t + 1, (t + 1) & 1)
        k.e("s_waitcnt lgkmcnt(%d)" % R)
        gemm_mfma(k, c, r, t & 1)
    k.e("s_add_u32 s%d, s%d, 1" % (S_T3, S_T3))
    k.e("s_cmp_ge_u32 s%d, s%d" % (S_T3, S_NK))
    k.e("s_cbranch_scc1 %s" % last)
    k.e("s_add_u32 s%d, s%d, %d" % (S_T0, S_T3, NS - 1))
    k.e("s_cmp_eq_u32 s%d, s%d" % (S_T0, S_KT))
    k.e("s_cbranch_scc1 %s" % w0)
    k.e("s_waitcnt vmcnt(0) lgkmcnt(0)")
    k.e("s_branch %s" % w1)
    k.L(w0)
    k.e("s_waitcnt vmcnt(%d) lgkmcnt(0)" % ((NS - 2) * D))
    k.L(w1)
    k.e("s_barrier")
    k.e("s_mov_b32 s%d, s%d" % (S_OLD, S_CUR))
    k.e("s_add_u32 s%d, s%d, %d" % (S_CUR, S_CUR, c.STAGE))
    k.e("s_cmp_eq_u32 s%d, %d" % (S_CUR, c.STAGE * NS))
    k.e("s_cselect_b32 s%d, 0, s%d" % (S_CUR, S_CUR))
    k.e("s_sub_u32 s%d, s%d, s%d" % (S_T0, S_CUR, S_OLD))
    for v in r.vxa + r.vwa:
        k.e("v_add_u32 v%d, s%d, v%d" % (v, S_T0, v))
    gemm_reads(k, c, r, 0, 0)
    k.e("s_cmp_ge_u32 s%d, s%d" % (S_KT, S_NK))
    k.e("s_cbranch_scc1 %s" % nod)
    if shifted:
        gemm_shift_update(k, c, r, S_KT)
    gemm_dma(k, c, r, S_OLD, shifted)
    k.e("s_add_u32 s%d, s%d, 128" % (S_KX, S_KX))
    k.e("s_add_u32 s%d, s%d, s%d" % (S_KW, S_KW, S_T2))
    k.e("s_add_u32 s%d, s%d, 1" % (S_KT, S_KT))
    k.L(nod)
    gemm_mfma(k, c, r, 1)
    k.e("s_branch %s" % loop)
    k.L(last)
    k.e("s_waitcnt lgkmcnt(0)")
    gemm_mfma(k, c, r, 1)
    k.L(done)
    k.e("s_sub_u32 s%d, 0, s%d" % (S_T0, S_CUR))
    for v in r.vxa + r.vwa:
        k.e("v_add_u32 v%d, s%d, v%d" % (v, S_T0, v))


def emit_gelu(k, x, t0, t1):
    k.e("v_mul_f32 v%d, v%d, v%d" % (t0, x, x))
    k.e("v_mov_b32 v%d, 0x3d372713" % t1)
    k.e("v_fma_f32 v%d, v%d, v%d, 1.0" % (t0, t0, t1))
    k.e("v_mul_f32 v%d, v%d, v%d" % (t0, t0, x))
    k.e("v_mul_f32 v%d, 0xc0135761, v%d" % (t0, t0))
    k.e("v_exp_f32 v%d, v%d" % (t0, t0))
    k.nop(0)
    k.e("v_add_f32 v%d, 1.0, v%d" % (t0, t0))
    k.e("v_rcp_f32 v%d, v%d" % (t0, t0))
    k.nop(0)
    k.e("v_mul_f32 v%d, v%d, v%d" % (x, x, t0))


def gemm_epilogue(k, c, r, mode):
    t0, t1, t2, t3, t4, t5, t6 = r.vt
    if 'noepi' in DBG:
        return
    k.c("epilogue " + mode)
    k.nop(15)
    k.nop(7)
    k.e("s_and_b32 s%d, s%d, %d" % (S_T2, S_WAVE, c.WM - 1))
    k.e("s_lshr_b32 s%d, s%d, %d" % (S_T3, S_WAVE, c.WM.bit_length() - 1))
    k.e("s_mul_i32 s%d, s%d, %d" % (S_T0, S_T2, c.TM * 32))
    k.e("s_add_u32 s%d, s%d, s%d" % (S_T0, S_T0, S_M0))
    k.e("s_mul_i32 s%d, s%d, %d" % (S_T1, S_T3, c.TN * 32))
    k.e("s_add_u32 s%d, s%d, s%d" % (S_T1, S_T1, S_N0))
    k.e("s_lshl_b32 s%d, s%d, 1" % (S_T1, S_T1))
    k.e("v_and_b32 v%d, 31, v0" % t0)
    k.e("v_add_u32 v%d, s%d, v%d" % (t0, S_T0, t0))
    k.e("v_bfe_u32 v%d, v0, 5, 1" % t1)
    k.e("v_mul_lo_u32 v%d, v%d, s%d" % (t2, t0, S_LDC))
    k.e("v_add_u32 v%d, s%d, v%d" % (t2, S_T1, t2))
    k.e("v_lshl_add_u32 v%d, v%d, 4, v%d" % (t3, t1, t2))
    k.e("v_lshl_add_u32 v%d, v%d, 3, v%d" % (t4, t1, t2))
    k.e("v_lshlrev_b32 v%d, 2, v%d" % (t5, t0))
    ep = r.ep
    P = [ep + i for i in range(8)]
    RS = [ep + 8 + i for i in range(8)]
    a0, a1, a2, a3 = ep + 16, ep + 17, ep + 18, ep + 19
    for tm in range(c.TM):
        k.e("s_lshl_b32 s%d, s%d, 5" % (S_T0, S_LDC))
        k.e("s_mul_i32 s%d, s%d, %d" % (S_T0, S_T0, tm))
        if mode == 'final':
            k.e("buffer_load_dword v%d, v%d, %s, 0 offen offset:%d" % (a3, t5, sr(S_SRDG, 4), tm * 128))
        for tn in range(c.TN):
            a = r.acc[(tn, tm)]
            if mode in ('resid', 'final'):
                for q in range(4):
                    k.e("buffer_load_dwordx2 %s, v%d, %s, s%d offen offset:%d" %
                        (vr(RS[2 * q], 2), t4, sr(S_SRDR, 4), S_T0, tn * 64 + q * 16))
                k.e("s_waitcnt vmcnt(0)")
            for q in range(4):
                lo, hi = P[2 * q], P[2 * q + 1]
                k.e("v_cvt_pk_bf16_f32 v%d, v%d, v%d" % (lo, a + 4 * q, a + 4 * q + 1))
                k.e("v_cvt_pk_bf16_f32 v%d, v%d, v%d" % (hi, a + 4 * q + 2, a + 4 * q + 3))
                if mode == 'store':
                    continue
                for (pk, rs) in ((lo, RS[2 * q]), (hi, RS[2 * q + 1])):
                    k.e("v_lshlrev_b32 v%d, 16, v%d" % (a0, pk))
                    k.e("v_and_b32 v%d, 0xffff0000, v%d" % (a1, pk))
                    if mode == 'gelu':
                        emit_gelu(k, a0, a2, t6)
                        emit_gelu(k, a1, a2, t6)
                    else:
                        k.e("v_lshlrev_b32 v%d, 16, v%d" % (a2, rs))
                        k.e("v_add_f32 v%d, v%d, v%d" % (a0, a0, a2))
                        k.e("v_and_b32 v%d, 0xffff0000, v%d" % (a2, rs))
                        k.e("v_add_f32 v%d, v%d, v%d" % (a1, a1, a2))
                        if mode == 'final':
                            k.e("v_cvt_pk_bf16_f32 v%d, v%d, v%d" % (a2, a0, a1))
                            k.e("v_lshlrev_b32 v%d, 16, v%d" % (a0, a2))
                            k.e("v_and_b32 v%d, 0xffff0000, v%d" % (a1, a2))
                            k.e("v_sub_f32 v%d, 1.0, v%d" % (a2, a3))
                            rnd_bf16(k, a2)
                            k.e("v_mul_f32 v%d, v%d, v%d" % (a0, a0, a2))
                            k.e("v_mul_f32 v%d, v%d, v%d" % (a1, a1, a2))
                            k.e("v_cvt_pk_bf16_f32 v%d, v%d, v%d" % (a2, a0, a1))
                            k.e("v_lshlrev_b32 v%d, 16, v%d" % (a0, a2))
                            k.e("v_and_b32 v%d, 0xffff0000, v%d" % (a1, a2))
                            sa = r.save + (a - r.acc_base) + 4 * q + (0 if pk == lo else 2)
                            k.e("v_cvt_pk_bf16_f32 v%d, v%d, v%d" % (a2, sa, sa + 1))
                            k.e("v_lshlrev_b32 v%d, 16, v%d" % (t6, a2))
                            k.e("v_and_b32 v%d, 0xffff0000, v%d" % (a2, a2))
                            k.e("v_mul_f32 v%d, v%d, v%d" % (t6, t6, a3))
                            k.e("v_mul_f32 v%d, v%d, v%d" % (a2, a2, a3))
                            k.e("v_cvt_pk_bf16_f32 v%d, v%d, v%d" % (a2, t6, a2))
                            k.e("v_lshlrev_b32 v%d, 16, v%d" % (t6, a2))
                            k.e("v_and_b32 v%d, 0xffff0000, v%d" % (a2, a2))
                            k.e("v_add_f32 v%d, v%d, v%d" % (a0, a0, t6))
                            k.e("v_add_f32 v%d, v%d, v%d" % (a1, a1, a2))
                    k.e("v_cvt_pk_bf16_f32 v%d, v%d, v%d" % (pk, a0, a1))
            k.nop(1)
            for p in range(2):
                k.e("v_permlane32_swap_b32 v%d, v%d" % (P[4 * p], P[4 * p + 2]))
                k.e("v_permlane32_swap_b32 v%d, v%d" % (P[4 * p + 1], P[4 * p + 3]))
            k.nop(1)
            for p in range(2):
                k.e("buffer_store_dwordx4 %s, v%d, %s, s%d offen offset:%d" %
                    (vr(P[4 * p], 4), t3, sr(S_SRDC, 4), S_T0, tn * 64 + p * 32))
            k.nop(3)


class GemmRegsPP:
    def __init__(self, cfg, shifted=False, nsave=0):
        c = cfg
        self.vt = list(range(1, 8))
        p = 8
        self.vpf = p; p += 2
        self.vpx = p; self.vpw = p + 1; p += 2
        self.vxa = list(range(p, p + 4)); p += 4
        self.vwa = list(range(p, p + c.TN)); p += c.TN
        self.vxo = list(range(p, p + c.XI)); p += c.XI
        self.vwo = list(range(p, p + c.WI)); p += c.WI
        self.vxs = list(range(p, p + c.XI)) if shifted else None
        if shifted:
            p += c.XI
        p = (p + 3) // 4 * 4
        self.FX = [[p + 4 * (tm * 4 + t) for t in range(4)] for tm in range(c.TM)]; p += 16 * c.TM
        self.FW = [[p + 4 * (tn * 4 + t) for t in range(4)] for tn in range(c.TN)]; p += 16 * c.TN
        p = (p + 15) // 16 * 16
        self.acc = {}
        for tn in range(c.TN):
            for tm in range(c.TM):
                self.acc[(tn, tm)] = p; p += 16
        self.acc_base = self.acc[(0, 0)]
        self.nacc = 16 * c.TM * c.TN
        self.save = p
        p += nsave
        self.end = p
        self.ep = self.FX[0][0]


def pp_reads(k, c, r):
    if 'noreads' in DBG:
        return
    for t in range(4):
        for tm in range(c.TM):
            k.e("ds_read_b128 %s, v%d offset:%d" % (vr(r.FX[tm][t], 4), r.vxa[t], tm * 4096))
        for tn in range(c.TN):
            for u in range(2):
                k.e("ds_read_b64_tr_b16 %s, v%d offset:%d" % (vr(r.FW[tn][t] + 2 * u, 2), r.vwa[tn], (16 * t + 4 * u) * c.RB))


def pp_mfma(k, c, r):
    if 'nomfma' in DBG:
        return
    for t in range(4):
        for tn in range(c.TN):
            for tm in range(c.TM):
                a = r.acc[(tn, tm)]
                k.e("v_mfma_f32_32x32x16_bf16 %s, %s, %s, %s" % (vr(a, 16), vr(r.FW[tn][t], 4), vr(r.FX[tm][t], 4), vr(a, 16)))


def pp_loop_body(k, c, r, grpB, shifted):
    D = c.D
    loop = k.lab("PPL"); nod = k.lab("PPN"); w0 = k.lab("PW0"); w1 = k.lab("PW1"); x0 = k.lab("PX0"); x1 = k.lab("PX1")
    k.L(loop)
    pp_reads(k, c, r)
    if c.SPLIT and grpB:
        l2pf_step(k, c, r)
        gemm_mall_pf(k, c, r)
    else:
        k.e("s_cmp_ge_u32 s%d, s%d" % (S_KT, S_NK))
        k.e("s_cbranch_scc1 %s" % nod)
        if shifted:
            gemm_shift_update(k, c, r, S_KT)
        gemm_dma(k, c, r, S_OLD, shifted)
        k.e("s_add_u32 s%d, s%d, 128" % (S_KX, S_KX))
        k.e("s_add_u32 s%d, s%d, s%d" % (S_KW, S_KW, S_T2))
        k.e("s_add_u32 s%d, s%d, 1" % (S_KT, S_KT))
        k.L(nod)
    if c.SPLIT and grpB:
        k.e("s_waitcnt lgkmcnt(0)")
    elif grpB:
        k.e("s_add_u32 s%d, s%d, %d" % (S_T0, S_T3, c.NS))
        k.e("s_cmp_eq_u32 s%d, s%d" % (S_T0, S_KT))
        k.e("s_cbranch_scc1 %s" % w0)
        k.e("s_waitcnt vmcnt(0) lgkmcnt(0)")
        k.e("s_branch %s" % w1)
        k.L(w0)
        k.e("s_waitcnt vmcnt(%d) lgkmcnt(0)" % ((c.NS - 2) * D))
        k.L(w1)
    else:
        k.e("s_waitcnt lgkmcnt(0)")
    k.e("s_barrier")
    k.e("s_setprio 1")
    pp_mfma(k, c, r)
    k.e("s_setprio 0")
    k.e("s_mov_b32 s%d, s%d" % (S_T1, S_CUR))
    k.e("s_add_u32 s%d, s%d, %d" % (S_CUR, S_CUR, c.STAGE))
    k.e("s_cmp_eq_u32 s%d, %d" % (S_CUR, c.STAGE * c.NS))
    k.e("s_cselect_b32 s%d, 0, s%d" % (S_CUR, S_CUR))
    k.e("s_sub_u32 s%d, s%d, s%d" % (S_T0, S_CUR, S_T1))
    for v in r.vxa + r.vwa:
        k.e("v_add_u32 v%d, s%d, v%d" % (v, S_T0, v))
    k.e("s_add_u32 s%d, s%d, %d" % (S_OLD, S_OLD, c.STAGE))
    k.e("s_cmp_eq_u32 s%d, %d" % (S_OLD, c.STAGE * c.NS))
    k.e("s_cselect_b32 s%d, 0, s%d" % (S_OLD, S_OLD))
    k.e("s_add_u32 s%d, s%d, 1" % (S_T3, S_T3))
    if not grpB:
        k.e("s_add_u32 s%d, s%d, %d" % (S_T0, S_T3, c.NS - 1))
        k.e("s_cmp_eq_u32 s%d, s%d" % (S_T0, S_KT))
        k.e("s_cbranch_scc1 %s" % x0)
        k.e("s_waitcnt vmcnt(0)")
        k.e("s_branch %s" % x1)
        k.L(x0)
        k.e("s_waitcnt vmcnt(%d)" % ((c.NS - 2) * D))
        k.L(x1)
    k.e("s_barrier")
    k.e("s_cmp_lt_u32 s%d, s%d" % (S_T3, S_NK))
    k.e("s_cbranch_scc1 %s" % loop)


def gemm_kloop_pp(k, c, r, shifted=False):
    assert c.NW == 8
    D = c.D
    k.c("K loop (ping-pong) prologue")
    k.e("s_lshl_b32 s%d, s%d, 6" % (S_T2, S_LDW))
    for i in range(r.nacc):
        k.e("v_mov_b32 v%d, 0" % (r.acc_base + i))
    k.e("s_mov_b32 s%d, 0" % S_KT)
    if c.SPLIT:
        return gemm_kloop_pp_split(k, c, r)
    for s in range(c.NS - 1):
        if shifted:
            gemm_shift_update(k, c, r, S_KT)
        k.e("s_mov_b32 s%d, %d" % (S_OLD, s * c.STAGE))
        gemm_dma(k, c, r, S_OLD, shifted)
        k.e("s_add_u32 s%d, s%d, 128" % (S_KX, S_KX))
        k.e("s_add_u32 s%d, s%d, s%d" % (S_KW, S_KW, S_T2))
        k.e("s_add_u32 s%d, s%d, 1" % (S_KT, S_KT))
    k.e("s_mov_b32 s%d, %d" % (S_OLD, (c.NS - 1) * c.STAGE))
    k.e("s_mov_b32 s%d, 0" % S_CUR)
    k.e("s_mov_b32 s%d, 0" % S_T3)
    k.e("s_waitcnt vmcnt(%d)" % ((c.NS - 2) * D))
    k.e("s_barrier")
    gb = k.lab("GRPB"); done = k.lab("PPD")
    k.e("s_cmp_ge_u32 s%d, 4" % S_WAVE)
    k.e("s_cbranch_scc1 %s" % gb)
    pp_loop_body(k, c, r, False, shifted)
    k.e("s_barrier")
    k.e("s_branch %s" % done)
    k.L(gb)
    k.e("s_barrier")
    pp_loop_body(k, c, r, True, shifted)
    k.L(done)
    k.e("s_sub_u32 s%d, 0, s%d" % (S_T0, S_CUR))
    for v in r.vxa + r.vwa:
        k.e("v_add_u32 v%d, s%d, v%d" % (v, S_T0, v))


def gemm_kloop_pp_split(k, c, r):
    D = c.D
    gb = k.lab("GRPB"); done = k.lab("PPD")
    k.e("s_mov_b32 s%d, 0" % S_CUR)
    k.e("s_mov_b32 s%d, 0" % S_T3)
    k.e("s_cmp_ge_u32 s%d, 4" % S_WAVE)
    k.e("s_cbranch_scc1 %s" % gb)
    for s in range(c.NS - 1):
        k.e("s_mov_b32 s%d, %d" % (S_OLD, s * c.STAGE))
        gemm_dma(k, c, r, S_OLD, False)
        k.e("s_add_u32 s%d, s%d, 128" % (S_KX, S_KX))
        k.e("s_add_u32 s%d, s%d, s%d" % (S_KW, S_KW, S_T2))
        k.e("s_add_u32 s%d, s%d, 1" % (S_KT, S_KT))
    k.e("s_mov_b32 s%d, %d" % (S_OLD, (c.NS - 1) * c.STAGE))
    k.e("s_waitcnt vmcnt(%d)" % ((c.NS - 2) * D))
    k.e("s_barrier")
    pp_loop_body(k, c, r, False, False)
    k.e("s_barrier")
    k.e("s_branch %s" % done)
    k.L(gb)
    l2pf_setup(k, c, r)
    for i in range(c.LA):
        l2pf_step(k, c, r, guard=False)
    k.e("s_barrier")
    k.e("s_barrier")
    pp_loop_body(k, c, r, True, False)
    k.L(done)
    k.e("s_sub_u32 s%d, 0, s%d" % (S_T0, S_CUR))
    for v in r.vxa + r.vwa:
        k.e("v_add_u32 v%d, s%d, v%d" % (v, S_T0, v))


def gemm_epilogue_lds(k, c, r, mode, lds_base=0):
    if 'noepi' in DBG:
        return
    t0, t1, t2, t3, t4, t5, t6 = r.vt
    RC = c.BN * 2
    TILE = c.BM * RC
    ep = r.ep
    P = [ep + i for i in range(8)]
    a0, a1, a2, a3 = ep + 8, ep + 9, ep + 10, ep + 11
    k.c("epilogue(lds) " + mode)
    k.nop(15)
    k.nop(7)
    k.e("s_and_b32 s%d, s%d, %d" % (S_T2, S_WAVE, c.WM - 1))
    k.e("s_lshr_b32 s%d, s%d, %d" % (S_T3, S_WAVE, c.WM.bit_length() - 1))
    k.e("v_and_b32 v%d, 31, v0" % t0)
    k.e("s_mul_i32 s%d, s%d, %d" % (S_T0, S_T2, c.TM * 32))
    k.e("v_add_u32 v%d, s%d, v%d" % (t0, S_T0, t0))
    k.e("v_mul_u32_u24 v%d, %d, v%d" % (t1, RC, t0))
    k.e("v_and_b32 v%d, 7, v0" % t0)
    k.e("v_lshl_or_b32 v%d, v%d, 4, v%d" % (t1, t0, t1))
    k.e("v_bfe_u32 v%d, v0, 5, 1" % t0)
    k.e("v_lshl_or_b32 v%d, v%d, 3, v%d" % (t1, t0, t1))
    k.e("s_mul_i32 s%d, s%d, %d" % (S_T0, S_T3, c.TN * 64))
    k.e("v_xor_b32 v%d, s%d, v%d" % (t1, S_T0, t1))
    sets = [(r.acc, 0)] if mode != 'final' else [(r.acc, 0), (None, TILE)]
    for which, (accmap, lbase) in enumerate(sets):
        for tm in range(c.TM):
            for tn in range(c.TN):
                a = r.acc[(tn, tm)] if which == 0 else r.save + (r.acc[(tn, tm)] - r.acc_base)
                for q in range(4):
                    lo, hi = P[0], P[1]
                    k.e("v_cvt_pk_bf16_f32 v%d, v%d, v%d" % (lo, a + 4 * q, a + 4 * q + 1))
                    k.e("v_cvt_pk_bf16_f32 v%d, v%d, v%d" % (hi, a + 4 * q + 2, a + 4 * q + 3))
                    if mode == 'gelu':
                        for pk in (lo, hi):
                            k.e("v_lshlrev_b32 v%d, 16, v%d" % (a0, pk))
                            k.e("v_and_b32 v%d, 0xffff0000, v%d" % (a1, pk))
                            emit_gelu(k, a0, a2, t6)
                            emit_gelu(k, a1, a2, t6)
                            k.e("v_cvt_pk_bf16_f32 v%d, v%d, v%d" % (pk, a0, a1))
                    k.e("v_xor_b32 v%d, %d, v%d" % (t0, (tn * 4 + q) << 4, t1))
                    k.e("ds_write_b64 v%d, v[%d:%d] offset:%d" % (t0, lo, hi, lds_base + lbase + tm * 32 * RC))
    k.e("s_waitcnt lgkmcnt(0)")
    k.e("s_barrier")
    CPR = RC // 16
    RPI = 64 // CPR
    NI = TILE // 1024 // c.NW
    sh = CPR.bit_length() - 1
    k.e("v_and_b32 v%d, 63, v0" % t0)
    k.e("v_lshrrev_b32 v%d, %d, v%d" % (t1, sh, t0))
    k.e("s_mul_i32 s%d, s%d, %d" % (S_T0, S_WAVE, NI * RPI))
    k.e("v_add_u32 v%d, s%d, v%d" % (t1, S_T0, t1))
    k.e("v_and_b32 v%d, %d, v%d" % (t2, CPR - 1, t0))
    k.e("v_and_b32 v%d, 7, v%d" % (t3, t1))
    k.e("v_xor_b32 v%d, v%d, v%d" % (t3, t3, t2))
    k.e("v_mul_u32_u24 v%d, %d, v%d" % (t4, RC, t1))
    k.e("v_lshl_add_u32 v%d, v%d, 4, v%d" % (t4, t3, t4))
    k.e("v_add_u32 v%d, s%d, v%d" % (t3, S_M0, t1))
    k.e("v_mul_lo_u32 v%d, v%d, s%d" % (t5, t3, S_LDC))
    k.e("v_lshl_add_u32 v%d, v%d, 4, v%d" % (t5, t2, t5))
    k.e("s_lshl_b32 s%d, s%d, 1" % (S_T0, S_N0))
    k.e("v_add_u32 v%d, s%d, v%d" % (t5, S_T0, t5))
    k.e("v_lshlrev_b32 v%d, 2, v%d" % (t6, t3))
    assert RPI % 8 == 0 or RPI == 4
    for i in range(NI):
        if RPI == 4 and i > 0:
            k.e("v_add_u32 v%d, %d, v%d" % (t1, RPI, t1))
            k.e("v_and_b32 v%d, 7, v%d" % (t3, t1))
            k.e("v_xor_b32 v%d, v%d, v%d" % (t3, t3, t2))
            k.e("v_mul_u32_u24 v%d, %d, v%d" % (t4, RC, t1))
            k.e("v_lshl_add_u32 v%d, v%d, 4, v%d" % (t4, t3, t4))
        loff = 0 if RPI == 4 else i * 1024
        k.e("s_mul_i32 s%d, s%d, %d" % (S_T1, S_LDC, i * RPI))
        X = ep + 12
        Y = ep + 16
        Z = ep + 20
        k.e("ds_read_b128 %s, v%d offset:%d" % (vr(X, 4), t4, lds_base + loff))
        if mode == 'resid':
            k.e("buffer_load_dwordx4 %s, v%d, %s, s%d offen" % (vr(Y, 4), t5, sr(S_SRDR, 4), S_T1))
            k.e("s_waitcnt vmcnt(0) lgkmcnt(0)")
            for j in range(4):
                k.e("v_lshlrev_b32 v%d, 16, v%d" % (a0, X + j))
                k.e("v_and_b32 v%d, 0xffff0000, v%d" % (a1, X + j))
                k.e("v_lshlrev_b32 v%d, 16, v%d" % (a2, Y + j))
                k.e("v_and_b32 v%d, 0xffff0000, v%d" % (a3, Y + j))
                k.e("v_add_f32 v%d, v%d, v%d" % (a0, a0, a2))
                k.e("v_add_f32 v%d, v%d, v%d" % (a1, a1, a3))
                k.e("v_cvt_pk_bf16_f32 v%d, v%d, v%d" % (X + j, a0, a1))
        elif mode == 'final':
            k.e("ds_read_b128 %s, v%d offset:%d" % (vr(Z, 4), t4, lds_base + TILE + loff))
            k.e("buffer_load_dwordx4 %s, v%d, %s, s%d offen" % (vr(Y, 4), t5, sr(S_SRDR, 4), S_T1))
            k.e("buffer_load_dword v%d, v%d, %s, 0 offen offset:%d" % (P[2], t6, sr(S_SRDG, 4), i * RPI * 4))
            k.e("s_waitcnt vmcnt(0) lgkmcnt(0)")
            k.e("v_sub_f32 v%d, 1.0, v%d" % (P[3], P[2]))
            rnd_bf16(k, P[3])
            for j in range(4):
                k.e("v_lshlrev_b32 v%d, 16, v%d" % (a0, X + j))
                k.e("v_and_b32 v%d, 0xffff0000, v%d" % (a1, X + j))
                k.e("v_lshlrev_b32 v%d, 16, v%d" % (a2, Y + j))
                k.e("v_and_b32 v%d, 0xffff0000, v%d" % (a3, Y + j))
                k.e("v_add_f32 v%d, v%d, v%d" % (a0, a0, a2))
                k.e("v_add_f32 v%d, v%d, v%d" % (a1, a1, a3))
                k.e("v_cvt_pk_bf16_f32 v%d, v%d, v%d" % (a2, a0, a1))
                k.e("v_lshlrev_b32 v%d, 16, v%d" % (a0, a2))
                k.e("v_and_b32 v%d, 0xffff0000, v%d" % (a1, a2))
                k.e("v_mul_f32 v%d, v%d, v%d" % (a0, a0, P[3]))
                k.e("v_mul_f32 v%d, v%d, v%d" % (a1, a1, P[3]))
                k.e("v_cvt_pk_bf16_f32 v%d, v%d, v%d" % (a2, a0, a1))
                k.e("v_lshlrev_b32 v%d, 16, v%d" % (a0, a2))
                k.e("v_and_b32 v%d, 0xffff0000, v%d" % (a1, a2))
                k.e("v_lshlrev_b32 v%d, 16, v%d" % (a2, Z + j))
                k.e("v_and_b32 v%d, 0xffff0000, v%d" % (a3, Z + j))
                k.e("v_mul_f32 v%d, v%d, v%d" % (a2, a2, P[2]))
                k.e("v_mul_f32 v%d, v%d, v%d" % (a3, a3, P[2]))
                k.e("v_cvt_pk_bf16_f32 v%d, v%d, v%d" % (a3, a2, a3))
                k.e("v_lshlrev_b32 v%d, 16, v%d" % (a2, a3))
                k.e("v_and_b32 v%d, 0xffff0000, v%d" % (a3, a3))
                k.e("v_add_f32 v%d, v%d, v%d" % (a0, a0, a2))
                k.e("v_add_f32 v%d, v%d, v%d" % (a1, a1, a3))
                k.e("v_cvt_pk_bf16_f32 v%d, v%d, v%d" % (X + j, a0, a1))
        else:
            k.e("s_waitcnt lgkmcnt(0)")
        sfx = ""
        if 'stnt' in DBG: sfx = " nt"
        if 'stsc1' in DBG: sfx = " sc1"
        if 'stsc01' in DBG: sfx = " sc0 sc1"
        if 'nost' not in DBG:
            k.e("buffer_store_dwordx4 %s, v%d, %s, s%d offen%s" % (vr(X, 4), t5, sr(S_SRDC, 4), S_T1, sfx))
        k.nop(1)


def emit_gelu2(k, x0, x1, t0, t1, c1, c2):
    k.e("v_pk_mul_f32 v[%d:%d], v[%d:%d], v[%d:%d]" % (t0, t0 + 1, x0, x0 + 1, x0, x0 + 1))
    k.e("v_pk_fma_f32 v[%d:%d], v[%d:%d], v[%d:%d], 1.0 op_sel_hi:[1,1,0]" % (t0, t0 + 1, t0, t0 + 1, c1, c1 + 1))
    k.e("v_pk_mul_f32 v[%d:%d], v[%d:%d], v[%d:%d]" % (t0, t0 + 1, t0, t0 + 1, x0, x0 + 1))
    k.e("v_pk_mul_f32 v[%d:%d], v[%d:%d], v[%d:%d]" % (t0, t0 + 1, t0, t0 + 1, c2, c2 + 1))
    k.e("v_exp_f32 v%d, v%d" % (t0, t0))
    k.e("v_exp_f32 v%d, v%d" % (t0 + 1, t0 + 1))
    k.nop(0)
    k.e("v_pk_add_f32 v[%d:%d], v[%d:%d], 1.0 op_sel_hi:[1,0]" % (t0, t0 + 1, t0, t0 + 1))
    k.e("v_rcp_f32 v%d, v%d" % (t0, t0))
    k.e("v_rcp_f32 v%d, v%d" % (t0 + 1, t0 + 1))
    k.nop(0)
    k.e("v_pk_mul_f32 v[%d:%d], v[%d:%d], v[%d:%d]" % (x0, x0 + 1, x0, x0 + 1, t0, t0 + 1))


def gemm_epilogue2(k, c, r, mode):
    if 'noepi' in DBG:
        return
    t0, t1, t2, t3, t4, t5, t6 = r.vt
    RCF = c.BN * 4
    TILE = c.BM * RCF
    ep = r.ep
    CPR = c.BN // 8
    RPI = 64 // CPR
    NI = c.BM // RPI // c.NW
    sh = CPR.bit_length() - 1
    pre = mode in ('resid', 'final')
    k.c("epilogue2 " + mode)
    k.e("v_and_b32 v%d, 63, v0" % t0)
    k.e("v_lshrrev_b32 v%d, %d, v%d" % (t1, sh, t0))
    k.e("s_mul_i32 s%d, s%d, %d" % (S_T0, S_WAVE, NI * RPI))
    k.e("v_add_u32 v%d, s%d, v%d" % (t1, S_T0, t1))
    k.e("v_and_b32 v%d, %d, v%d" % (t2, CPR - 1, t0))
    k.e("v_and_b32 v%d, 7, v%d" % (t3, t1))
    k.e("v_lshlrev_b32 v%d, 1, v%d" % (t4, t2))
    k.e("v_xor_b32 v%d, v%d, v%d" % (t3, t3, t4))
    k.e("v_mul_u32_u24 v%d, %d, v%d" % (t4, RCF, t1))
    k.e("v_lshl_add_u32 v%d, v%d, 4, v%d" % (t4, t3, t4))
    k.e("v_add_u32 v%d, s%d, v%d" % (t3, S_M0, t1))
    k.e("v_mul_lo_u32 v%d, v%d, s%d" % (t5, t3, S_LDC))
    k.e("v_lshl_add_u32 v%d, v%d, 4, v%d" % (t5, t2, t5))
    k.e("s_lshl_b32 s%d, s%d, 1" % (S_T0, S_N0))
    k.e("v_add_u32 v%d, s%d, v%d" % (t5, S_T0, t5))
    k.e("v_lshlrev_b32 v%d, 2, v%d" % (t6, t3))
    X = ep; X2 = ep + 4; Z = ep + 8; Z2 = ep + 12
    T = ep + 16; G1 = ep + 18; C1 = ep + 20; C2 = ep + 22; U = ep + 24
    YB = ep + 28
    GB = YB + 4 * NI
    if pre:
        for i in range(NI):
            k.e("s_mul_i32 s%d, s%d, %d" % (S_T1, S_LDC, i * RPI))
            k.e("buffer_load_dwordx4 %s, v%d, %s, s%d offen" % (vr(YB + 4 * i, 4), t5, sr(S_SRDR, 4), S_T1))
            if mode == 'final':
                k.e("buffer_load_dword v%d, v%d, %s, 0 offen offset:%d" % (GB + i, t6, sr(S_SRDG, 4), i * RPI * 4))
    k.nop(15)
    k.nop(7)
    k.e("s_and_b32 s%d, s%d, %d" % (S_T2, S_WAVE, c.WM - 1))
    k.e("s_lshr_b32 s%d, s%d, %d" % (S_T3, S_WAVE, c.WM.bit_length() - 1))
    k.e("v_and_b32 v%d, 31, v0" % t0)
    k.e("s_mul_i32 s%d, s%d, %d" % (S_T0, S_T2, c.TM * 32))
    k.e("v_add_u32 v%d, s%d, v%d" % (t0, S_T0, t0))
    k.e("v_mul_u32_u24 v%d, %d, v%d" % (t1, RCF, t0))
    k.e("v_and_b32 v%d, 7, v0" % t0)
    k.e("v_bfe_u32 v%d, v0, 5, 1" % t2)
    k.e("v_xor_b32 v%d, v%d, v%d" % (t0, t0, t2))
    k.e("s_mul_i32 s%d, s%d, %d" % (S_T0, S_T3, c.TN * 8))
    k.e("v_xor_b32 v%d, s%d, v%d" % (t0, S_T0, t0))
    k.e("v_lshl_add_u32 v%d, v%d, 4, v%d" % (t1, t0, t1))
    nset = 2 if mode == 'final' else 1
    for which in range(nset):
        if which == 1:
            k.e("v_add_u32 v%d, %d, v%d" % (t1, TILE, t1))
        for tm in range(c.TM):
            for tn in range(c.TN):
                a = r.acc[(tn, tm)] if which == 0 else r.save + (r.acc[(tn, tm)] - r.acc_base)
                for q in range(4):
                    k.e("v_xor_b32 v%d, %d, v%d" % (t0, (2 * q + 8 * tn) << 4, t1))
                    k.e("ds_write_b128 v%d, v[%d:%d] offset:%d" % (t0, a + 4 * q, a + 4 * q + 3, tm * 32 * RCF))
    k.e("s_waitcnt lgkmcnt(0)")
    k.e("s_barrier")
    k.e("s_mov_b32 s%d, 0" % S_T1)
    k.e("s_mul_i32 s%d, s%d, %d" % (S_T3, S_LDC, RPI))
    if mode == 'gelu':
        k.e("v_mov_b32 v%d, 0x3d372713" % C1); k.e("v_mov_b32 v%d, 0x3d372713" % (C1 + 1))
        k.e("v_mov_b32 v%d, 0xc0135761" % C2); k.e("v_mov_b32 v%d, 0xc0135761" % (C2 + 1))

    def body(i):
        k.e("v_xor_b32 v%d, 16, v%d" % (t0, t4))
        k.e("ds_read_b128 %s, v%d" % (vr(X, 4), t4))
        k.e("ds_read_b128 %s, v%d" % (vr(X2, 4), t0))
        if mode == 'final':
            k.e("v_add_u32 v%d, %d, v%d" % (t1, TILE, t4))
            k.e("v_add_u32 v%d, %d, v%d" % (t2, TILE, t0))
            k.e("ds_read_b128 %s, v%d" % (vr(Z, 4), t1))
            k.e("ds_read_b128 %s, v%d" % (vr(Z2, 4), t2))
        if pre and i == 0:
            k.e("s_waitcnt vmcnt(0) lgkmcnt(0)")
        else:
            k.e("s_waitcnt lgkmcnt(0)")
        G = GB + i if pre else None
        if mode == 'final':
            k.e("v_sub_f32 v%d, 1.0, v%d" % (G1, G))
            rnd_bf16(k, G1)
        for j in range(4):
            xa = X + 2 * j
            if mode == 'store':
                k.e("v_cvt_pk_bf16_f32 v%d, v%d, v%d" % (U + j, xa, xa + 1))
                continue
            k.e("v_cvt_pk_bf16_f32 v%d, v%d, v%d" % (T, xa, xa + 1))
            k.e("v_lshlrev_b32 v%d, 16, v%d" % (xa, T))
            k.e("v_and_b32 v%d, 0xffff0000, v%d" % (xa + 1, T))
            if mode == 'gelu':
                emit_gelu2(k, xa, xa + 1, T, None, C1, C2)
            else:
                Y = YB + 4 * i
                k.e("v_lshlrev_b32 v%d, 16, v%d" % (T, Y + j))
                k.e("v_and_b32 v%d, 0xffff0000, v%d" % (T + 1, Y + j))
                k.e("v_pk_add_f32 v[%d:%d], v[%d:%d], v[%d:%d]" % (xa, xa + 1, xa, xa + 1, T, T + 1))
                if mode == 'final':
                    k.e("v_cvt_pk_bf16_f32 v%d, v%d, v%d" % (T, xa, xa + 1))
                    k.e("v_lshlrev_b32 v%d, 16, v%d" % (xa, T))
                    k.e("v_and_b32 v%d, 0xffff0000, v%d" % (xa + 1, T))
                    k.e("v_mul_f32 v%d, v%d, v%d" % (xa, xa, G1))
                    k.e("v_mul_f32 v%d, v%d, v%d" % (xa + 1, xa + 1, G1))
                    k.e("v_cvt_pk_bf16_f32 v%d, v%d, v%d" % (T, xa, xa + 1))
                    k.e("v_lshlrev_b32 v%d, 16, v%d" % (xa, T))
                    k.e("v_and_b32 v%d, 0xffff0000, v%d" % (xa + 1, T))
                    za = Z + 2 * j
                    k.e("v_cvt_pk_bf16_f32 v%d, v%d, v%d" % (T, za, za + 1))
                    k.e("v_lshlrev_b32 v%d, 16, v%d" % (za, T))
                    k.e("v_and_b32 v%d, 0xffff0000, v%d" % (za + 1, T))
                    k.e("v_mul_f32 v%d, v%d, v%d" % (za, za, G))
                    k.e("v_mul_f32 v%d, v%d, v%d" % (za + 1, za + 1, G))
                    k.e("v_cvt_pk_bf16_f32 v%d, v%d, v%d" % (T, za, za + 1))
                    k.e("v_lshlrev_b32 v%d, 16, v%d" % (za, T))
                    k.e("v_and_b32 v%d, 0xffff0000, v%d" % (za + 1, T))
                    k.e("v_pk_add_f32 v[%d:%d], v[%d:%d], v[%d:%d]" % (xa, xa + 1, xa, xa + 1, za, za + 1))
            k.e("v_cvt_pk_bf16_f32 v%d, v%d, v%d" % (U + j, xa, xa + 1))
        k.e("buffer_store_dwordx4 %s, v%d, %s, s%d offen" % (vr(U, 4), t5, sr(S_SRDC, 4), S_T1))
        k.e("v_add_u32 v%d, %d, v%d" % (t4, RPI * RCF, t4))
        if RPI == 4:
            k.e("v_xor_b32 v%d, 64, v%d" % (t4, t4))
        k.e("s_add_u32 s%d, s%d, s%d" % (S_T1, S_T1, S_T3))

    if pre:
        for i in range(NI):
            body(i)
    else:
        k.e("s_mov_b32 s%d, %d" % (S_KT, NI))
        loop = k.lab("EPL")
        k.L(loop)
        body(0)
        k.e("s_sub_u32 s%d, s%d, 1" % (S_KT, S_KT))
        k.e("s_cmp_lg_u32 s%d, 0" % S_KT)
        k.e("s_cbranch_scc1 %s" % loop)


def stamp(k, idx):
    if 'stamp' not in DBG:
        return
    k.e("s_memtime s[%d:%d]" % (80 + 2 * idx, 81 + 2 * idx))


def stamp_flush(k, n):
    if 'stamp' not in DBG:
        return
    skip = k.lab("SKIPST")
    k.e("s_waitcnt lgkmcnt(0)")
    k.e("s_cmp_lg_u32 s2, 5")
    k.e("s_cbranch_scc1 %s" % skip)
    k.e("s_cmp_lg_u32 s%d, 0" % S_WAVE)
    k.e("s_cbranch_scc1 %s" % skip)
    k.e("s_load_dwordx2 s[56:57], s[0:1], 88")
    k.e("s_waitcnt lgkmcnt(0)")
    k.e("s_mov_b32 s58, 256")
    k.e("s_mov_b32 s59, 0x00020000")
    for i in range(n):
        k.e("v_mov_b32 v1, s%d" % (80 + 2 * i))
        k.e("v_mov_b32 v2, %d" % (4 * i))
        k.e("buffer_store_dword v1, v2, s[56:59], 0 offen")
    k.L(skip)


def rstamp_begin(k):
    if 'rstamp' in DBG:
        k.e("s_memrealtime s[70:71]")


def rstamp_end(k):
    if 'rstamp' not in DBG:
        return
    skip = k.lab("SKIPRS")
    k.e("s_memrealtime s[72:73]")
    k.e("s_waitcnt lgkmcnt(0)")
    k.e("s_cmp_lg_u32 s%d, 0" % S_WAVE)
    k.e("s_cbranch_scc1 %s" % skip)
    k.e("s_load_dwordx2 s[56:57], s[0:1], 96")
    k.e("s_waitcnt lgkmcnt(0)")
    k.e("s_add_u32 s56, s56, 0xc800000")
    k.e("s_addc_u32 s57, s57, 0")
    k.e("s_mov_b32 s58, 65536")
    k.e("s_mov_b32 s59, 0x00020000")
    k.e("s_lshl_b32 s74, s2, 3")
    k.e("v_mov_b32 v2, s70")
    k.e("v_mov_b32 v3, s72")
    k.e("v_mov_b32 v4, s74")
    k.e("buffer_store_dwordx2 v[2:3], v4, s[56:59], 0 offen")
    k.L(skip)


def gemm_head(k, nwg):
    end = k.lab("END")
    for d in DBG:
        if d.startswith('lim'):
            nwg = int(d[3:])
    k.e("s_cmp_ge_u32 s2, %d" % nwg)
    k.e("s_cbranch_scc1 %s" % end)
    k.e("v_lshrrev_b32 v1, 6, v0")
    k.nop(0)
    k.e("v_readfirstlane_b32 s%d, v1" % S_WAVE)
    return end


def setup_prefetch(k, c, r, items):
    c.PF = len(items)
    c.D = c.XI + c.WI + (0 if c.SPLIT else c.PF)
    for p, (key, nb) in enumerate(items):
        load_ptr(k, 74, key)
        k.e("s_waitcnt lgkmcnt(0)")
        make_srd(k, 64 + 4 * p, 74, 0, nb)
    k.e("v_and_b32 v%d, 63, v0" % r.vpf)
    k.e("v_cmp_gt_u32 vcc, %d, v%d" % (4 if c.SPLIT else 2, r.vpf))
    k.e("v_lshlrev_b32 v%d, 7, v%d" % (r.vpf, r.vpf))
    k.e("v_mov_b32 v%d, 0x7ffffff0" % (r.vpf + 1))
    k.e("v_cndmask_b32 v%d, v%d, v%d, vcc" % (r.vpf, r.vpf + 1, r.vpf))
    if c.SPLIT:
        k.e("s_lshl_b32 s72, s2, 2")
        k.e("s_add_u32 s72, s72, s%d" % S_WAVE)
        k.e("s_sub_u32 s72, s72, 4")
        k.e("s_mul_i32 s72, s72, s%d" % S_NK)
        k.e("s_lshl_b32 s72, s72, 9")
    else:
        k.e("s_lshl_b32 s72, s2, 3")
        k.e("s_add_u32 s72, s72, s%d" % S_WAVE)
        k.e("s_mul_i32 s72, s72, s%d" % S_NK)
        k.e("s_lshl_b32 s72, s72, 8")


def gen_gemm1():
    c = GemmCfg(4, 2, 2, 2, DW=4)
    r = GemmRegsPP(c)
    k = K("gemm1_kernel")
    end = gemm_head(k, 256)
    stamp(k, 0)
    rstamp_begin(k)
    load_ptr(k, 44, "A_x"); load_ptr(k, 46, "wqkv"); load_ptr(k, 48, "ws"); load_ptr(k, 50, "w1")
    k.e("s_waitcnt lgkmcnt(0)")
    pb = k.lab("PB"); go = k.lab("GO")
    k.e("s_and_b32 s%d, s2, 1" % S_M0)
    k.e("s_lshl_b32 s%d, s%d, 2" % (S_M0, S_M0))
    k.e("s_bfe_u32 s%d, s2, 0x20003" % S_T0)
    k.e("s_add_u32 s%d, s%d, s%d" % (S_M0, S_M0, S_T0))
    k.e("s_lshl_b32 s%d, s%d, 8" % (S_M0, S_M0))
    k.e("s_bfe_u32 s%d, s2, 0x20001" % S_T1)
    k.e("s_lshl_b32 s%d, s%d, 3" % (S_T1, S_T1))
    k.e("s_lshr_b32 s%d, s2, 5" % S_T0)
    k.e("s_add_u32 s%d, s%d, s%d" % (S_T1, S_T1, S_T0))
    k.e("s_cmp_ge_u32 s%d, 24" % S_T1)
    k.e("s_cbranch_scc1 %s" % pb)
    make_srd(k, S_SRDX, 44, 0, SZ_ACT)
    make_srd(k, S_SRDW, 46, 0, 1024 * 3072 * 2)
    make_srd(k, S_SRDC, 48, WS_QKV, SZ_QKV)
    k.e("s_mov_b32 s%d, 2048" % S_LDX); k.e("s_mov_b32 s%d, 6144" % S_LDW); k.e("s_mov_b32 s%d, 6144" % S_LDC)
    k.e("s_mov_b32 s%d, 0" % S_FLAG)
    k.e("s_branch %s" % go)
    k.L(pb)
    make_srd(k, S_SRDX, 48, WS_LNX, SZ_ACT)
    make_srd(k, S_SRDW, 50, 0, 1024 * 1024 * 2)
    make_srd(k, S_SRDC, 48, WS_H, SZ_ACT)
    k.e("s_mov_b32 s%d, 2048" % S_LDX); k.e("s_mov_b32 s%d, 2048" % S_LDW); k.e("s_mov_b32 s%d, 2048" % S_LDC)
    k.e("s_mov_b32 s%d, 1" % S_FLAG)
    k.e("s_sub_u32 s%d, s%d, 24" % (S_T1, S_T1))
    k.L(go)
    k.e("s_mov_b32 s%d, 16" % S_NK)
    k.e("s_lshl_b32 s%d, s%d, 7" % (S_N0, S_T1))
    setup_prefetch(k, c, r, [('w3', 1024 * 3584 * 2), ('w2', 1024 * 1024 * 2)])
    gemm_lane_setup(k, c, r)
    k.e("s_mul_i32 s%d, s%d, s%d" % (S_KX, S_M0, S_LDX))
    k.e("s_lshl_b32 s%d, s%d, 1" % (S_KW, S_N0))
    stamp(k, 1)
    gemm_kloop_pp(k, c, r)
    stamp(k, 2)
    eg = k.lab("EG")
    k.e("s_cmp_eq_u32 s%d, 1" % S_FLAG)
    k.e("s_cbranch_scc1 %s" % eg)
    gemm_epilogue2(k, c, r, 'store')
    stamp(k, 3)
    k.e('s_waitcnt vmcnt(0)')
    stamp(k, 4)
    stamp_flush(k, 5)
    rstamp_end(k)
    k.e("s_endpgm")
    k.L(eg)
    gemm_epilogue2(k, c, r, 'gelu')
    k.L(end)
    k.e("s_endpgm")
    return k, r.end, c.LDS, 512


def gen_gemm2():
    c = GemmCfg(2, 2, 2, 1)
    r = GemmRegs(c, shifted=True)
    r.ep = r.end
    k = K("gemm2_kernel")
    end = gemm_head(k, 256)
    load_ptr(k, 44, "A_x"); load_ptr(k, 46, "w2"); load_ptr(k, 48, "ws")
    k.e("s_waitcnt lgkmcnt(0)")
    make_srd(k, S_SRDX, 48, WS_H, SZ_ACT)
    make_srd(k, S_SRDW, 46, 0, 1024 * 1024 * 2)
    make_srd(k, S_SRDC, 48, WS_X1, SZ_ACT)
    make_srd(k, S_SRDR, 44, 0, SZ_ACT)
    k.e("s_mov_b32 s%d, 2048" % S_LDX); k.e("s_mov_b32 s%d, 2048" % S_LDW); k.e("s_mov_b32 s%d, 2048" % S_LDC)
    k.e("s_mov_b32 s%d, 16" % S_NK)
    k.e("s_and_b32 s%d, s2, 15" % S_M0)
    k.e("s_lshl_b32 s%d, s%d, 7" % (S_M0, S_M0))
    k.e("s_lshr_b32 s%d, s2, 4" % S_N0)
    k.e("s_lshl_b32 s%d, s%d, 6" % (S_N0, S_N0))
    gemm_lane_setup(k, c, r)
    k.e("s_mov_b32 s%d, 0" % S_KX)
    k.e("s_lshl_b32 s%d, s%d, 1" % (S_KW, S_N0))
    gemm_kloop(k, c, r, shifted=True)
    k.e('s_barrier')
    gemm_epilogue2(k, c, r, 'resid')
    k.L(end)
    k.e("s_endpgm")
    return k, r.ep + 48, c.LDS, 256


def gen_gemm4():
    c = GemmCfg(4, 2, 2, 2, DW=4)
    r = GemmRegsPP(c)
    k = K("gemm4_kernel")
    end = gemm_head(k, 224)
    load_ptr(k, 46, "w3"); load_ptr(k, 48, "ws")
    k.e("s_waitcnt lgkmcnt(0)")
    make_srd(k, S_SRDX, 48, WS_LNX1, SZ_ACT)
    make_srd(k, S_SRDW, 46, 0, 1024 * 3584 * 2)
    make_srd(k, S_SRDC, 48, WS_H3, SZ_H3)
    k.e("s_mov_b32 s%d, 2048" % S_LDX); k.e("s_mov_b32 s%d, 7168" % S_LDW); k.e("s_mov_b32 s%d, 7168" % S_LDC)
    k.e("s_mov_b32 s%d, 16" % S_NK)
    k.e("s_and_b32 s%d, s2, 7" % S_M0)
    k.e("s_lshl_b32 s%d, s%d, 8" % (S_M0, S_M0))
    k.e("s_lshr_b32 s%d, s2, 3" % S_N0)
    k.e("s_lshl_b32 s%d, s%d, 7" % (S_N0, S_N0))
    setup_prefetch(k, c, r, [('w4', 1024 * 3584 * 2), ('wo', 1024 * 1024 * 2)])
    gemm_lane_setup(k, c, r)
    k.e("s_mul_i32 s%d, s%d, s%d" % (S_KX, S_M0, S_LDX))
    k.e("s_lshl_b32 s%d, s%d, 1" % (S_KW, S_N0))
    gemm_kloop_pp(k, c, r)
    gemm_epilogue2(k, c, r, 'gelu')
    k.L(end)
    k.e("s_endpgm")
    return k, r.end, c.LDS, 512


def gen_gemm5():
    c = GemmCfg(2, 4, 2, 1, NS=4)
    r = GemmRegsPP(c, nsave=32)
    k = K("gemm5_kernel")
    end = gemm_head(k, 256)
    stamp(k, 0)
    load_ptr(k, 44, "wo"); load_ptr(k, 46, "w4"); load_ptr(k, 48, "ws"); load_ptr(k, 50, "out")
    k.e("s_waitcnt lgkmcnt(0)")
    make_srd(k, S_SRDC, 50, 0, SZ_ACT)
    make_srd(k, S_SRDR, 48, WS_X1, SZ_ACT)
    make_srd(k, S_SRDG, 48, WS_G, 2048 * 4)
    make_srd(k, 52, 48, WS_PART, 128 * 65536)
    make_srd(k, 56, 48, WS_FLAG, 1024)
    k.e("s_mov_b32 s%d, 2048" % S_LDW); k.e("s_mov_b32 s%d, 2048" % S_LDC)
    k.e("s_bfe_u32 s%d, s2, 0x10003" % S_FLAG)
    k.e("s_lshr_b32 s60, s2, 4")
    k.e("s_lshl_b32 s60, s60, 3")
    k.e("s_and_b32 s61, s2, 7")
    k.e("s_add_u32 s60, s60, s61")
    k.e("s_and_b32 s%d, s60, 15" % S_M0)
    k.e("s_lshl_b32 s%d, s%d, 7" % (S_M0, S_M0))
    k.e("s_lshr_b32 s%d, s60, 4" % S_N0)
    k.e("s_lshl_b32 s%d, s%d, 7" % (S_N0, S_N0))
    h1 = k.lab("HALF1"); fin = k.lab("FIN")
    k.e("s_cmp_eq_u32 s%d, 1" % S_FLAG)
    k.e("s_cbranch_scc1 %s" % h1)
    make_srd(k, S_SRDX, 48, WS_O, SZ_ACT)
    make_srd(k, S_SRDW, 44, 0, 1024 * 1024 * 2)
    k.e("s_mov_b32 s%d, 2048" % S_LDX)
    k.e("s_mov_b32 s%d, 16" % S_NK)
    gemm_lane_setup(k, c, r)
    k.e("s_mul_i32 s%d, s%d, s%d" % (S_KX, S_M0, S_LDX))
    k.e("s_lshl_b32 s%d, s%d, 1" % (S_KW, S_N0))
    gemm_kloop_pp(k, c, r)
    stamp(k, 1)
    k.nop(15); k.nop(7)
    for i in range(r.nacc):
        k.e("v_mov_b32 v%d, v%d" % (r.save + i, r.acc_base + i))
    make_srd(k, S_SRDX, 48, WS_H3, SZ_H3)
    make_srd(k, S_SRDW, 46, 0, 3584 * 1024 * 2)
    k.e("s_mov_b32 s%d, 7168" % S_LDX)
    k.e("s_mov_b32 s%d, 20" % S_NK)
    gemm_lane_setup(k, c, r)
    k.e("s_mul_i32 s%d, s%d, s%d" % (S_KX, S_M0, S_LDX))
    k.e("s_lshl_b32 s%d, s%d, 1" % (S_KW, S_N0))
    gemm_kloop_pp(k, c, r)
    stamp(k, 2)
    k.nop(15); k.nop(7)
    poll = k.lab("POLL"); got = k.lab("GOT")
    k.e("s_lshl_b32 s61, s60, 2")
    k.e("v_mov_b32 v1, s61")
    k.e("s_mov_b32 s62, 0")
    k.L(poll)
    k.e("buffer_load_dword v2, v1, s[56:59], 0 offen sc1")
    k.e("s_waitcnt vmcnt(0)")
    k.e("v_readfirstlane_b32 s63, v2")
    k.e("s_cmp_eq_u32 s63, 0x5a5a")
    k.e("s_cbranch_scc1 %s" % got)
    k.e("s_sleep 2")
    k.e("s_add_u32 s62, s62, 1")
    k.e("s_cmp_lt_u32 s62, 0x400000")
    k.e("s_cbranch_scc1 %s" % poll)
    k.L(got)
    stamp(k, 3)
    k.e("s_barrier")
    k.e("s_lshl_b32 s61, s60, 16")
    k.e("s_mul_i32 s62, s%d, 8192" % S_WAVE)
    k.e("s_add_u32 s61, s61, s62")
    k.e("v_and_b32 v1, 63, v0")
    k.e("v_lshlrev_b32 v1, 4, v1")
    F = r.FX[0][0]
    for i in range(8):
        k.e("buffer_load_dwordx4 %s, v1, s[52:55], s61 offen offset:%d sc1" % (vr(F + 4 * i, 4), (i & 3) * 1024))
        if i == 3:
            k.e("s_add_u32 s61, s61, 4096")
    k.e("s_waitcnt vmcnt(0)")
    for i in range(32):
        k.e("v_add_f32 v%d, v%d, v%d" % (r.acc_base + i, r.acc_base + i, F + i))
    gemm_epilogue2(k, c, r, 'final')
    stamp(k, 4)
    stamp_flush(k, 5)
    k.e("s_endpgm")
    k.L(h1)
    make_srd(k, S_SRDX, 48, WS_H3, SZ_H3)
    make_srd(k, S_SRDW, 46, 0, 3584 * 1024 * 2)
    k.e("s_mov_b32 s%d, 7168" % S_LDX)
    k.e("s_mov_b32 s%d, 36" % S_NK)
    gemm_lane_setup(k, c, r)
    k.e("s_mul_i32 s%d, s%d, s%d" % (S_KX, S_M0, S_LDX))
    k.e("s_add_u32 s%d, s%d, %d" % (S_KX, S_KX, 20 * 128))
    k.e("s_lshl_b32 s%d, s%d, 1" % (S_KW, S_N0))
    k.e("s_add_u32 s%d, s%d, %d" % (S_KW, S_KW, 20 * 64 * 2048))
    gemm_kloop_pp(k, c, r)
    k.nop(15); k.nop(7)
    k.e("s_lshl_b32 s61, s60, 16")
    k.e("s_mul_i32 s62, s%d, 8192" % S_WAVE)
    k.e("s_add_u32 s61, s61, s62")
    k.e("v_and_b32 v1, 63, v0")
    k.e("v_lshlrev_b32 v1, 4, v1")
    for i in range(8):
        k.e("buffer_store_dwordx4 %s, v1, s[52:55], s61 offen offset:%d sc1" % (vr(r.acc_base + 4 * i, 4), (i & 3) * 1024))
        if i == 3:
            k.e("s_add_u32 s61, s61, 4096")
    k.e("s_waitcnt vmcnt(0)")
    k.e("s_barrier")
    k.e("s_cmp_lg_u32 s%d, 0" % S_WAVE)
    k.e("s_cbranch_scc1 %s" % end)
    k.e("s_lshl_b32 s61, s60, 2")
    k.e("v_mov_b32 v1, s61")
    k.e("v_mov_b32 v2, 0x5a5a")
    k.e("v_cmp_eq_u32 vcc, 0, v0")
    k.e("s_and_saveexec_b64 s[62:63], vcc")
    k.e("buffer_store_dword v2, v1, s[56:59], 0 offen sc1")
    k.L(end)
    k.e("s_endpgm")
    return k, r.end, c.LDS, 512


def emit_softmax_pm(k, d, ep_, em_, tmp, vperm):
    mx, mn, t0, t1, sp, sm = tmp, tmp + 1, tmp + 2, tmp + 3, tmp + 4, tmp + 5
    E = tmp + 6
    for i in range(8):
        k.e("v_cvt_pk_bf16_f32 v%d, v%d, v%d" % (t0, d + 2 * i, d + 2 * i + 1))
        k.e("v_lshlrev_b32 v%d, 16, v%d" % (d + 2 * i, t0))
        k.e("v_and_b32 v%d, 0xffff0000, v%d" % (d + 2 * i + 1, t0))
    k.e("v_max_f32 v%d, v%d, v%d" % (mx, d, d + 1))
    k.e("v_min_f32 v%d, v%d, v%d" % (mn, d, d + 1))
    for i in range(1, 8):
        k.e("v_max3_f32 v%d, v%d, v%d, v%d" % (mx, mx, d + 2 * i, d + 2 * i + 1))
        k.e("v_min3_f32 v%d, v%d, v%d, v%d" % (mn, mn, d + 2 * i, d + 2 * i + 1))
    k.e("ds_bpermute_b32 v%d, v%d, v%d" % (t0, vperm, mx))
    k.e("ds_bpermute_b32 v%d, v%d, v%d" % (t1, vperm, mn))
    k.e("s_waitcnt lgkmcnt(0)")
    k.e("v_max_f32 v%d, v%d, v%d" % (mx, mx, t0))
    k.e("v_min_f32 v%d, v%d, v%d" % (mn, mn, t1))
    k.e("v_mul_f32 v%d, 0x%x, v%d" % (mx, LOG2E ^ 0x80000000, mx))
    k.e("v_mul_f32 v%d, 0x%x, v%d" % (mn, LOG2E, mn))
    k.e("v_mov_b32 v%d, 0x%x" % (t0, LOG2E))
    for i in range(16):
        k.e("v_fma_f32 v%d, v%d, v%d, v%d" % (E + i, d + i, t0, mx))
        k.e("v_fma_f32 v%d, -v%d, v%d, v%d" % (E + 16 + i, d + i, t0, mn))
        k.e("v_exp_f32 v%d, v%d" % (E + i, E + i))
        k.e("v_exp_f32 v%d, v%d" % (E + 16 + i, E + 16 + i))
    k.nop(0)
    k.e("v_add_f32 v%d, v%d, v%d" % (sp, E, E + 1))
    k.e("v_add_f32 v%d, v%d, v%d" % (sm, E + 16, E + 17))
    for i in range(2, 16):
        k.e("v_add_f32 v%d, v%d, v%d" % (sp, sp, E + i))
        k.e("v_add_f32 v%d, v%d, v%d" % (sm, sm, E + 16 + i))
    k.e("ds_bpermute_b32 v%d, v%d, v%d" % (t0, vperm, sp))
    k.e("ds_bpermute_b32 v%d, v%d, v%d" % (t1, vperm, sm))
    k.e("s_waitcnt lgkmcnt(0)")
    k.e("v_add_f32 v%d, v%d, v%d" % (sp, sp, t0))
    k.e("v_add_f32 v%d, v%d, v%d" % (sm, sm, t1))
    k.e("v_rcp_f32 v%d, v%d" % (sp, sp))
    k.e("v_rcp_f32 v%d, v%d" % (sm, sm))
    k.nop(0)
    for i in range(8):
        k.e("v_mul_f32 v%d, v%d, v%d" % (E + 2 * i, E + 2 * i, sp))
        k.e("v_mul_f32 v%d, v%d, v%d" % (E + 2 * i + 1, E + 2 * i + 1, sp))
        k.e("v_cvt_pk_bf16_f32 v%d, v%d, v%d" % (ep_ + i, E + 2 * i, E + 2 * i + 1))
        k.e("v_mul_f32 v%d, v%d, v%d" % (E + 16 + 2 * i, E + 16 + 2 * i, sm))
        k.e("v_mul_f32 v%d, v%d, v%d" % (E + 16 + 2 * i + 1, E + 16 + 2 * i + 1, sm))
        k.e("v_cvt_pk_bf16_f32 v%d, v%d, v%d" % (em_ + i, E + 16 + 2 * i, E + 16 + 2 * i + 1))


def emit_wphi_load(k, srd, s_hd, wp, vlane31, vh, t0, tmp=144):
    k.e("v_lshlrev_b32 v%d, 9, v%d" % (t0, vh))
    k.e("v_lshl_add_u32 v%d, v%d, 1, v%d" % (t0, vlane31, t0))
    k.e("s_lshl_b32 s40, s%d, 11" % s_hd)
    for t in range(2):
        for e in range(8):
            k.e("buffer_load_ushort v%d, v%d, %s, s40 offen offset:%d" % (tmp + 8 * t + e, t0, sr(srd, 4), (16 * t + e) * 64))
    k.e("s_waitcnt vmcnt(0)")
    for t in range(2):
        for e in range(0, 8, 2):
            k.e("v_lshl_or_b32 v%d, v%d, 16, v%d" % (wp + 4 * t + e // 2, tmp + 8 * t + e + 1, tmp + 8 * t + e))


def gen_kv():
    k = K("kv_kernel")
    end = k.lab("END")
    k.e("s_cmp_ge_u32 s2, 256")
    k.e("s_cbranch_scc1 %s" % end)
    load_ptr(k, 4, "ws"); load_ptr(k, 6, "w_phi")
    k.e("v_lshrrev_b32 v1, 6, v0")
    k.nop(0)
    k.e("v_readfirstlane_b32 s12, v1")
    k.e("s_waitcnt lgkmcnt(0)")
    make_srd(k, 16, 4, WS_QKV, SZ_QKV)
    make_srd(k, 20, 6, 0, 32 * 32 * 32 * 2)
    make_srd(k, 24, 4, WS_KVP, 256 * KVP_STRIDE)
    k.e("s_and_b32 s13, s2, 31")
    k.e("s_lshr_b32 s14, s2, 5")
    k.e("v_and_b32 v1, 63, v0")
    k.e("v_and_b32 v2, 31, v0")
    k.e("v_bfe_u32 v3, v0, 5, 1")
    k.e("v_xor_b32 v4, 32, v1")
    k.e("v_lshlrev_b32 v4, 2, v4")
    WP = 8
    emit_wphi_load(k, 20, 13, WP, 2, 3, 5)
    k.e("s_mul_i32 s15, s12, 6144")
    k.e("v_lshlrev_b32 v5, 8, v3")
    k.e("v_lshl_add_u32 v5, v2, 1, v5")
    k.e("v_add_u32 v5, s15, v5")
    k.e("v_lshlrev_b32 v6, 6, v2")
    k.e("v_lshl_add_u32 v6, v3, 4, v6")
    k.e("v_add_u32 v6, s15, v6")
    k.e("v_bfe_u32 v7, v0, 2, 2")
    k.e("v_lshl_add_u32 v7, v3, 3, v7")
    k.e("v_lshlrev_b32 v7, 6, v7")
    k.e("v_bfe_u32 v16, v0, 4, 1")
    k.e("v_lshl_add_u32 v7, v16, 5, v7")
    k.e("v_and_b32 v16, 3, v0")
    k.e("v_lshl_add_u32 v7, v16, 3, v7")
    k.e("v_add_u32 v7, s15, v7")
    k.e("v_add_u32 v7, 4096, v7")
    k.e("v_lshlrev_b32 v17, 4, v1")
    k.e("v_add_u32 v17, s15, v17")
    for i in range(4):
        k.e("v_mov_b32 v%d, 0x3f803f80" % (20 + i))
    D2 = [64, 80]
    D3 = [96, 112]
    for i in range(64):
        k.e("v_mov_b32 v%d, 0" % (64 + i))
    D1 = 128
    KF = 24
    VT = 32
    PP, PM = 40, 48
    AF = 56
    BF = 60
    TMP = 144
    for tile in range(2):
        k.e("s_lshl_b32 s30, s14, 8")
        k.e("s_lshl_b32 s31, s12, 6")
        k.e("s_add_u32 s30, s30, s31")
        k.e("s_add_u32 s30, s30, %d" % (tile * 32))
        k.e("s_mul_i32 s31, s30, 6144")
        k.e("s_lshl_b32 s32, s13, 6")
        k.e("s_add_u32 s31, s31, s32")
        k.e("v_mul_u32_u24 v18, 6144, v2")
        k.e("v_lshl_add_u32 v18, v3, 4, v18")
        k.e("s_add_u32 s33, s31, 2048")
        k.e("buffer_load_dwordx4 v[%d:%d], v18, s[16:19], s33 offen" % (KF, KF + 3))
        k.e("buffer_load_dwordx4 v[%d:%d], v18, s[16:19], s33 offen offset:32" % (KF + 4, KF + 7))
        k.e("v_lshrrev_b32 v19, 2, v1")
        k.e("v_mul_u32_u24 v19, 6144, v19")
        k.e("v_and_b32 v16, 3, v1")
        k.e("v_lshl_add_u32 v19, v16, 4, v19")
        k.e("s_add_u32 s33, s31, 4096")
        k.e("buffer_load_dwordx4 v[%d:%d], v19, s[16:19], s33 offen" % (VT, VT + 3))
        k.e("s_add_u32 s33, s33, %d" % (16 * 6144))
        k.e("buffer_load_dwordx4 v[%d:%d], v19, s[16:19], s33 offen" % (VT + 4, VT + 7))
        for i in range(16):
            k.e("v_mov_b32 v%d, 0" % (D1 + i))
        k.e("s_waitcnt vmcnt(0)")
        k.e("ds_write_b128 v17, v[%d:%d] offset:4096" % (VT, VT + 3))
        k.e("ds_write_b128 v17, v[%d:%d] offset:5120" % (VT + 4, VT + 7))
        for t in range(2):
            k.e("v_mfma_f32_32x32x16_bf16 %s, %s, %s, %s" % (vr(D1, 16), vr(WP + 4 * t, 4), vr(KF + 4 * t, 4), vr(D1, 16)))
        k.nop(15); k.nop(3)
        emit_softmax_pm(k, D1, PP, PM, TMP, 4)
        for half, P in ((0, PP), (1, PM)):
            for i in range(8):
                r0 = 2 * i
                f = 8 * (r0 >> 2) + (r0 & 3)
                k.e("ds_write_b16 v5, v%d offset:%d" % (P + i, half * 2048 + f * 64))
                k.e("ds_write_b16_d16_hi v5, v%d offset:%d" % (P + i, half * 2048 + (f + 1) * 64))
        k.e("s_waitcnt lgkmcnt(0)")
        for t in range(2):
            k.e("ds_read_b64_tr_b16 %s, v7 offset:%d" % (vr(BF, 2), (16 * t) * 64))
            k.e("ds_read_b64_tr_b16 %s, v7 offset:%d" % (vr(BF + 2, 2), (16 * t + 4) * 64))
            for ft in range(2):
                k.e("ds_read_b128 %s, v6 offset:%d" % (vr(AF, 4), ft * 2048 + t * 32))
                k.e("s_waitcnt lgkmcnt(0)")
                k.e("v_mfma_f32_32x32x16_bf16 %s, %s, %s, %s" % (vr(D2[ft], 16), vr(AF, 4), vr(BF, 4), vr(D2[ft], 16)))
                k.e("v_mfma_f32_32x32x16_bf16 %s, %s, %s, %s" % (vr(D3[ft], 16), vr(AF, 4), vr(20, 4), vr(D3[ft], 16)))
                k.nop(7)
        k.nop(7)
    k.nop(15); k.nop(3)
    k.e("s_mul_i32 s15, s12, 8448")
    k.e("v_lshlrev_b32 v5, 9, v3")
    k.e("v_lshl_add_u32 v5, v2, 2, v5")
    k.e("v_add_u32 v5, s15, v5")
    k.e("v_add_u32 v5, 24576, v5")
    for ft in range(2):
        for r_ in range(16):
            f = 32 * ft + 8 * (r_ >> 2) + (r_ & 3)
            k.e("ds_write_b32 v5, v%d offset:%d" % (D2[ft] + r_, f * 128))
    k.e("v_lshlrev_b32 v6, 4, v3")
    k.e("v_add_u32 v6, s15, v6")
    k.e("v_add_u32 v6, 24576, v6")
    for ft in range(2):
        for r_ in range(16):
            f = 32 * ft + 8 * (r_ >> 2) + (r_ & 3)
            k.e("ds_write_b32 v6, v%d offset:%d" % (D3[ft] + r_, 8192 + f * 4))
    k.e("s_waitcnt lgkmcnt(0)")
    k.e("s_barrier")
    k.e("s_lshl_b32 s30, s13, 3")
    k.e("s_add_u32 s30, s30, s14")
    k.e("s_mul_i32 s30, s30, %d" % KVP_STRIDE)
    k.e("v_lshlrev_b32 v5, 2, v0")
    for j in range(9):
        if j == 8:
            k.e("v_cmp_gt_u32 vcc, 64, v0")
            k.e("s_and_saveexec_b64 s[42:43], vcc")
        for w in range(4):
            k.e("ds_read_b32 v%d, v5 offset:%d" % (8 + w, 24576 + w * 8448 + j * 1024))
        k.e("s_waitcnt lgkmcnt(0)")
        k.e("v_add_f32 v8, v8, v9")
        k.e("v_add_f32 v10, v10, v11")
        k.e("v_add_f32 v8, v8, v10")
        k.e("s_add_u32 s31, s30, %d" % (j * 1024))
        k.e("buffer_store_dword v8, v5, s[24:27], s31 offen")
    k.L(end)
    k.e("s_endpgm")
    return k, 184, 24576 + 4 * 8448, 256


def gen_attn(nwaves=8):
    k = K("attn_kernel")
    end = k.lab("END")
    k.e("s_cmp_ge_u32 s2, 32")
    k.e("s_cbranch_scc1 %s" % end)
    load_ptr(k, 4, "ws"); load_ptr(k, 6, "w_phi")
    k.e("v_lshrrev_b32 v1, 6, v0")
    k.nop(0)
    k.e("v_readfirstlane_b32 s12, v1")
    k.e("s_waitcnt lgkmcnt(0)")
    make_srd(k, 16, 4, WS_QKV, SZ_QKV)
    make_srd(k, 20, 6, 0, 32 * 32 * 32 * 2)
    make_srd(k, 24, 4, WS_KVP, 256 * KVP_STRIDE)
    make_srd(k, 36, 4, WS_O, SZ_ACT)
    k.e("s_mov_b32 s13, s2")
    k.e("v_and_b32 v1, 63, v0")
    k.e("v_and_b32 v2, 31, v0")
    k.e("v_bfe_u32 v3, v0, 5, 1")
    k.e("v_xor_b32 v4, 32, v1")
    k.e("v_lshlrev_b32 v4, 2, v4")
    WP = 8
    s1done = k.lab("S1D")
    k.e("s_cmp_ge_u32 s12, 4")
    k.e("s_cbranch_scc1 %s" % s1done)
    k.e("s_mul_i32 s30, s13, %d" % (8 * KVP_STRIDE))
    k.e("v_lshlrev_b32 v5, 2, v0")
    k.e("v_lshlrev_b32 v6, 7, v2")
    k.e("v_lshrrev_b32 v7, 5, v0")
    k.e("v_lshl_add_u32 v6, v7, 1, v6")
    for j in range(8):
        for cch in range(8):
            k.e("s_add_u32 s31, s30, %d" % (cch * KVP_STRIDE + j * 1024))
            k.e("buffer_load_dword v%d, v5, s[24:27], s31 offen" % (64 + j * 8 + cch))
    k.e("v_cmp_gt_u32 vcc, 64, v0")
    k.e("s_and_saveexec_b64 s[42:43], vcc")
    for cch in range(8):
        k.e("s_add_u32 s31, s30, %d" % (cch * KVP_STRIDE + 8 * 1024))
        k.e("buffer_load_dword v%d, v5, s[24:27], s31 offen" % (128 + cch))
    k.e("s_mov_b64 exec, s[42:43]")
    k.e("s_waitcnt vmcnt(0)")
    for j in range(9):
        b = 64 + j * 8
        for cch in range(1, 8):
            k.e("v_add_f32 v%d, v%d, v%d" % (b, b, b + cch))
        k.e("v_cvt_pk_bf16_f32 v%d, v%d, v%d" % (b, b, b))
        if j < 8:
            k.e("ds_write_b16 v6, v%d offset:%d" % (b, 16 * j))
    k.e("v_lshlrev_b32 v6, 1, v0")
    k.e("v_add_u32 v6, 4096, v6")
    k.e("s_and_saveexec_b64 s[42:43], vcc")
    k.e("ds_write_b16 v6, v128")
    k.e("s_mov_b64 exec, s[42:43]")
    k.L(s1done)
    emit_wphi_load(k, 20, 13, WP, 2, 3, 5)
    k.e("s_waitcnt lgkmcnt(0)")
    k.e("s_barrier")
    k.e("v_lshlrev_b32 v5, 7, v2")
    k.e("v_lshl_add_u32 v5, v3, 3, v5")
    k.e("v_lshlrev_b32 v6, 3, v3")
    k.e("v_add_u32 v6, 4096, v6")
    QF = 24
    PP, PM = 40, 48
    AF, ZF = 56, 60
    DN, DD = 64, 80
    D1 = 128
    TMP = 144
    QN = 184
    k.e("s_mov_b32 s44, s12")
    k.e("v_mul_u32_u24 v19, 6144, v2")
    k.e("v_lshl_add_u32 v19, v3, 4, v19")
    k.e("s_lshl_b32 s32, s13, 6")
    k.e("s_mul_i32 s45, s44, %d" % (32 * 6144))
    k.e("s_add_u32 s45, s45, s32")
    k.e("buffer_load_dwordx4 v[%d:%d], v19, s[16:19], s45 offen" % (QN, QN + 3))
    k.e("buffer_load_dwordx4 v[%d:%d], v19, s[16:19], s45 offen offset:32" % (QN + 4, QN + 7))
    loop = k.lab("TL")
    k.L(loop)
    k.e("s_lshl_b32 s30, s44, 5")
    k.e("s_waitcnt vmcnt(0)")
    for i in range(8):
        k.e("v_mov_b32 v%d, v%d" % (QF + i, QN + i))
    k.e("s_add_u32 s45, s45, %d" % (nwaves * 32 * 6144))
    k.e("buffer_load_dwordx4 v[%d:%d], v19, s[16:19], s45 offen" % (QN, QN + 3))
    k.e("buffer_load_dwordx4 v[%d:%d], v19, s[16:19], s45 offen offset:32" % (QN + 4, QN + 7))
    for i in range(16):
        k.e("v_mov_b32 v%d, 0" % (D1 + i))
    for i in range(32):
        k.e("v_mov_b32 v%d, 0" % (DN + i))
    for t in range(2):
        k.e("v_mfma_f32_32x32x16_bf16 %s, %s, %s, %s" % (vr(D1, 16), vr(WP + 4 * t, 4), vr(QF + 4 * t, 4), vr(D1, 16)))
    k.nop(15); k.nop(3)
    emit_softmax_pm(k, D1, PP, PM, TMP, 4)
    for tt in range(4):
        B = (PP if tt < 2 else PM) + 4 * (tt & 1)
        k.e("ds_read_b64 %s, v5 offset:%d" % (vr(AF, 2), tt * 32))
        k.e("ds_read_b64 %s, v5 offset:%d" % (vr(AF + 2, 2), tt * 32 + 16))
        k.e("ds_read_b64 %s, v6 offset:%d" % (vr(ZF, 2), tt * 32))
        k.e("ds_read_b64 %s, v6 offset:%d" % (vr(ZF + 2, 2), tt * 32 + 16))
        k.e("s_waitcnt lgkmcnt(0)")
        k.e("v_mfma_f32_32x32x16_bf16 %s, %s, %s, %s" % (vr(DN, 16), vr(AF, 4), vr(B, 4), vr(DN, 16)))
        k.e("v_mfma_f32_32x32x16_bf16 %s, %s, %s, %s" % (vr(DD, 16), vr(ZF, 4), vr(B, 4), vr(DD, 16)))
        k.nop(7)
    k.nop(15); k.nop(3)
    rnd_bf16(k, DD)
    k.e("v_add_f32 v%d, 0x358637bd, v%d" % (DD, DD))
    rnd_bf16(k, DD)
    k.e("v_rcp_f32 v%d, v%d" % (DD + 1, DD))
    k.nop(0)
    k.e("v_lshlrev_b32 v18, 11, v2")
    k.e("v_lshl_add_u32 v18, v3, 3, v18")
    k.e("s_lshl_b32 s31, s30, 11")
    k.e("s_add_u32 s31, s31, s32")
    for q in range(4):
        for i in range(4):
            x = DN + 4 * q + i
            rnd_bf16(k, x)
            k.e("v_mul_f32 v16, v%d, v%d" % (x, DD + 1))
            k.e("v_fma_f32 v17, -v16, v%d, v%d" % (DD, x))
            k.e("v_fma_f32 v%d, v17, v%d, v16" % (x, DD + 1))
        k.e("v_cvt_pk_bf16_f32 v16, v%d, v%d" % (DN + 4 * q, DN + 4 * q + 1))
        k.e("v_cvt_pk_bf16_f32 v17, v%d, v%d" % (DN + 4 * q + 2, DN + 4 * q + 3))
        k.e("buffer_store_dwordx2 v[16:17], v18, s[36:39], s31 offen offset:%d" % (q * 16))
        k.nop(1)
    k.e("s_add_u32 s44, s44, %d" % nwaves)
    k.e("s_cmp_lt_u32 s44, 64")
    k.e("s_cbranch_scc1 %s" % loop)
    k.L(end)
    k.e("s_endpgm")
    return k, 192, 8192, 64 * nwaves


def gemm4_wrap():
    r = gen_gemm4()
    return r


def merge(name, g1, n1, g2):
    r1 = g1(); r2 = g2()
    k = K(name)
    l2 = k.lab("BODY2")
    k.e("s_cmp_ge_u32 s2, %d" % n1)
    k.e("s_cbranch_scc1 %s" % l2)
    k.lines += r1[0].lines
    k.L(l2)
    k.e("s_sub_u32 s2, s2, %d" % n1)
    k.lines += r2[0].lines
    lds = max(r1[2] if len(r1) > 2 else 0, r2[2] if len(r2) > 2 else 0)
    b1 = r1[3] if len(r1) > 3 else 256
    b2 = r2[3] if len(r2) > 3 else 256
    assert b1 == b2, (b1, b2)
    return k, max(r1[1], r2[1]), lds, b1


HEADER = open("gated_mix__linear_kernel_hedgehog__mixer_s_mlp__prompt.s.ref").read().split("; Override launch")[0]


def main(out):
    kernels = []
    launches = []

    def add(gen, grid, block=None, lds=None):
        res = gen()
        k, v = res[0], res[1]
        l = res[2] if len(res) > 2 else 0
        b = res[3] if len(res) > 3 else 256
        kernels.append((k, v))
        launches.append("; @launch kernel=%s grid=(%d,1,1) block=(%d,1,1) lds=%d" % (k.name, grid, b, l))

    add(gen_prep, 1024)
    add(gen_gemm1, 256)
    add(lambda: merge("g2kv_kernel", gen_gemm2, 256, gen_kv), 512)
    add(gen_ln1, 512)
    add(lambda: merge("g4at_kernel", gen_gemm4, 224, gen_attn), 256)
    add(gen_gemm5, 256)
    txt = [HEADER.rstrip("\n")] + launches + ['.amdgcn_target "amdgcn-amd-amdhsa--gfx950"', ".text"]
    for k, v in kernels:
        txt += k.text(v)
    txt += ['.section .rodata,"a"', ".p2align 6"]
    for k, v in kernels:
        txt += desc(k.name, v)
        txt += [".p2align 6"]
    open(out, "w").write("\n".join(txt) + "\n")


if __name__ == "__main__":
    main(sys.argv[1] if len(sys.argv) > 1 else "gated_mix__linear_kernel_hedgehog__mixer_s_mlp__prompt.s")
```

```python
import sys, re

import os
DBG = set(os.environ.get('GENDBG', '').split(','))
MB = 1 << 20
WS_LNX = 0
WS_QKV = 4 * MB
WS_H = 16 * MB
WS_X1 = 20 * MB
WS_LNX1 = 24 * MB
WS_H3 = 28 * MB
WS_O = 44 * MB
WS_KVP = 48 * MB
WS_G = 52 * MB
WS_FLAG = 53 * MB
WS_PART = 56 * MB

KA = dict(A_x=0, wqkv=8, w_phi=16, wo=24, B_x=32, w1=40, w2=48, w3=56, w4=64, gate_w=72, out=80, dbg=88, ws=96)
SZ_ACT = 2048 * 1024 * 2
SZ_QKV = 2048 * 3072 * 2
SZ_H3 = 2048 * 3584 * 2
KVP_STRIDE = (64 * 32 + 64) * 4


class K:
    def __init__(self, name):
        self.name = name
        self.lines = []
        self.nlab = 0
        self.max_v = 0
        self.max_s = 0

    def e(self, s):
        if s.startswith("buffer_"):
            m = re.search(r"offset:(\d+)", s)
            assert not m or int(m.group(1)) < 4096, s
        if s.startswith("ds_"):
            m = re.search(r"offset:(\d+)", s)
            assert not m or int(m.group(1)) < 65536, s
        self.lines.append("    " + s)

    def c(self, s):
        self.lines.append("    ; " + s)

    def lab(self, base="L"):
        self.nlab += 1
        return "%s_%s_%d" % (base, self.name, self.nlab)

    def L(self, l):
        self.lines.append(l + ":")

    def nop(self, n=0):
        self.e("s_nop %d" % n)

    def text(self, vgprs, sgprs=102, lds=0):
        v = (vgprs + 7) // 8 * 8
        acc = (vgprs + 3) // 4 * 4
        hdr = [
            ".globl %s" % self.name,
            ".p2align 8",
            ".type %s,@function" % self.name,
            "%s:" % self.name,
        ]
        return hdr + self.lines


def desc(name, vgprs, sgprs=104):
    v = (vgprs + 7) // 8 * 8
    return [
        ".amdhsa_kernel %s" % name,
        "  .amdhsa_next_free_vgpr %d" % v,
        "  .amdhsa_next_free_sgpr %d" % min(sgprs, 102),
        "  .amdhsa_accum_offset %d" % v,
        "  .amdhsa_group_segment_fixed_size 0",
        "  .amdhsa_kernarg_size 104",
        "  .amdhsa_user_sgpr_count 2",
        "  .amdhsa_user_sgpr_kernarg_segment_ptr 1",
        "  .amdhsa_system_sgpr_workgroup_id_x 1",
        ".end_amdhsa_kernel",
    ]


def vr(a, n=1):
    return "v%d" % a if n == 1 else "v[%d:%d]" % (a, a + n - 1)


def sr(a, n=1):
    return "s%d" % a if n == 1 else "s[%d:%d]" % (a, a + n - 1)


def load_ptr(k, dst, key):
    k.e("s_load_dwordx2 %s, s[0:1], %d" % (sr(dst, 2), KA[key]))


def make_srd(k, dst, ptr, off, size):
    k.e("s_add_u32 s%d, s%d, 0x%x" % (dst, ptr, off))
    k.e("s_addc_u32 s%d, s%d, 0" % (dst + 1, ptr + 1))
    k.e("s_mov_b32 s%d, 0x%x" % (dst + 2, size))
    k.e("s_mov_b32 s%d, 0x00020000" % (dst + 3))


LOG2E = 0x3FB8AA3B


def rnd_bf16(k, v, tmp=None):
    k.e("v_cvt_pk_bf16_f32 %s, %s, %s" % (vr(v), vr(v), vr(v)))
    k.e("v_lshlrev_b32 %s, 16, %s" % (vr(v), vr(v)))


def wave_reduce(k, v, vaddr, vtmp, op="v_add_f32"):
    for m in (1, 2, 4, 8, 16, 32):
        k.e("v_xor_b32 %s, %d, %s" % (vr(vtmp), m * 4, vr(vaddr)))
        k.e("ds_bpermute_b32 %s, %s, %s" % (vr(vtmp), vr(vtmp), vr(v)))
        k.e("s_waitcnt lgkmcnt(0)")
        k.e("%s %s, %s, %s" % (op, vr(v), vr(v), vr(vtmp)))


def emit_ln(k, s_row, srd_in, srd_out):
    k.e("v_and_b32 v1, 63, v0")
    k.e("v_lshlrev_b32 v2, 4, v1")
    k.e("s_lshl_b32 s40, s%d, 11" % s_row)
    k.e("v_add_u32 v2, s40, v2")
    k.e("buffer_load_dwordx4 v[8:11], v2, %s, 0 offen" % sr(srd_in, 4))
    k.e("buffer_load_dwordx4 v[12:15], v2, %s, 0 offen offset:1024" % sr(srd_in, 4))
    k.e("v_lshlrev_b32 v3, 2, v1")
    k.e("s_waitcnt vmcnt(0)")
    for i in range(8):
        k.e("v_lshlrev_b32 v%d, 16, v%d" % (16 + 2 * i, 8 + i))
        k.e("v_and_b32 v%d, 0xffff0000, v%d" % (17 + 2 * i, 8 + i))
    k.e("v_add_f32 v4, v16, v17")
    for i in range(2, 16):
        k.e("v_add_f32 v4, v4, v%d" % (16 + i))
    wave_reduce(k, 4, 3, 5)
    k.e("v_mul_f32 v4, 0x3a800000, v4")
    k.e("v_sub_f32 v5, v16, v4")
    k.e("v_mul_f32 v6, v5, v5")
    for i in range(1, 16):
        k.e("v_sub_f32 v5, v%d, v4" % (16 + i))
        k.e("v_fmac_f32 v6, v5, v5")
    wave_reduce(k, 6, 3, 5)
    k.e("v_mul_f32 v6, 0x3a800000, v6")
    rnd_bf16(k, 4)
    rnd_bf16(k, 6)
    k.e("v_add_f32 v6, 0x3727c5ac, v6")
    rnd_bf16(k, 6)
    k.e("v_sqrt_f32 v6, v6")
    k.nop(0)
    rnd_bf16(k, 6)
    k.e("v_rcp_f32 v7, v6")
    k.nop(0)
    for i in range(16):
        x = 16 + i
        k.e("v_sub_f32 v%d, v%d, v4" % (x, x))
        rnd_bf16(k, x)
        k.e("v_mul_f32 v5, v%d, v7" % x)
        k.e("v_fma_f32 v32, -v5, v6, v%d" % x)
        k.e("v_fma_f32 v%d, v32, v7, v5" % x)
    for i in range(8):
        k.e("v_cvt_pk_bf16_f32 v%d, v%d, v%d" % (8 + i, 16 + 2 * i, 17 + 2 * i))
    k.e("buffer_store_dwordx4 v[8:11], v2, %s, 0 offen" % sr(srd_out, 4))
    k.e("buffer_store_dwordx4 v[12:15], v2, %s, 0 offen offset:1024" % sr(srd_out, 4))


def gen_prep():
    k = K("prep_kernel")
    k.e("s_cmp_ge_u32 s2, 1024")
    end = k.lab("END")
    k.e("s_cbranch_scc1 %s" % end)
    load_ptr(k, 4, "A_x")
    load_ptr(k, 6, "ws")
    load_ptr(k, 8, "A_x")
    load_ptr(k, 10, "gate_w")
    k.e("v_lshrrev_b32 v1, 6, v0")
    k.nop(0)
    k.e("v_readfirstlane_b32 s12, v1")
    load_ptr(k, 44, "wqkv"); load_ptr(k, 46, "w1")
    k.e("s_waitcnt lgkmcnt(0)")
    npf = k.lab("NOPF")
    k.e("s_cmp_lg_u32 s12, 0")
    k.e("s_cbranch_scc1 %s" % npf)
    make_srd(k, 32, 44, 0, 1024 * 3072 * 2)
    make_srd(k, 36, 46, 0, 1024 * 1024 * 2)
    k.e("v_lshlrev_b32 v2, 7, v0")
    k.e("v_mov_b32 v3, 0x7ffffff0")
    k.e("v_cmp_gt_u32 vcc, 48, v0")
    k.e("v_cndmask_b32 v2, v3, v2, vcc")
    k.e("s_mul_i32 s40, s2, %d" % (48 * 128))
    k.e("buffer_load_dword v47, v2, s[32:35], s40 offen")
    k.e("v_lshlrev_b32 v2, 7, v0")
    k.e("v_cmp_gt_u32 vcc, 16, v0")
    k.e("v_cndmask_b32 v2, v3, v2, vcc")
    k.e("s_lshl_b32 s40, s2, 11")
    k.e("buffer_load_dword v47, v2, s[36:39], s40 offen")
    k.L(npf)
    nz = k.lab("NOZERO")
    k.e("s_cmp_lg_u32 s2, 0")
    k.e("s_cbranch_scc1 %s" % nz)
    make_srd(k, 28, 6, WS_FLAG, 1024)
    k.e("v_lshlrev_b32 v1, 2, v0")
    k.e("v_mov_b32 v2, 0")
    k.e("buffer_store_dword v2, v1, s[28:31], 0 offen")
    k.L(nz)
    gate = k.lab("GATE")
    k.e("s_cmp_ge_u32 s2, 512")
    k.e("s_cbranch_scc1 %s" % gate)
    k.e("s_lshl_b32 s13, s2, 2")
    k.e("s_add_u32 s13, s13, s12")
    make_srd(k, 16, 4, 0, SZ_ACT)
    make_srd(k, 20, 6, WS_LNX, SZ_ACT)
    emit_ln(k, 13, 16, 20)
    k.e("s_endpgm")
    k.L(gate)
    k.e("s_sub_u32 s13, s2, 512")
    k.e("s_lshl_b32 s13, s13, 2")
    k.e("s_add_u32 s13, s13, s12")
    make_srd(k, 16, 8, 0, SZ_ACT)
    make_srd(k, 20, 10, 0, 2048)
    make_srd(k, 24, 6, WS_G, 2048 * 4)
    k.e("v_and_b32 v1, 63, v0")
    k.e("v_lshlrev_b32 v2, 4, v1")
    k.e("s_lshl_b32 s40, s13, 11")
    k.e("v_add_u32 v3, s40, v2")
    k.e("buffer_load_dwordx4 v[8:11], v3, s[16:19], 0 offen")
    k.e("buffer_load_dwordx4 v[12:15], v3, s[16:19], 0 offen offset:1024")
    k.e("buffer_load_dwordx4 v[32:35], v2, s[20:23], 0 offen")
    k.e("buffer_load_dwordx4 v[36:39], v2, s[20:23], 0 offen offset:1024")
    k.e("v_lshlrev_b32 v3, 2, v1")
    k.e("s_waitcnt vmcnt(0)")
    for i in range(8):
        k.e("v_lshlrev_b32 v%d, 16, v%d" % (16 + 2 * i, 8 + i))
        k.e("v_and_b32 v%d, 0xffff0000, v%d" % (17 + 2 * i, 8 + i))
        k.e("v_lshlrev_b32 v4, 16, v%d" % (32 + i))
        k.e("v_and_b32 v5, 0xffff0000, v%d" % (32 + i))
        k.e("v_mul_f32 v%d, v%d, v4" % (16 + 2 * i, 16 + 2 * i))
        k.e("v_mul_f32 v%d, v%d, v5" % (17 + 2 * i, 17 + 2 * i))
        k.e("v_cvt_pk_bf16_f32 v4, v%d, v%d" % (16 + 2 * i, 17 + 2 * i))
        k.e("v_lshlrev_b32 v%d, 16, v4" % (16 + 2 * i))
        k.e("v_and_b32 v%d, 0xffff0000, v4" % (17 + 2 * i))
    k.e("v_add_f32 v4, v16, v17")
    for i in range(2, 16):
        k.e("v_add_f32 v4, v4, v%d" % (16 + i))
    wave_reduce(k, 4, 3, 5)
    rnd_bf16(k, 4)
    k.e("v_mul_f32 v4, 0xbfb8aa3b, v4")
    k.e("v_exp_f32 v4, v4")
    k.nop(0)
    k.e("v_add_f32 v4, 1.0, v4")
    k.e("v_rcp_f32 v4, v4")
    k.nop(0)
    rnd_bf16(k, 4)
    k.e("v_cmp_eq_u32 vcc, 0, v1")
    k.e("s_and_saveexec_b64 s[42:43], vcc")
    k.e("s_lshl_b32 s40, s13, 2")
    k.e("v_mov_b32 v5, s40")
    k.e("buffer_store_dword v4, v5, s[24:27], 0 offen")
    k.L(end)
    k.e("s_endpgm")
    return k, 48


def gen_ln1():
    k = K("ln1_kernel")
    end = k.lab("END")
    k.e("s_cmp_ge_u32 s2, 512")
    k.e("s_cbranch_scc1 %s" % end)
    load_ptr(k, 6, "ws")
    k.e("v_lshrrev_b32 v1, 6, v0")
    k.nop(0)
    k.e("v_readfirstlane_b32 s12, v1")
    k.e("s_waitcnt lgkmcnt(0)")
    k.e("s_lshl_b32 s13, s2, 2")
    k.e("s_add_u32 s13, s13, s12")
    make_srd(k, 16, 6, WS_X1, SZ_ACT)
    make_srd(k, 20, 6, WS_LNX1, SZ_ACT)
    emit_ln(k, 13, 16, 20)
    k.L(end)
    k.e("s_endpgm")
    return k, 48


class GemmCfg:
    def __init__(self, WM, WN, TM, TN, NS=3):
        self.WM, self.WN, self.TM, self.TN, self.NS = WM, WN, TM, TN, NS
        self.BM = WM * TM * 32
        self.BN = WN * TN * 32
        self.NW = WM * WN
        self.XB = self.BM * 128
        self.RB = self.BN * 2
        self.WB = 64 * self.RB
        self.STAGE = self.XB + self.WB
        self.XI = self.XB // 1024 // self.NW
        self.WI = self.WB // 1024 // self.NW
        assert self.XI * 1024 * self.NW == self.XB and self.WI * 1024 * self.NW == self.WB
        self.PF = 0
        self.D = self.XI + self.WI
        self.R = TM + 2 * TN
        self.LDS = self.STAGE * NS


S_SRDX, S_SRDW, S_SRDC, S_SRDR, S_SRDG = 4, 8, 12, 16, 20
S_LDX, S_LDW, S_LDC, S_NK, S_M0, S_N0, S_WAVE, S_KT = 24, 25, 26, 27, 28, 29, 30, 31
S_KX, S_KW, S_CUR, S_OLD, S_DMX, S_DMW, S_T0, S_T1 = 32, 33, 34, 35, 36, 37, 38, 39
S_SHIFT, S_FLAG, S_T2, S_T3 = 40, 41, 42, 43


class GemmRegs:
    def __init__(self, cfg, shifted=False):
        c = cfg
        self.vt = list(range(1, 8))
        p = 8
        self.vxa = list(range(p, p + 4)); p += 4
        self.vwa = list(range(p, p + c.TN)); p += c.TN
        self.vxo = list(range(p, p + c.XI)); p += c.XI
        self.vwo = list(range(p, p + c.WI)); p += c.WI
        self.vxs = list(range(p, p + c.XI)) if shifted else None
        if shifted:
            p += c.XI
        p = (p + 3) // 4 * 4
        self.F = []
        for s in range(2):
            X = [p + 4 * i for i in range(c.TM)]; p += 4 * c.TM
            W = [p + 4 * i for i in range(c.TN)]; p += 4 * c.TN
            self.F.append((X, W))
        p = (p + 15) // 16 * 16
        self.acc = {}
        for tn in range(c.TN):
            for tm in range(c.TM):
                self.acc[(tn, tm)] = p; p += 16
        self.acc_base = self.acc[(0, 0)]
        self.nacc = 16 * c.TM * c.TN
        self.save = p
        self.end = p
        self.ep = None


def gemm_lane_setup(k, c, r):
    t0, t1, t2, t3 = r.vt[0:4]
    k.c("lane setup")
    k.e("v_and_b32 v%d, 63, v0" % t0)
    k.e("v_lshrrev_b32 v%d, 3, v%d" % (t1, t0))
    k.e("s_mul_i32 s%d, s%d, %d" % (S_T0, S_WAVE, c.XI * 8))
    k.e("v_add_u32 v%d, s%d, v%d" % (t1, S_T0, t1))
    k.e("v_mul_lo_u32 v%d, v%d, s%d" % (t1, t1, S_LDX))
    k.e("v_and_b32 v%d, 7, v%d" % (t2, t0))
    k.e("v_lshrrev_b32 v%d, 4, v%d" % (t3, t0))
    k.e("v_xor_b32 v%d, v%d, v%d" % (t2, t2, t3))
    for i in range(c.XI):
        k.e("s_mul_i32 s%d, s%d, %d" % (S_T0, S_WAVE, c.XI))
        k.e("s_add_u32 s%d, s%d, %d" % (S_T0, S_T0, i))
        k.e("s_and_b32 s%d, s%d, 1" % (S_T0, S_T0))
        k.e("s_lshl_b32 s%d, s%d, 2" % (S_T0, S_T0))
        k.e("v_xor_b32 v%d, s%d, v%d" % (t3, S_T0, t2))
        k.e("v_lshl_add_u32 v%d, v%d, 4, v%d" % (r.vxo[i], t3, t1))
        if i + 1 < c.XI:
            k.e("s_lshl_b32 s%d, s%d, 3" % (S_T0, S_LDX))
            k.e("v_add_u32 v%d, s%d, v%d" % (t1, S_T0, t1))
    if c.RB == 256:
        k.e("v_lshrrev_b32 v%d, 4, v%d" % (t1, t0))
        k.e("s_mul_i32 s%d, s%d, %d" % (S_T0, S_WAVE, c.WI * 4))
        k.e("v_add_u32 v%d, s%d, v%d" % (t2, S_T0, t1))
        k.e("v_mul_lo_u32 v%d, v%d, s%d" % (t2, t2, S_LDW))
        k.e("v_lshlrev_b32 v%d, 2, v%d" % (t1, t1))
        k.e("v_and_b32 v%d, 15, v%d" % (t3, t0))
        k.e("v_xor_b32 v%d, v%d, v%d" % (t3, t3, t1))
        for j in range(c.WI):
            k.e("v_lshl_add_u32 v%d, v%d, 4, v%d" % (r.vwo[j], t3, t2))
            if j + 1 < c.WI:
                k.e("s_lshl_b32 s%d, s%d, 2" % (S_T0, S_LDW))
                k.e("v_add_u32 v%d, s%d, v%d" % (t2, S_T0, t2))
    elif c.RB == 128:
        k.e("v_lshrrev_b32 v%d, 3, v%d" % (t1, t0))
        k.e("s_mul_i32 s%d, s%d, %d" % (S_T0, S_WAVE, c.WI * 8))
        k.e("v_add_u32 v%d, s%d, v%d" % (t2, S_T0, t1))
        k.e("v_mul_lo_u32 v%d, v%d, s%d" % (t2, t2, S_LDW))
        k.e("v_lshrrev_b32 v%d, 4, v%d" % (t1, t0))
        k.e("v_and_b32 v%d, 1, v%d" % (t1, t1))
        k.e("v_lshlrev_b32 v%d, 2, v%d" % (t1, t1))
        k.e("v_and_b32 v%d, 7, v%d" % (t3, t0))
        k.e("v_xor_b32 v%d, v%d, v%d" % (t3, t3, t1))
        for j in range(c.WI):
            k.e("v_lshl_add_u32 v%d, v%d, 4, v%d" % (r.vwo[j], t3, t2))
            if j + 1 < c.WI:
                k.e("s_lshl_b32 s%d, s%d, 3" % (S_T0, S_LDW))
                k.e("v_add_u32 v%d, s%d, v%d" % (t2, S_T0, t2))
    else:
        raise ValueError("RB")
    k.e("s_and_b32 s%d, s%d, %d" % (S_T2, S_WAVE, c.WM - 1))
    k.e("s_lshr_b32 s%d, s%d, %d" % (S_T3, S_WAVE, c.WM.bit_length() - 1))
    k.e("v_and_b32 v%d, 31, v%d" % (t1, t0))
    k.e("s_mul_i32 s%d, s%d, %d" % (S_T0, S_T2, c.TM * 32))
    k.e("v_add_u32 v%d, s%d, v%d" % (t1, S_T0, t1))
    k.e("v_lshlrev_b32 v%d, 7, v%d" % (t1, t1))
    k.e("v_lshrrev_b32 v%d, 5, v%d" % (t2, t0))
    k.e("v_bfe_u32 v%d, v%d, 1, 3" % (t3, t0))
    k.e("v_xor_b32 v%d, v%d, v%d" % (t2, t2, t3))
    for t in range(4):
        k.e("v_xor_b32 v%d, %d, v%d" % (t3, 2 * t, t2))
        k.e("v_lshl_add_u32 v%d, v%d, 4, v%d" % (r.vxa[t], t3, t1))
    k.e("v_bfe_u32 v%d, v%d, 2, 2" % (t1, t0))
    k.e("v_lshrrev_b32 v%d, 5, v%d" % (t2, t0))
    k.e("v_lshl_add_u32 v%d, v%d, 3, v%d" % (t2, t2, t1))
    k.e("v_mul_u32_u24 v%d, %d, v%d" % (t2, c.RB, t2))
    k.e("v_bfe_u32 v%d, v%d, 4, 1" % (t3, t0))
    k.e("v_lshl_add_u32 v%d, v%d, 5, v%d" % (t2, t3, t2))
    k.e("v_and_b32 v%d, 3, v%d" % (t3, t0))
    k.e("v_lshl_add_u32 v%d, v%d, 3, v%d" % (t2, t3, t2))
    k.e("v_add_u32 v%d, %d, v%d" % (t2, c.XB, t2))
    if c.RB == 128:
        k.e("v_lshrrev_b32 v%d, 1, v%d" % (t1, t1))
    for tn in range(c.TN):
        k.e("s_mul_i32 s%d, s%d, %d" % (S_T0, S_T3, c.TN))
        k.e("s_add_u32 s%d, s%d, %d" % (S_T0, S_T0, tn))
        k.e("v_xor_b32 v%d, s%d, v%d" % (t3, S_T0, t1))
        k.e("v_lshl_add_u32 v%d, v%d, 6, v%d" % (r.vwa[tn], t3, t2))
    k.e("s_mul_i32 s%d, s%d, %d" % (S_DMX, S_WAVE, c.XI * 1024))
    k.e("s_mul_i32 s%d, s%d, %d" % (S_DMW, S_WAVE, c.WI * 1024))
    k.e("s_add_u32 s%d, s%d, %d" % (S_DMW, S_DMW, c.XB))


def gemm_dma(k, c, r, s_stage, shifted):
    if 'nodma' in DBG:
        return
    xo = r.vxs if shifted else r.vxo
    k.e("s_add_u32 m0, s%d, s%d" % (s_stage, S_DMX))
    for i in range(c.XI):
        if i:
            k.e("s_add_u32 m0, m0, 1024")
        k.nop(0)
        k.e("buffer_load_dwordx4 v%d, %s, s%d offen lds" % (xo[i], sr(S_SRDX, 4), S_KX))
    k.e("s_add_u32 m0, s%d, s%d" % (s_stage, S_DMW))
    for j in range(c.WI):
        if j:
            k.e("s_add_u32 m0, m0, 1024")
        k.nop(0)
        k.e("buffer_load_dwordx4 v%d, %s, s%d offen lds" % (r.vwo[j], sr(S_SRDW, 4), S_KW))
    for p in range(c.PF):
        k.e("buffer_load_dword v%d, v%d, %s, s72 offen" % (r.vpf + 1, r.vpf, sr(64 + 4 * p, 4)))
    if c.PF:
        k.e("s_add_u32 s72, s72, 256")


def gemm_shift_update(k, c, r, s_kidx):
    k.e("s_lshr_b32 s%d, s%d, 2" % (S_T0, s_kidx))
    k.e("s_and_b32 s%d, s%d, 1" % (S_T1, S_T0))
    k.e("s_lshr_b32 s%d, s%d, 1" % (S_T0, S_T0))
    k.e("s_lshl_b32 s%d, 2048, s%d" % (S_SHIFT, S_T0))
    k.e("s_sub_u32 s%d, 0, s%d" % (S_T0, S_SHIFT))
    k.e("s_cmp_eq_u32 s%d, 1" % S_T1)
    k.e("s_cselect_b32 s%d, s%d, s%d" % (S_SHIFT, S_SHIFT, S_T0))
    k.e("s_lshl_b32 s%d, s%d, 11" % (S_T0, S_M0))
    k.e("s_add_u32 s%d, s%d, s%d" % (S_SHIFT, S_SHIFT, S_T0))
    for i in range(c.XI):
        k.e("v_add_u32 v%d, s%d, v%d" % (r.vxs[i], S_SHIFT, r.vxo[i]))


def gemm_reads(k, c, r, t, fs):
    if 'noreads' in DBG:
        return
    X, W = r.F[fs]
    for tm in range(c.TM):
        k.e("ds_read_b128 %s, v%d offset:%d" % (vr(X[tm], 4), r.vxa[t], tm * 4096))
    for tn in range(c.TN):
        for u in range(2):
            k.e("ds_read_b64_tr_b16 %s, v%d offset:%d" % (vr(W[tn] + 2 * u, 2), r.vwa[tn], (16 * t + 4 * u) * c.RB))


def gemm_mfma(k, c, r, fs, accmap=None):
    if 'nomfma' in DBG:
        return
    X, W = r.F[fs]
    for tn in range(c.TN):
        for tm in range(c.TM):
            a = r.acc[(tn, tm)]
            k.e("v_mfma_f32_32x32x16_bf16 %s, %s, %s, %s" % (vr(a, 16), vr(W[tn], 4), vr(X[tm], 4), vr(a, 16)))


def gemm_kloop(k, c, r, shifted=False):
    D, R, NS = c.D, c.R, c.NS
    k.c("K loop prologue")
    k.e("s_mov_b32 s%d, 0" % S_CUR)
    k.e("s_lshl_b32 s%d, s%d, 6" % (S_T2, S_LDW))
    for i in range(r.nacc):
        k.e("v_mov_b32 v%d, 0" % (r.acc_base + i))
    k.e("s_mov_b32 s%d, 0" % S_KT)
    for s in range(NS):
        if shifted:
            gemm_shift_update(k, c, r, S_KT)
        k.e("s_mov_b32 s%d, %d" % (S_OLD, s * c.STAGE))
        gemm_dma(k, c, r, S_OLD, shifted)
        k.e("s_add_u32 s%d, s%d, 128" % (S_KX, S_KX))
        k.e("s_add_u32 s%d, s%d, s%d" % (S_KW, S_KW, S_T2))
        k.e("s_add_u32 s%d, s%d, 1" % (S_KT, S_KT))
    k.e("s_waitcnt vmcnt(%d)" % ((NS - 1) * D))
    k.e("s_barrier")
    gemm_reads(k, c, r, 0, 0)
    k.e("s_mov_b32 s%d, 0" % S_T3)
    loop = k.lab("KLOOP")
    last = k.lab("KLAST")
    nod = k.lab("NODMA")
    w0 = k.lab("W0")
    w1 = k.lab("W1")
    done = k.lab("KDONE")
    k.L(loop)
    for t in range(3):
        gemm_reads(k, c, r, t + 1, (t + 1) & 1)
        k.e("s_waitcnt lgkmcnt(%d)" % R)
        gemm_mfma(k, c, r, t & 1)
    k.e("s_add_u32 s%d, s%d, 1" % (S_T3, S_T3))
    k.e("s_cmp_ge_u32 s%d, s%d" % (S_T3, S_NK))
    k.e("s_cbranch_scc1 %s" % last)
    k.e("s_add_u32 s%d, s%d, %d" % (S_T0, S_T3, NS - 1))
    k.e("s_cmp_eq_u32 s%d, s%d" % (S_T0, S_KT))
    k.e("s_cbranch_scc1 %s" % w0)
    k.e("s_waitcnt vmcnt(0) lgkmcnt(0)")
    k.e("s_branch %s" % w1)
    k.L(w0)
    k.e("s_waitcnt vmcnt(%d) lgkmcnt(0)" % ((NS - 2) * D))
    k.L(w1)
    k.e("s_barrier")
    k.e("s_mov_b32 s%d, s%d" % (S_OLD, S_CUR))
    k.e("s_add_u32 s%d, s%d, %d" % (S_CUR, S_CUR, c.STAGE))
    k.e("s_cmp_eq_u32 s%d, %d" % (S_CUR, c.STAGE * NS))
    k.e("s_cselect_b32 s%d, 0, s%d" % (S_CUR, S_CUR))
    k.e("s_sub_u32 s%d, s%d, s%d" % (S_T0, S_CUR, S_OLD))
    for v in r.vxa + r.vwa:
        k.e("v_add_u32 v%d, s%d, v%d" % (v, S_T0, v))
    gemm_reads(k, c, r, 0, 0)
    k.e("s_cmp_ge_u32 s%d, s%d" % (S_KT, S_NK))
    k.e("s_cbranch_scc1 %s" % nod)
    if shifted:
        gemm_shift_update(k, c, r, S_KT)
    gemm_dma(k, c, r, S_OLD, shifted)
    k.e("s_add_u32 s%d, s%d, 128" % (S_KX, S_KX))
    k.e("s_add_u32 s%d, s%d, s%d" % (S_KW, S_KW, S_T2))
    k.e("s_add_u32 s%d, s%d, 1" % (S_KT, S_KT))
    k.L(nod)
    gemm_mfma(k, c, r, 1)
    k.e("s_branch %s" % loop)
    k.L(last)
    k.e("s_waitcnt lgkmcnt(0)")
    gemm_mfma(k, c, r, 1)
    k.L(done)
    k.e("s_sub_u32 s%d, 0, s%d" % (S_T0, S_CUR))
    for v in r.vxa + r.vwa:
        k.e("v_add_u32 v%d, s%d, v%d" % (v, S_T0, v))


def emit_gelu(k, x, t0, t1):
    k.e("v_mul_f32 v%d, v%d, v%d" % (t0, x, x))
    k.e("v_mov_b32 v%d, 0x3d372713" % t1)
    k.e("v_fma_f32 v%d, v%d, v%d, 1.0" % (t0, t0, t1))
    k.e("v_mul_f32 v%d, v%d, v%d" % (t0, t0, x))
    k.e("v_mul_f32 v%d, 0xc0135761, v%d" % (t0, t0))
    k.e("v_exp_f32 v%d, v%d" % (t0, t0))
    k.nop(0)
    k.e("v_add_f32 v%d, 1.0, v%d" % (t0, t0))
    k.e("v_rcp_f32 v%d, v%d" % (t0, t0))
    k.nop(0)
    k.e("v_mul_f32 v%d, v%d, v%d" % (x, x, t0))


def gemm_epilogue(k, c, r, mode):
    t0, t1, t2, t3, t4, t5, t6 = r.vt
    if 'noepi' in DBG:
        return
    k.c("epilogue " + mode)
    k.nop(15)
    k.nop(7)
    k.e("s_and_b32 s%d, s%d, %d" % (S_T2, S_WAVE, c.WM - 1))
    k.e("s_lshr_b32 s%d, s%d, %d" % (S_T3, S_WAVE, c.WM.bit_length() - 1))
    k.e("s_mul_i32 s%d, s%d, %d" % (S_T0, S_T2, c.TM * 32))
    k.e("s_add_u32 s%d, s%d, s%d" % (S_T0, S_T0, S_M0))
    k.e("s_mul_i32 s%d, s%d, %d" % (S_T1, S_T3, c.TN * 32))
    k.e("s_add_u32 s%d, s%d, s%d" % (S_T1, S_T1, S_N0))
    k.e("s_lshl_b32 s%d, s%d, 1" % (S_T1, S_T1))
    k.e("v_and_b32 v%d, 31, v0" % t0)
    k.e("v_add_u32 v%d, s%d, v%d" % (t0, S_T0, t0))
    k.e("v_bfe_u32 v%d, v0, 5, 1" % t1)
    k.e("v_mul_lo_u32 v%d, v%d, s%d" % (t2, t0, S_LDC))
    k.e("v_add_u32 v%d, s%d, v%d" % (t2, S_T1, t2))
    k.e("v_lshl_add_u32 v%d, v%d, 4, v%d" % (t3, t1, t2))
    k.e("v_lshl_add_u32 v%d, v%d, 3, v%d" % (t4, t1, t2))
    k.e("v_lshlrev_b32 v%d, 2, v%d" % (t5, t0))
    ep = r.ep
    P = [ep + i for i in range(8)]
    RS = [ep + 8 + i for i in range(8)]
    a0, a1, a2, a3 = ep + 16, ep + 17, ep + 18, ep + 19
    for tm in range(c.TM):
        k.e("s_lshl_b32 s%d, s%d, 5" % (S_T0, S_LDC))
        k.e("s_mul_i32 s%d, s%d, %d" % (S_T0, S_T0, tm))
        if mode == 'final':
            k.e("buffer_load_dword v%d, v%d, %s, 0 offen offset:%d" % (a3, t5, sr(S_SRDG, 4), tm * 128))
        for tn in range(c.TN):
            a = r.acc[(tn, tm)]
            if mode in ('resid', 'final'):
                for q in range(4):
                    k.e("buffer_load_dwordx2 %s, v%d, %s, s%d offen offset:%d" %
                        (vr(RS[2 * q], 2), t4, sr(S_SRDR, 4), S_T0, tn * 64 + q * 16))
                k.e("s_waitcnt vmcnt(0)")
            for q in range(4):
                lo, hi = P[2 * q], P[2 * q + 1]
                k.e("v_cvt_pk_bf16_f32 v%d, v%d, v%d" % (lo, a + 4 * q, a + 4 * q + 1))
                k.e("v_cvt_pk_bf16_f32 v%d, v%d, v%d" % (hi, a + 4 * q + 2, a + 4 * q + 3))
                if mode == 'store':
                    continue
                for (pk, rs) in ((lo, RS[2 * q]), (hi, RS[2 * q + 1])):
                    k.e("v_lshlrev_b32 v%d, 16, v%d" % (a0, pk))
                    k.e("v_and_b32 v%d, 0xffff0000, v%d" % (a1, pk))
                    if mode == 'gelu':
                        emit_gelu(k, a0, a2, t6)
                        emit_gelu(k, a1, a2, t6)
                    else:
                        k.e("v_lshlrev_b32 v%d, 16, v%d" % (a2, rs))
                        k.e("v_add_f32 v%d, v%d, v%d" % (a0, a0, a2))
                        k.e("v_and_b32 v%d, 0xffff0000, v%d" % (a2, rs))
                        k.e("v_add_f32 v%d, v%d, v%d" % (a1, a1, a2))
                        if mode == 'final':
                            k.e("v_cvt_pk_bf16_f32 v%d, v%d, v%d" % (a2, a0, a1))
                            k.e("v_lshlrev_b32 v%d, 16, v%d" % (a0, a2))
                            k.e("v_and_b32 v%d, 0xffff0000, v%d" % (a1, a2))
                            k.e("v_sub_f32 v%d, 1.0, v%d" % (a2, a3))
                            rnd_bf16(k, a2)
                            k.e("v_mul_f32 v%d, v%d, v%d" % (a0, a0, a2))
                            k.e("v_mul_f32 v%d, v%d, v%d" % (a1, a1, a2))
                            k.e("v_cvt_pk_bf16_f32 v%d, v%d, v%d" % (a2, a0, a1))
                            k.e("v_lshlrev_b32 v%d, 16, v%d" % (a0, a2))
                            k.e("v_and_b32 v%d, 0xffff0000, v%d" % (a1, a2))
                            sa = r.save + (a - r.acc_base) + 4 * q + (0 if pk == lo else 2)
                            k.e("v_cvt_pk_bf16_f32 v%d, v%d, v%d" % (a2, sa, sa + 1))
                            k.e("v_lshlrev_b32 v%d, 16, v%d" % (t6, a2))
                            k.e("v_and_b32 v%d, 0xffff0000, v%d" % (a2, a2))
                            k.e("v_mul_f32 v%d, v%d, v%d" % (t6, t6, a3))
                            k.e("v_mul_f32 v%d, v%d, v%d" % (a2, a2, a3))
                            k.e("v_cvt_pk_bf16_f32 v%d, v%d, v%d" % (a2, t6, a2))
                            k.e("v_lshlrev_b32 v%d, 16, v%d" % (t6, a2))
                            k.e("v_and_b32 v%d, 0xffff0000, v%d" % (a2, a2))
                            k.e("v_add_f32 v%d, v%d, v%d" % (a0, a0, t6))
                            k.e("v_add_f32 v%d, v%d, v%d" % (a1, a1, a2))
                    k.e("v_cvt_pk_bf16_f32 v%d, v%d, v%d" % (pk, a0, a1))
            k.nop(1)
            for p in range(2):
                k.e("v_permlane32_swap_b32 v%d, v%d" % (P[4 * p], P[4 * p + 2]))
                k.e("v_permlane32_swap_b32 v%d, v%d" % (P[4 * p + 1], P[4 * p + 3]))
            k.nop(1)
            for p in range(2):
                k.e("buffer_store_dwordx4 %s, v%d, %s, s%d offen offset:%d" %
                    (vr(P[4 * p], 4), t3, sr(S_SRDC, 4), S_T0, tn * 64 + p * 32))
            k.nop(3)


class GemmRegsPP:
    def __init__(self, cfg, shifted=False, nsave=0):
        c = cfg
        self.vt = list(range(1, 8))
        p = 8
        self.vpf = p; p += 2
        self.vxa = list(range(p, p + 4)); p += 4
        self.vwa = list(range(p, p + c.TN)); p += c.TN
        self.vxo = list(range(p, p + c.XI)); p += c.XI
        self.vwo = list(range(p, p + c.WI)); p += c.WI
        self.vxs = list(range(p, p + c.XI)) if shifted else None
        if shifted:
            p += c.XI
        p = (p + 3) // 4 * 4
        self.FX = [[p + 4 * (tm * 4 + t) for t in range(4)] for tm in range(c.TM)]; p += 16 * c.TM
        self.FW = [[p + 4 * (tn * 4 + t) for t in range(4)] for tn in range(c.TN)]; p += 16 * c.TN
        p = (p + 15) // 16 * 16
        self.acc = {}
        for tn in range(c.TN):
            for tm in range(c.TM):
                self.acc[(tn, tm)] = p; p += 16
        self.acc_base = self.acc[(0, 0)]
        self.nacc = 16 * c.TM * c.TN
        self.save = p
        p += nsave
        self.end = p
        self.ep = self.FX[0][0]


def pp_reads(k, c, r):
    if 'noreads' in DBG:
        return
    for t in range(4):
        for tm in range(c.TM):
            k.e("ds_read_b128 %s, v%d offset:%d" % (vr(r.FX[tm][t], 4), r.vxa[t], tm * 4096))
        for tn in range(c.TN):
            for u in range(2):
                k.e("ds_read_b64_tr_b16 %s, v%d offset:%d" % (vr(r.FW[tn][t] + 2 * u, 2), r.vwa[tn], (16 * t + 4 * u) * c.RB))


def pp_mfma(k, c, r):
    if 'nomfma' in DBG:
        return
    for t in range(4):
        for tn in range(c.TN):
            for tm in range(c.TM):
                a = r.acc[(tn, tm)]
                k.e("v_mfma_f32_32x32x16_bf16 %s, %s, %s, %s" % (vr(a, 16), vr(r.FW[tn][t], 4), vr(r.FX[tm][t], 4), vr(a, 16)))


def pp_loop_body(k, c, r, grpB, shifted):
    D = c.D
    loop = k.lab("PPL"); nod = k.lab("PPN"); w0 = k.lab("PW0"); w1 = k.lab("PW1"); x0 = k.lab("PX0"); x1 = k.lab("PX1")
    k.L(loop)
    pp_reads(k, c, r)
    k.e("s_cmp_ge_u32 s%d, s%d" % (S_KT, S_NK))
    k.e("s_cbranch_scc1 %s" % nod)
    if shifted:
        gemm_shift_update(k, c, r, S_KT)
    gemm_dma(k, c, r, S_OLD, shifted)
    k.e("s_add_u32 s%d, s%d, 128" % (S_KX, S_KX))
    k.e("s_add_u32 s%d, s%d, s%d" % (S_KW, S_KW, S_T2))
    k.e("s_add_u32 s%d, s%d, 1" % (S_KT, S_KT))
    k.L(nod)
    if grpB:
        k.e("s_add_u32 s%d, s%d, %d" % (S_T0, S_T3, c.NS))
        k.e("s_cmp_eq_u32 s%d, s%d" % (S_T0, S_KT))
        k.e("s_cbranch_scc1 %s" % w0)
        k.e("s_waitcnt vmcnt(0) lgkmcnt(0)")
        k.e("s_branch %s" % w1)
        k.L(w0)
        k.e("s_waitcnt vmcnt(%d) lgkmcnt(0)" % ((c.NS - 2) * D))
        k.L(w1)
    else:
        k.e("s_waitcnt lgkmcnt(0)")
    k.e("s_barrier")
    k.e("s_setprio 1")
    pp_mfma(k, c, r)
    k.e("s_setprio 0")
    k.e("s_mov_b32 s%d, s%d" % (S_T1, S_CUR))
    k.e("s_add_u32 s%d, s%d, %d" % (S_CUR, S_CUR, c.STAGE))
    k.e("s_cmp_eq_u32 s%d, %d" % (S_CUR, c.STAGE * c.NS))
    k.e("s_cselect_b32 s%d, 0, s%d" % (S_CUR, S_CUR))
    k.e("s_sub_u32 s%d, s%d, s%d" % (S_T0, S_CUR, S_T1))
    for v in r.vxa + r.vwa:
        k.e("v_add_u32 v%d, s%d, v%d" % (v, S_T0, v))
    k.e("s_add_u32 s%d, s%d, %d" % (S_OLD, S_OLD, c.STAGE))
    k.e("s_cmp_eq_u32 s%d, %d" % (S_OLD, c.STAGE * c.NS))
    k.e("s_cselect_b32 s%d, 0, s%d" % (S_OLD, S_OLD))
    k.e("s_add_u32 s%d, s%d, 1" % (S_T3, S_T3))
    if not grpB:
        k.e("s_add_u32 s%d, s%d, %d" % (S_T0, S_T3, c.NS - 1))
        k.e("s_cmp_eq_u32 s%d, s%d" % (S_T0, S_KT))
        k.e("s_cbranch_scc1 %s" % x0)
        k.e("s_waitcnt vmcnt(0)")
        k.e("s_branch %s" % x1)
        k.L(x0)
        k.e("s_waitcnt vmcnt(%d)" % ((c.NS - 2) * D))
        k.L(x1)
    k.e("s_barrier")
    k.e("s_cmp_lt_u32 s%d, s%d" % (S_T3, S_NK))
    k.e("s_cbranch_scc1 %s" % loop)


def gemm_kloop_pp(k, c, r, shifted=False):
    assert c.NW == 8
    D = c.D
    k.c("K loop (ping-pong) prologue")
    k.e("s_lshl_b32 s%d, s%d, 6" % (S_T2, S_LDW))
    for i in range(r.nacc):
        k.e("v_mov_b32 v%d, 0" % (r.acc_base + i))
    k.e("s_mov_b32 s%d, 0" % S_KT)
    for s in range(c.NS - 1):
        if shifted:
            gemm_shift_update(k, c, r, S_KT)
        k.e("s_mov_b32 s%d, %d" % (S_OLD, s * c.STAGE))
        gemm_dma(k, c, r, S_OLD, shifted)
        k.e("s_add_u32 s%d, s%d, 128" % (S_KX, S_KX))
        k.e("s_add_u32 s%d, s%d, s%d" % (S_KW, S_KW, S_T2))
        k.e("s_add_u32 s%d, s%d, 1" % (S_KT, S_KT))
    k.e("s_mov_b32 s%d, %d" % (S_OLD, (c.NS - 1) * c.STAGE))
    k.e("s_mov_b32 s%d, 0" % S_CUR)
    k.e("s_mov_b32 s%d, 0" % S_T3)
    k.e("s_waitcnt vmcnt(%d)" % ((c.NS - 2) * D))
    k.e("s_barrier")
    gb = k.lab("GRPB"); done = k.lab("PPD")
    k.e("s_cmp_ge_u32 s%d, 4" % S_WAVE)
    k.e("s_cbranch_scc1 %s" % gb)
    pp_loop_body(k, c, r, False, shifted)
    k.e("s_barrier")
    k.e("s_branch %s" % done)
    k.L(gb)
    k.e("s_barrier")
    pp_loop_body(k, c, r, True, shifted)
    k.L(done)
    k.e("s_sub_u32 s%d, 0, s%d" % (S_T0, S_CUR))
    for v in r.vxa + r.vwa:
        k.e("v_add_u32 v%d, s%d, v%d" % (v, S_T0, v))


def gemm_epilogue_lds(k, c, r, mode, lds_base=0):
    if 'noepi' in DBG:
        return
    t0, t1, t2, t3, t4, t5, t6 = r.vt
    RC = c.BN * 2
    TILE = c.BM * RC
    ep = r.ep
    P = [ep + i for i in range(8)]
    a0, a1, a2, a3 = ep + 8, ep + 9, ep + 10, ep + 11
    k.c("epilogue(lds) " + mode)
    k.nop(15)
    k.nop(7)
    k.e("s_and_b32 s%d, s%d, %d" % (S_T2, S_WAVE, c.WM - 1))
    k.e("s_lshr_b32 s%d, s%d, %d" % (S_T3, S_WAVE, c.WM.bit_length() - 1))
    k.e("v_and_b32 v%d, 31, v0" % t0)
    k.e("s_mul_i32 s%d, s%d, %d" % (S_T0, S_T2, c.TM * 32))
    k.e("v_add_u32 v%d, s%d, v%d" % (t0, S_T0, t0))
    k.e("v_mul_u32_u24 v%d, %d, v%d" % (t1, RC, t0))
    k.e("v_and_b32 v%d, 7, v0" % t0)
    k.e("v_lshl_or_b32 v%d, v%d, 4, v%d" % (t1, t0, t1))
    k.e("v_bfe_u32 v%d, v0, 5, 1" % t0)
    k.e("v_lshl_or_b32 v%d, v%d, 3, v%d" % (t1, t0, t1))
    k.e("s_mul_i32 s%d, s%d, %d" % (S_T0, S_T3, c.TN * 64))
    k.e("v_xor_b32 v%d, s%d, v%d" % (t1, S_T0, t1))
    sets = [(r.acc, 0)] if mode != 'final' else [(r.acc, 0), (None, TILE)]
    for which, (accmap, lbase) in enumerate(sets):
        for tm in range(c.TM):
            for tn in range(c.TN):
                a = r.acc[(tn, tm)] if which == 0 else r.save + (r.acc[(tn, tm)] - r.acc_base)
                for q in range(4):
                    lo, hi = P[0], P[1]
                    k.e("v_cvt_pk_bf16_f32 v%d, v%d, v%d" % (lo, a + 4 * q, a + 4 * q + 1))
                    k.e("v_cvt_pk_bf16_f32 v%d, v%d, v%d" % (hi, a + 4 * q + 2, a + 4 * q + 3))
                    if mode == 'gelu':
                        for pk in (lo, hi):
                            k.e("v_lshlrev_b32 v%d, 16, v%d" % (a0, pk))
                            k.e("v_and_b32 v%d, 0xffff0000, v%d" % (a1, pk))
                            emit_gelu(k, a0, a2, t6)
                            emit_gelu(k, a1, a2, t6)
                            k.e("v_cvt_pk_bf16_f32 v%d, v%d, v%d" % (pk, a0, a1))
                    k.e("v_xor_b32 v%d, %d, v%d" % (t0, (tn * 4 + q) << 4, t1))
                    k.e("ds_write_b64 v%d, v[%d:%d] offset:%d" % (t0, lo, hi, lds_base + lbase + tm * 32 * RC))
    k.e("s_waitcnt lgkmcnt(0)")
    k.e("s_barrier")
    CPR = RC // 16
    RPI = 64 // CPR
    NI = TILE // 1024 // c.NW
    sh = CPR.bit_length() - 1
    k.e("v_and_b32 v%d, 63, v0" % t0)
    k.e("v_lshrrev_b32 v%d, %d, v%d" % (t1, sh, t0))
    k.e("s_mul_i32 s%d, s%d, %d" % (S_T0, S_WAVE, NI * RPI))
    k.e("v_add_u32 v%d, s%d, v%d" % (t1, S_T0, t1))
    k.e("v_and_b32 v%d, %d, v%d" % (t2, CPR - 1, t0))
    k.e("v_and_b32 v%d, 7, v%d" % (t3, t1))
    k.e("v_xor_b32 v%d, v%d, v%d" % (t3, t3, t2))
    k.e("v_mul_u32_u24 v%d, %d, v%d" % (t4, RC, t1))
    k.e("v_lshl_add_u32 v%d, v%d, 4, v%d" % (t4, t3, t4))
    k.e("v_add_u32 v%d, s%d, v%d" % (t3, S_M0, t1))
    k.e("v_mul_lo_u32 v%d, v%d, s%d" % (t5, t3, S_LDC))
    k.e("v_lshl_add_u32 v%d, v%d, 4, v%d" % (t5, t2, t5))
    k.e("s_lshl_b32 s%d, s%d, 1" % (S_T0, S_N0))
    k.e("v_add_u32 v%d, s%d, v%d" % (t5, S_T0, t5))
    k.e("v_lshlrev_b32 v%d, 2, v%d" % (t6, t3))
    assert RPI % 8 == 0 or RPI == 4
    for i in range(NI):
        if RPI == 4 and i > 0:
            k.e("v_add_u32 v%d, %d, v%d" % (t1, RPI, t1))
            k.e("v_and_b32 v%d, 7, v%d" % (t3, t1))
            k.e("v_xor_b32 v%d, v%d, v%d" % (t3, t3, t2))
            k.e("v_mul_u32_u24 v%d, %d, v%d" % (t4, RC, t1))
            k.e("v_lshl_add_u32 v%d, v%d, 4, v%d" % (t4, t3, t4))
        loff = 0 if RPI == 4 else i * 1024
        k.e("s_mul_i32 s%d, s%d, %d" % (S_T1, S_LDC, i * RPI))
        X = ep + 12
        Y = ep + 16
        Z = ep + 20
        k.e("ds_read_b128 %s, v%d offset:%d" % (vr(X, 4), t4, lds_base + loff))
        if mode == 'resid':
            k.e("buffer_load_dwordx4 %s, v%d, %s, s%d offen" % (vr(Y, 4), t5, sr(S_SRDR, 4), S_T1))
            k.e("s_waitcnt vmcnt(0) lgkmcnt(0)")
            for j in range(4):
                k.e("v_lshlrev_b32 v%d, 16, v%d" % (a0, X + j))
                k.e("v_and_b32 v%d, 0xffff0000, v%d" % (a1, X + j))
                k.e("v_lshlrev_b32 v%d, 16, v%d" % (a2, Y + j))
                k.e("v_and_b32 v%d, 0xffff0000, v%d" % (a3, Y + j))
                k.e("v_add_f32 v%d, v%d, v%d" % (a0, a0, a2))
                k.e("v_add_f32 v%d, v%d, v%d" % (a1, a1, a3))
                k.e("v_cvt_pk_bf16_f32 v%d, v%d, v%d" % (X + j, a0, a1))
        elif mode == 'final':
            k.e("ds_read_b128 %s, v%d offset:%d" % (vr(Z, 4), t4, lds_base + TILE + loff))
            k.e("buffer_load_dwordx4 %s, v%d, %s, s%d offen" % (vr(Y, 4), t5, sr(S_SRDR, 4), S_T1))
            k.e("buffer_load_dword v%d, v%d, %s, 0 offen offset:%d" % (P[2], t6, sr(S_SRDG, 4), i * RPI * 4))
            k.e("s_waitcnt vmcnt(0) lgkmcnt(0)")
            k.e("v_sub_f32 v%d, 1.0, v%d" % (P[3], P[2]))
            rnd_bf16(k, P[3])
            for j in range(4):
                k.e("v_lshlrev_b32 v%d, 16, v%d" % (a0, X + j))
                k.e("v_and_b32 v%d, 0xffff0000, v%d" % (a1, X + j))
                k.e("v_lshlrev_b32 v%d, 16, v%d" % (a2, Y + j))
                k.e("v_and_b32 v%d, 0xffff0000, v%d" % (a3, Y + j))
                k.e("v_add_f32 v%d, v%d, v%d" % (a0, a0, a2))
                k.e("v_add_f32 v%d, v%d, v%d" % (a1, a1, a3))
                k.e("v_cvt_pk_bf16_f32 v%d, v%d, v%d" % (a2, a0, a1))
                k.e("v_lshlrev_b32 v%d, 16, v%d" % (a0, a2))
                k.e("v_and_b32 v%d, 0xffff0000, v%d" % (a1, a2))
                k.e("v_mul_f32 v%d, v%d, v%d" % (a0, a0, P[3]))
                k.e("v_mul_f32 v%d, v%d, v%d" % (a1, a1, P[3]))
                k.e("v_cvt_pk_bf16_f32 v%d, v%d, v%d" % (a2, a0, a1))
                k.e("v_lshlrev_b32 v%d, 16, v%d" % (a0, a2))
                k.e("v_and_b32 v%d, 0xffff0000, v%d" % (a1, a2))
                k.e("v_lshlrev_b32 v%d, 16, v%d" % (a2, Z + j))
                k.e("v_and_b32 v%d, 0xffff0000, v%d" % (a3, Z + j))
                k.e("v_mul_f32 v%d, v%d, v%d" % (a2, a2, P[2]))
                k.e("v_mul_f32 v%d, v%d, v%d" % (a3, a3, P[2]))
                k.e("v_cvt_pk_bf16_f32 v%d, v%d, v%d" % (a3, a2, a3))
                k.e("v_lshlrev_b32 v%d, 16, v%d" % (a2, a3))
                k.e("v_and_b32 v%d, 0xffff0000, v%d" % (a3, a3))
                k.e("v_add_f32 v%d, v%d, v%d" % (a0, a0, a2))
                k.e("v_add_f32 v%d, v%d, v%d" % (a1, a1, a3))
                k.e("v_cvt_pk_bf16_f32 v%d, v%d, v%d" % (X + j, a0, a1))
        else:
            k.e("s_waitcnt lgkmcnt(0)")
        sfx = ""
        if 'stnt' in DBG: sfx = " nt"
        if 'stsc1' in DBG: sfx = " sc1"
        if 'stsc01' in DBG: sfx = " sc0 sc1"
        if 'nost' not in DBG:
            k.e("buffer_store_dwordx4 %s, v%d, %s, s%d offen%s" % (vr(X, 4), t5, sr(S_SRDC, 4), S_T1, sfx))
        k.nop(1)


def emit_gelu2(k, x0, x1, t0, t1, c1, c2):
    k.e("v_pk_mul_f32 v[%d:%d], v[%d:%d], v[%d:%d]" % (t0, t0 + 1, x0, x0 + 1, x0, x0 + 1))
    k.e("v_pk_fma_f32 v[%d:%d], v[%d:%d], v[%d:%d], 1.0 op_sel_hi:[1,1,0]" % (t0, t0 + 1, t0, t0 + 1, c1, c1 + 1))
    k.e("v_pk_mul_f32 v[%d:%d], v[%d:%d], v[%d:%d]" % (t0, t0 + 1, t0, t0 + 1, x0, x0 + 1))
    k.e("v_pk_mul_f32 v[%d:%d], v[%d:%d], v[%d:%d]" % (t0, t0 + 1, t0, t0 + 1, c2, c2 + 1))
    k.e("v_exp_f32 v%d, v%d" % (t0, t0))
    k.e("v_exp_f32 v%d, v%d" % (t0 + 1, t0 + 1))
    k.nop(0)
    k.e("v_pk_add_f32 v[%d:%d], v[%d:%d], 1.0 op_sel_hi:[1,0]" % (t0, t0 + 1, t0, t0 + 1))
    k.e("v_rcp_f32 v%d, v%d" % (t0, t0))
    k.e("v_rcp_f32 v%d, v%d" % (t0 + 1, t0 + 1))
    k.nop(0)
    k.e("v_pk_mul_f32 v[%d:%d], v[%d:%d], v[%d:%d]" % (x0, x0 + 1, x0, x0 + 1, t0, t0 + 1))


def gemm_epilogue2(k, c, r, mode):
    if 'noepi' in DBG:
        return
    t0, t1, t2, t3, t4, t5, t6 = r.vt
    RCF = c.BN * 4
    TILE = c.BM * RCF
    ep = r.ep
    CPR = c.BN // 8
    RPI = 64 // CPR
    NI = c.BM // RPI // c.NW
    sh = CPR.bit_length() - 1
    pre = mode in ('resid', 'final')
    k.c("epilogue2 " + mode)
    k.e("v_and_b32 v%d, 63, v0" % t0)
    k.e("v_lshrrev_b32 v%d, %d, v%d" % (t1, sh, t0))
    k.e("s_mul_i32 s%d, s%d, %d" % (S_T0, S_WAVE, NI * RPI))
    k.e("v_add_u32 v%d, s%d, v%d" % (t1, S_T0, t1))
    k.e("v_and_b32 v%d, %d, v%d" % (t2, CPR - 1, t0))
    k.e("v_and_b32 v%d, 7, v%d" % (t3, t1))
    k.e("v_lshlrev_b32 v%d, 1, v%d" % (t4, t2))
    k.e("v_xor_b32 v%d, v%d, v%d" % (t3, t3, t4))
    k.e("v_mul_u32_u24 v%d, %d, v%d" % (t4, RCF, t1))
    k.e("v_lshl_add_u32 v%d, v%d, 4, v%d" % (t4, t3, t4))
    k.e("v_add_u32 v%d, s%d, v%d" % (t3, S_M0, t1))
    k.e("v_mul_lo_u32 v%d, v%d, s%d" % (t5, t3, S_LDC))
    k.e("v_lshl_add_u32 v%d, v%d, 4, v%d" % (t5, t2, t5))
    k.e("s_lshl_b32 s%d, s%d, 1" % (S_T0, S_N0))
    k.e("v_add_u32 v%d, s%d, v%d" % (t5, S_T0, t5))
    k.e("v_lshlrev_b32 v%d, 2, v%d" % (t6, t3))
    X = ep; X2 = ep + 4; Z = ep + 8; Z2 = ep + 12
    T = ep + 16; G1 = ep + 18; C1 = ep + 20; C2 = ep + 22; U = ep + 24
    YB = ep + 28
    GB = YB + 4 * NI
    if pre:
        for i in range(NI):
            k.e("s_mul_i32 s%d, s%d, %d" % (S_T1, S_LDC, i * RPI))
            k.e("buffer_load_dwordx4 %s, v%d, %s, s%d offen" % (vr(YB + 4 * i, 4), t5, sr(S_SRDR, 4), S_T1))
            if mode == 'final':
                k.e("buffer_load_dword v%d, v%d, %s, 0 offen offset:%d" % (GB + i, t6, sr(S_SRDG, 4), i * RPI * 4))
    k.nop(15)
    k.nop(7)
    k.e("s_and_b32 s%d, s%d, %d" % (S_T2, S_WAVE, c.WM - 1))
    k.e("s_lshr_b32 s%d, s%d, %d" % (S_T3, S_WAVE, c.WM.bit_length() - 1))
    k.e("v_and_b32 v%d, 31, v0" % t0)
    k.e("s_mul_i32 s%d, s%d, %d" % (S_T0, S_T2, c.TM * 32))
    k.e("v_add_u32 v%d, s%d, v%d" % (t0, S_T0, t0))
    k.e("v_mul_u32_u24 v%d, %d, v%d" % (t1, RCF, t0))
    k.e("v_and_b32 v%d, 7, v0" % t0)
    k.e("v_bfe_u32 v%d, v0, 5, 1" % t2)
    k.e("v_xor_b32 v%d, v%d, v%d" % (t0, t0, t2))
    k.e("s_mul_i32 s%d, s%d, %d" % (S_T0, S_T3, c.TN * 8))
    k.e("v_xor_b32 v%d, s%d, v%d" % (t0, S_T0, t0))
    k.e("v_lshl_add_u32 v%d, v%d, 4, v%d" % (t1, t0, t1))
    nset = 2 if mode == 'final' else 1
    for which in range(nset):
        if which == 1:
            k.e("v_add_u32 v%d, %d, v%d" % (t1, TILE, t1))
        for tm in range(c.TM):
            for tn in range(c.TN):
                a = r.acc[(tn, tm)] if which == 0 else r.save + (r.acc[(tn, tm)] - r.acc_base)
                for q in range(4):
                    k.e("v_xor_b32 v%d, %d, v%d" % (t0, (2 * q + 8 * tn) << 4, t1))
                    k.e("ds_write_b128 v%d, v[%d:%d] offset:%d" % (t0, a + 4 * q, a + 4 * q + 3, tm * 32 * RCF))
    k.e("s_waitcnt lgkmcnt(0)")
    k.e("s_barrier")
    k.e("s_mov_b32 s%d, 0" % S_T1)
    k.e("s_mul_i32 s%d, s%d, %d" % (S_T3, S_LDC, RPI))
    if mode == 'gelu':
        k.e("v_mov_b32 v%d, 0x3d372713" % C1); k.e("v_mov_b32 v%d, 0x3d372713" % (C1 + 1))
        k.e("v_mov_b32 v%d, 0xc0135761" % C2); k.e("v_mov_b32 v%d, 0xc0135761" % (C2 + 1))

    def body(i):
        k.e("v_xor_b32 v%d, 16, v%d" % (t0, t4))
        k.e("ds_read_b128 %s, v%d" % (vr(X, 4), t4))
        k.e("ds_read_b128 %s, v%d" % (vr(X2, 4), t0))
        if mode == 'final':
            k.e("v_add_u32 v%d, %d, v%d" % (t1, TILE, t4))
            k.e("v_add_u32 v%d, %d, v%d" % (t2, TILE, t0))
            k.e("ds_read_b128 %s, v%d" % (vr(Z, 4), t1))
            k.e("ds_read_b128 %s, v%d" % (vr(Z2, 4), t2))
        if pre and i == 0:
            k.e("s_waitcnt vmcnt(0) lgkmcnt(0)")
        else:
            k.e("s_waitcnt lgkmcnt(0)")
        G = GB + i if pre else None
        if mode == 'final':
            k.e("v_sub_f32 v%d, 1.0, v%d" % (G1, G))
            rnd_bf16(k, G1)
        for j in range(4):
            xa = X + 2 * j
            if mode == 'store':
                k.e("v_cvt_pk_bf16_f32 v%d, v%d, v%d" % (U + j, xa, xa + 1))
                continue
            k.e("v_cvt_pk_bf16_f32 v%d, v%d, v%d" % (T, xa, xa + 1))
            k.e("v_lshlrev_b32 v%d, 16, v%d" % (xa, T))
            k.e("v_and_b32 v%d, 0xffff0000, v%d" % (xa + 1, T))
            if mode == 'gelu':
                emit_gelu2(k, xa, xa + 1, T, None, C1, C2)
            else:
                Y = YB + 4 * i
                k.e("v_lshlrev_b32 v%d, 16, v%d" % (T, Y + j))
                k.e("v_and_b32 v%d, 0xffff0000, v%d" % (T + 1, Y + j))
                k.e("v_pk_add_f32 v[%d:%d], v[%d:%d], v[%d:%d]" % (xa, xa + 1, xa, xa + 1, T, T + 1))
                if mode == 'final':
                    k.e("v_cvt_pk_bf16_f32 v%d, v%d, v%d" % (T, xa, xa + 1))
                    k.e("v_lshlrev_b32 v%d, 16, v%d" % (xa, T))
                    k.e("v_and_b32 v%d, 0xffff0000, v%d" % (xa + 1, T))
                    k.e("v_mul_f32 v%d, v%d, v%d" % (xa, xa, G1))
                    k.e("v_mul_f32 v%d, v%d, v%d" % (xa + 1, xa + 1, G1))
                    k.e("v_cvt_pk_bf16_f32 v%d, v%d, v%d" % (T, xa, xa + 1))
                    k.e("v_lshlrev_b32 v%d, 16, v%d" % (xa, T))
                    k.e("v_and_b32 v%d, 0xffff0000, v%d" % (xa + 1, T))
                    za = Z + 2 * j
                    k.e("v_cvt_pk_bf16_f32 v%d, v%d, v%d" % (T, za, za + 1))
                    k.e("v_lshlrev_b32 v%d, 16, v%d" % (za, T))
                    k.e("v_and_b32 v%d, 0xffff0000, v%d" % (za + 1, T))
                    k.e("v_mul_f32 v%d, v%d, v%d" % (za, za, G))
                    k.e("v_mul_f32 v%d, v%d, v%d" % (za + 1, za + 1, G))
                    k.e("v_cvt_pk_bf16_f32 v%d, v%d, v%d" % (T, za, za + 1))
                    k.e("v_lshlrev_b32 v%d, 16, v%d" % (za, T))
                    k.e("v_and_b32 v%d, 0xffff0000, v%d" % (za + 1, T))
                    k.e("v_pk_add_f32 v[%d:%d], v[%d:%d], v[%d:%d]" % (xa, xa + 1, xa, xa + 1, za, za + 1))
            k.e("v_cvt_pk_bf16_f32 v%d, v%d, v%d" % (U + j, xa, xa + 1))
        k.e("buffer_store_dwordx4 %s, v%d, %s, s%d offen" % (vr(U, 4), t5, sr(S_SRDC, 4), S_T1))
        k.e("v_add_u32 v%d, %d, v%d" % (t4, RPI * RCF, t4))
        if RPI == 4:
            k.e("v_xor_b32 v%d, 64, v%d" % (t4, t4))
        k.e("s_add_u32 s%d, s%d, s%d" % (S_T1, S_T1, S_T3))

    if pre:
        for i in range(NI):
            body(i)
    else:
        k.e("s_mov_b32 s%d, %d" % (S_KT, NI))
        loop = k.lab("EPL")
        k.L(loop)
        body(0)
        k.e("s_sub_u32 s%d, s%d, 1" % (S_KT, S_KT))
        k.e("s_cmp_lg_u32 s%d, 0" % S_KT)
        k.e("s_cbranch_scc1 %s" % loop)


def stamp(k, idx):
    if 'stamp' not in DBG:
        return
    k.e("s_memtime s[%d:%d]" % (80 + 2 * idx, 81 + 2 * idx))


def stamp_flush(k, n):
    if 'stamp' not in DBG:
        return
    skip = k.lab("SKIPST")
    k.e("s_waitcnt lgkmcnt(0)")
    k.e("s_cmp_lg_u32 s2, 5")
    k.e("s_cbranch_scc1 %s" % skip)
    k.e("s_cmp_lg_u32 s%d, 0" % S_WAVE)
    k.e("s_cbranch_scc1 %s" % skip)
    k.e("s_load_dwordx2 s[56:57], s[0:1], 88")
    k.e("s_waitcnt lgkmcnt(0)")
    k.e("s_mov_b32 s58, 256")
    k.e("s_mov_b32 s59, 0x00020000")
    for i in range(n):
        k.e("v_mov_b32 v1, s%d" % (80 + 2 * i))
        k.e("v_mov_b32 v2, %d" % (4 * i))
        k.e("buffer_store_dword v1, v2, s[56:59], 0 offen")
    k.L(skip)


def rstamp_begin(k):
    if 'rstamp' in DBG:
        k.e("s_memrealtime s[70:71]")


def rstamp_end(k):
    if 'rstamp' not in DBG:
        return
    skip = k.lab("SKIPRS")
    k.e("s_memrealtime s[72:73]")
    k.e("s_waitcnt lgkmcnt(0)")
    k.e("s_cmp_lg_u32 s%d, 0" % S_WAVE)
    k.e("s_cbranch_scc1 %s" % skip)
    k.e("s_load_dwordx2 s[56:57], s[0:1], 96")
    k.e("s_waitcnt lgkmcnt(0)")
    k.e("s_add_u32 s56, s56, 0xc800000")
    k.e("s_addc_u32 s57, s57, 0")
    k.e("s_mov_b32 s58, 65536")
    k.e("s_mov_b32 s59, 0x00020000")
    k.e("s_lshl_b32 s74, s2, 3")
    k.e("v_mov_b32 v2, s70")
    k.e("v_mov_b32 v3, s72")
    k.e("v_mov_b32 v4, s74")
    k.e("buffer_store_dwordx2 v[2:3], v4, s[56:59], 0 offen")
    k.L(skip)


def gemm_head(k, nwg):
    end = k.lab("END")
    for d in DBG:
        if d.startswith('lim'):
            nwg = int(d[3:])
    k.e("s_cmp_ge_u32 s2, %d" % nwg)
    k.e("s_cbranch_scc1 %s" % end)
    k.e("v_lshrrev_b32 v1, 6, v0")
    k.nop(0)
    k.e("v_readfirstlane_b32 s%d, v1" % S_WAVE)
    return end


def setup_prefetch(k, c, r, items):
    c.PF = len(items)
    c.D = c.XI + c.WI + c.PF
    for p, (key, nb) in enumerate(items):
        load_ptr(k, 74, key)
        k.e("s_waitcnt lgkmcnt(0)")
        make_srd(k, 64 + 4 * p, 74, 0, nb)
    k.e("v_and_b32 v%d, 63, v0" % r.vpf)
    k.e("v_cmp_gt_u32 vcc, 2, v%d" % r.vpf)
    k.e("v_lshlrev_b32 v%d, 7, v%d" % (r.vpf, r.vpf))
    k.e("v_mov_b32 v%d, 0x7ffffff0" % (r.vpf + 1))
    k.e("v_cndmask_b32 v%d, v%d, v%d, vcc" % (r.vpf, r.vpf + 1, r.vpf))
    k.e("s_lshl_b32 s72, s2, 3")
    k.e("s_add_u32 s72, s72, s%d" % S_WAVE)
    k.e("s_mul_i32 s72, s72, s%d" % S_NK)
    k.e("s_lshl_b32 s72, s72, 8")


def gen_gemm1():
    c = GemmCfg(4, 2, 2, 2)
    r = GemmRegsPP(c)
    k = K("gemm1_kernel")
    end = gemm_head(k, 256)
    stamp(k, 0)
    rstamp_begin(k)
    load_ptr(k, 44, "A_x"); load_ptr(k, 46, "wqkv"); load_ptr(k, 48, "ws"); load_ptr(k, 50, "w1")
    k.e("s_waitcnt lgkmcnt(0)")
    pb = k.lab("PB"); go = k.lab("GO")
    k.e("s_and_b32 s%d, s2, 1" % S_M0)
    k.e("s_lshl_b32 s%d, s%d, 2" % (S_M0, S_M0))
    k.e("s_bfe_u32 s%d, s2, 0x20003" % S_T0)
    k.e("s_add_u32 s%d, s%d, s%d" % (S_M0, S_M0, S_T0))
    k.e("s_lshl_b32 s%d, s%d, 8" % (S_M0, S_M0))
    k.e("s_bfe_u32 s%d, s2, 0x20001" % S_T1)
    k.e("s_lshl_b32 s%d, s%d, 3" % (S_T1, S_T1))
    k.e("s_lshr_b32 s%d, s2, 5" % S_T0)
    k.e("s_add_u32 s%d, s%d, s%d" % (S_T1, S_T1, S_T0))
    k.e("s_cmp_ge_u32 s%d, 24" % S_T1)
    k.e("s_cbranch_scc1 %s" % pb)
    make_srd(k, S_SRDX, 44, 0, SZ_ACT)
    make_srd(k, S_SRDW, 46, 0, 1024 * 3072 * 2)
    make_srd(k, S_SRDC, 48, WS_QKV, SZ_QKV)
    k.e("s_mov_b32 s%d, 2048" % S_LDX); k.e("s_mov_b32 s%d, 6144" % S_LDW); k.e("s_mov_b32 s%d, 6144" % S_LDC)
    k.e("s_mov_b32 s%d, 0" % S_FLAG)
    k.e("s_branch %s" % go)
    k.L(pb)
    make_srd(k, S_SRDX, 48, WS_LNX, SZ_ACT)
    make_srd(k, S_SRDW, 50, 0, 1024 * 1024 * 2)
    make_srd(k, S_SRDC, 48, WS_H, SZ_ACT)
    k.e("s_mov_b32 s%d, 2048" % S_LDX); k.e("s_mov_b32 s%d, 2048" % S_LDW); k.e("s_mov_b32 s%d, 2048" % S_LDC)
    k.e("s_mov_b32 s%d, 1" % S_FLAG)
    k.e("s_sub_u32 s%d, s%d, 24" % (S_T1, S_T1))
    k.L(go)
    k.e("s_mov_b32 s%d, 16" % S_NK)
    k.e("s_lshl_b32 s%d, s%d, 7" % (S_N0, S_T1))
    setup_prefetch(k, c, r, [('w3', 1024 * 3584 * 2), ('w2', 1024 * 1024 * 2)])
    gemm_lane_setup(k, c, r)
    k.e("s_mul_i32 s%d, s%d, s%d" % (S_KX, S_M0, S_LDX))
    k.e("s_lshl_b32 s%d, s%d, 1" % (S_KW, S_N0))
    stamp(k, 1)
    gemm_kloop_pp(k, c, r)
    stamp(k, 2)
    eg = k.lab("EG")
    k.e("s_cmp_eq_u32 s%d, 1" % S_FLAG)
    k.e("s_cbranch_scc1 %s" % eg)
    gemm_epilogue2(k, c, r, 'store')
    stamp(k, 3)
    k.e('s_waitcnt vmcnt(0)')
    stamp(k, 4)
    stamp_flush(k, 5)
    rstamp_end(k)
    k.e("s_endpgm")
    k.L(eg)
    gemm_epilogue2(k, c, r, 'gelu')
    k.L(end)
    k.e("s_endpgm")
    return k, r.end, c.LDS, 512


def gen_gemm2():
    c = GemmCfg(2, 2, 2, 1)
    r = GemmRegs(c, shifted=True)
    r.ep = r.end
    k = K("gemm2_kernel")
    end = gemm_head(k, 256)
    load_ptr(k, 44, "A_x"); load_ptr(k, 46, "w2"); load_ptr(k, 48, "ws")
    k.e("s_waitcnt lgkmcnt(0)")
    make_srd(k, S_SRDX, 48, WS_H, SZ_ACT)
    make_srd(k, S_SRDW, 46, 0, 1024 * 1024 * 2)
    make_srd(k, S_SRDC, 48, WS_X1, SZ_ACT)
    make_srd(k, S_SRDR, 44, 0, SZ_ACT)
    k.e("s_mov_b32 s%d, 2048" % S_LDX); k.e("s_mov_b32 s%d, 2048" % S_LDW); k.e("s_mov_b32 s%d, 2048" % S_LDC)
    k.e("s_mov_b32 s%d, 16" % S_NK)
    k.e("s_and_b32 s%d, s2, 15" % S_M0)
    k.e("s_lshl_b32 s%d, s%d, 7" % (S_M0, S_M0))
    k.e("s_lshr_b32 s%d, s2, 4" % S_N0)
    k.e("s_lshl_b32 s%d, s%d, 6" % (S_N0, S_N0))
    gemm_lane_setup(k, c, r)
    k.e("s_mov_b32 s%d, 0" % S_KX)
    k.e("s_lshl_b32 s%d, s%d, 1" % (S_KW, S_N0))
    gemm_kloop(k, c, r, shifted=True)
    k.e('s_barrier')
    gemm_epilogue2(k, c, r, 'resid')
    k.L(end)
    k.e("s_endpgm")
    return k, r.ep + 48, c.LDS, 256


def gen_gemm4():
    c = GemmCfg(4, 2, 2, 2)
    r = GemmRegsPP(c)
    k = K("gemm4_kernel")
    end = gemm_head(k, 224)
    load_ptr(k, 46, "w3"); load_ptr(k, 48, "ws")
    k.e("s_waitcnt lgkmcnt(0)")
    make_srd(k, S_SRDX, 48, WS_LNX1, SZ_ACT)
    make_srd(k, S_SRDW, 46, 0, 1024 * 3584 * 2)
    make_srd(k, S_SRDC, 48, WS_H3, SZ_H3)
    k.e("s_mov_b32 s%d, 2048" % S_LDX); k.e("s_mov_b32 s%d, 7168" % S_LDW); k.e("s_mov_b32 s%d, 7168" % S_LDC)
    k.e("s_mov_b32 s%d, 16" % S_NK)
    k.e("s_and_b32 s%d, s2, 7" % S_M0)
    k.e("s_lshl_b32 s%d, s%d, 8" % (S_M0, S_M0))
    k.e("s_lshr_b32 s%d, s2, 3" % S_N0)
    k.e("s_lshl_b32 s%d, s%d, 7" % (S_N0, S_N0))
    setup_prefetch(k, c, r, [('w4', 1024 * 3584 * 2), ('wo', 1024 * 1024 * 2)])
    gemm_lane_setup(k, c, r)
    k.e("s_mul_i32 s%d, s%d, s%d" % (S_KX, S_M0, S_LDX))
    k.e("s_lshl_b32 s%d, s%d, 1" % (S_KW, S_N0))
    gemm_kloop_pp(k, c, r)
    gemm_epilogue2(k, c, r, 'gelu')
    k.L(end)
    k.e("s_endpgm")
    return k, r.end, c.LDS, 512


def gen_gemm5():
    c = GemmCfg(2, 4, 2, 1, NS=4)
    r = GemmRegsPP(c, nsave=32)
    k = K("gemm5_kernel")
    end = gemm_head(k, 256)
    stamp(k, 0)
    load_ptr(k, 44, "wo"); load_ptr(k, 46, "w4"); load_ptr(k, 48, "ws"); load_ptr(k, 50, "out")
    k.e("s_waitcnt lgkmcnt(0)")
    make_srd(k, S_SRDC, 50, 0, SZ_ACT)
    make_srd(k, S_SRDR, 48, WS_X1, SZ_ACT)
    make_srd(k, S_SRDG, 48, WS_G, 2048 * 4)
    make_srd(k, 52, 48, WS_PART, 128 * 65536)
    make_srd(k, 56, 48, WS_FLAG, 1024)
    k.e("s_mov_b32 s%d, 2048" % S_LDW); k.e("s_mov_b32 s%d, 2048" % S_LDC)
    k.e("s_bfe_u32 s%d, s2, 0x10003" % S_FLAG)
    k.e("s_lshr_b32 s60, s2, 4")
    k.e("s_lshl_b32 s60, s60, 3")
    k.e("s_and_b32 s61, s2, 7")
    k.e("s_add_u32 s60, s60, s61")
    k.e("s_and_b32 s%d, s60, 15" % S_M0)
    k.e("s_lshl_b32 s%d, s%d, 7" % (S_M0, S_M0))
    k.e("s_lshr_b32 s%d, s60, 4" % S_N0)
    k.e("s_lshl_b32 s%d, s%d, 7" % (S_N0, S_N0))
    h1 = k.lab("HALF1"); fin = k.lab("FIN")
    k.e("s_cmp_eq_u32 s%d, 1" % S_FLAG)
    k.e("s_cbranch_scc1 %s" % h1)
    make_srd(k, S_SRDX, 48, WS_O, SZ_ACT)
    make_srd(k, S_SRDW, 44, 0, 1024 * 1024 * 2)
    k.e("s_mov_b32 s%d, 2048" % S_LDX)
    k.e("s_mov_b32 s%d, 16" % S_NK)
    gemm_lane_setup(k, c, r)
    k.e("s_mul_i32 s%d, s%d, s%d" % (S_KX, S_M0, S_LDX))
    k.e("s_lshl_b32 s%d, s%d, 1" % (S_KW, S_N0))
    gemm_kloop_pp(k, c, r)
    stamp(k, 1)
    k.nop(15); k.nop(7)
    for i in range(r.nacc):
        k.e("v_mov_b32 v%d, v%d" % (r.save + i, r.acc_base + i))
    make_srd(k, S_SRDX, 48, WS_H3, SZ_H3)
    make_srd(k, S_SRDW, 46, 0, 3584 * 1024 * 2)
    k.e("s_mov_b32 s%d, 7168" % S_LDX)
    k.e("s_mov_b32 s%d, 20" % S_NK)
    gemm_lane_setup(k, c, r)
    k.e("s_mul_i32 s%d, s%d, s%d" % (S_KX, S_M0, S_LDX))
    k.e("s_lshl_b32 s%d, s%d, 1" % (S_KW, S_N0))
    gemm_kloop_pp(k, c, r)
    stamp(k, 2)
    k.nop(15); k.nop(7)
    poll = k.lab("POLL"); got = k.lab("GOT")
    k.e("s_lshl_b32 s61, s60, 2")
    k.e("v_mov_b32 v1, s61")
    k.e("s_mov_b32 s62, 0")
    k.L(poll)
    k.e("buffer_load_dword v2, v1, s[56:59], 0 offen sc1")
    k.e("s_waitcnt vmcnt(0)")
    k.e("v_readfirstlane_b32 s63, v2")
    k.e("s_cmp_eq_u32 s63, 0x5a5a")
    k.e("s_cbranch_scc1 %s" % got)
    k.e("s_sleep 2")
    k.e("s_add_u32 s62, s62, 1")
    k.e("s_cmp_lt_u32 s62, 0x400000")
    k.e("s_cbranch_scc1 %s" % poll)
    k.L(got)
    stamp(k, 3)
    k.e("s_barrier")
    k.e("s_lshl_b32 s61, s60, 16")
    k.e("s_mul_i32 s62, s%d, 8192" % S_WAVE)
    k.e("s_add_u32 s61, s61, s62")
    k.e("v_and_b32 v1, 63, v0")
    k.e("v_lshlrev_b32 v1, 4, v1")
    F = r.FX[0][0]
    for i in range(8):
        k.e("buffer_load_dwordx4 %s, v1, s[52:55], s61 offen offset:%d sc1" % (vr(F + 4 * i, 4), (i & 3) * 1024))
        if i == 3:
            k.e("s_add_u32 s61, s61, 4096")
    k.e("s_waitcnt vmcnt(0)")
    for i in range(32):
        k.e("v_add_f32 v%d, v%d, v%d" % (r.acc_base + i, r.acc_base + i, F + i))
    gemm_epilogue2(k, c, r, 'final')
    stamp(k, 4)
    stamp_flush(k, 5)
    k.e("s_endpgm")
    k.L(h1)
    make_srd(k, S_SRDX, 48, WS_H3, SZ_H3)
    make_srd(k, S_SRDW, 46, 0, 3584 * 1024 * 2)
    k.e("s_mov_b32 s%d, 7168" % S_LDX)
    k.e("s_mov_b32 s%d, 36" % S_NK)
    gemm_lane_setup(k, c, r)
    k.e("s_mul_i32 s%d, s%d, s%d" % (S_KX, S_M0, S_LDX))
    k.e("s_add_u32 s%d, s%d, %d" % (S_KX, S_KX, 20 * 128))
    k.e("s_lshl_b32 s%d, s%d, 1" % (S_KW, S_N0))
    k.e("s_add_u32 s%d, s%d, %d" % (S_KW, S_KW, 20 * 64 * 2048))
    gemm_kloop_pp(k, c, r)
    k.nop(15); k.nop(7)
    k.e("s_lshl_b32 s61, s60, 16")
    k.e("s_mul_i32 s62, s%d, 8192" % S_WAVE)
    k.e("s_add_u32 s61, s61, s62")
    k.e("v_and_b32 v1, 63, v0")
    k.e("v_lshlrev_b32 v1, 4, v1")
    for i in range(8):
        k.e("buffer_store_dwordx4 %s, v1, s[52:55], s61 offen offset:%d sc1" % (vr(r.acc_base + 4 * i, 4), (i & 3) * 1024))
        if i == 3:
            k.e("s_add_u32 s61, s61, 4096")
    k.e("s_waitcnt vmcnt(0)")
    k.e("s_barrier")
    k.e("s_cmp_lg_u32 s%d, 0" % S_WAVE)
    k.e("s_cbranch_scc1 %s" % end)
    k.e("s_lshl_b32 s61, s60, 2")
    k.e("v_mov_b32 v1, s61")
    k.e("v_mov_b32 v2, 0x5a5a")
    k.e("v_cmp_eq_u32 vcc, 0, v0")
    k.e("s_and_saveexec_b64 s[62:63], vcc")
    k.e("buffer_store_dword v2, v1, s[56:59], 0 offen sc1")
    k.L(end)
    k.e("s_endpgm")
    return k, r.end, c.LDS, 512


def emit_softmax_pm(k, d, ep_, em_, tmp, vperm):
    mx, mn, t0, t1, sp, sm = tmp, tmp + 1, tmp + 2, tmp + 3, tmp + 4, tmp + 5
    E = tmp + 6
    for i in range(8):
        k.e("v_cvt_pk_bf16_f32 v%d, v%d, v%d" % (t0, d + 2 * i, d + 2 * i + 1))
        k.e("v_lshlrev_b32 v%d, 16, v%d" % (d + 2 * i, t0))
        k.e("v_and_b32 v%d, 0xffff0000, v%d" % (d + 2 * i + 1, t0))
    k.e("v_max_f32 v%d, v%d, v%d" % (mx, d, d + 1))
    k.e("v_min_f32 v%d, v%d, v%d" % (mn, d, d + 1))
    for i in range(1, 8):
        k.e("v_max3_f32 v%d, v%d, v%d, v%d" % (mx, mx, d + 2 * i, d + 2 * i + 1))
        k.e("v_min3_f32 v%d, v%d, v%d, v%d" % (mn, mn, d + 2 * i, d + 2 * i + 1))
    k.e("ds_bpermute_b32 v%d, v%d, v%d" % (t0, vperm, mx))
    k.e("ds_bpermute_b32 v%d, v%d, v%d" % (t1, vperm, mn))
    k.e("s_waitcnt lgkmcnt(0)")
    k.e("v_max_f32 v%d, v%d, v%d" % (mx, mx, t0))
    k.e("v_min_f32 v%d, v%d, v%d" % (mn, mn, t1))
    k.e("v_mul_f32 v%d, 0x%x, v%d" % (mx, LOG2E ^ 0x80000000, mx))
    k.e("v_mul_f32 v%d, 0x%x, v%d" % (mn, LOG2E, mn))
    k.e("v_mov_b32 v%d, 0x%x" % (t0, LOG2E))
    for i in range(16):
        k.e("v_fma_f32 v%d, v%d, v%d, v%d" % (E + i, d + i, t0, mx))
        k.e("v_fma_f32 v%d, -v%d, v%d, v%d" % (E + 16 + i, d + i, t0, mn))
        k.e("v_exp_f32 v%d, v%d" % (E + i, E + i))
        k.e("v_exp_f32 v%d, v%d" % (E + 16 + i, E + 16 + i))
    k.nop(0)
    k.e("v_add_f32 v%d, v%d, v%d" % (sp, E, E + 1))
    k.e("v_add_f32 v%d, v%d, v%d" % (sm, E + 16, E + 17))
    for i in range(2, 16):
        k.e("v_add_f32 v%d, v%d, v%d" % (sp, sp, E + i))
        k.e("v_add_f32 v%d, v%d, v%d" % (sm, sm, E + 16 + i))
    k.e("ds_bpermute_b32 v%d, v%d, v%d" % (t0, vperm, sp))
    k.e("ds_bpermute_b32 v%d, v%d, v%d" % (t1, vperm, sm))
    k.e("s_waitcnt lgkmcnt(0)")
    k.e("v_add_f32 v%d, v%d, v%d" % (sp, sp, t0))
    k.e("v_add_f32 v%d, v%d, v%d" % (sm, sm, t1))
    k.e("v_rcp_f32 v%d, v%d" % (sp, sp))
    k.e("v_rcp_f32 v%d, v%d" % (sm, sm))
    k.nop(0)
    for i in range(8):
        k.e("v_mul_f32 v%d, v%d, v%d" % (E + 2 * i, E + 2 * i, sp))
        k.e("v_mul_f32 v%d, v%d, v%d" % (E + 2 * i + 1, E + 2 * i + 1, sp))
        k.e("v_cvt_pk_bf16_f32 v%d, v%d, v%d" % (ep_ + i, E + 2 * i, E + 2 * i + 1))
        k.e("v_mul_f32 v%d, v%d, v%d" % (E + 16 + 2 * i, E + 16 + 2 * i, sm))
        k.e("v_mul_f32 v%d, v%d, v%d" % (E + 16 + 2 * i + 1, E + 16 + 2 * i + 1, sm))
        k.e("v_cvt_pk_bf16_f32 v%d, v%d, v%d" % (em_ + i, E + 16 + 2 * i, E + 16 + 2 * i + 1))


def emit_wphi_load(k, srd, s_hd, wp, vlane31, vh, t0, tmp=144):
    k.e("v_lshlrev_b32 v%d, 9, v%d" % (t0, vh))
    k.e("v_lshl_add_u32 v%d, v%d, 1, v%d" % (t0, vlane31, t0))
    k.e("s_lshl_b32 s40, s%d, 11" % s_hd)
    for t in range(2):
        for e in range(8):
            k.e("buffer_load_ushort v%d, v%d, %s, s40 offen offset:%d" % (tmp + 8 * t + e, t0, sr(srd, 4), (16 * t + e) * 64))
    k.e("s_waitcnt vmcnt(0)")
    for t in range(2):
        for e in range(0, 8, 2):
            k.e("v_lshl_or_b32 v%d, v%d, 16, v%d" % (wp + 4 * t + e // 2, tmp + 8 * t + e + 1, tmp + 8 * t + e))


def gen_kv():
    k = K("kv_kernel")
    end = k.lab("END")
    k.e("s_cmp_ge_u32 s2, 256")
    k.e("s_cbranch_scc1 %s" % end)
    load_ptr(k, 4, "ws"); load_ptr(k, 6, "w_phi")
    k.e("v_lshrrev_b32 v1, 6, v0")
    k.nop(0)
    k.e("v_readfirstlane_b32 s12, v1")
    k.e("s_waitcnt lgkmcnt(0)")
    make_srd(k, 16, 4, WS_QKV, SZ_QKV)
    make_srd(k, 20, 6, 0, 32 * 32 * 32 * 2)
    make_srd(k, 24, 4, WS_KVP, 256 * KVP_STRIDE)
    k.e("s_and_b32 s13, s2, 31")
    k.e("s_lshr_b32 s14, s2, 5")
    k.e("v_and_b32 v1, 63, v0")
    k.e("v_and_b32 v2, 31, v0")
    k.e("v_bfe_u32 v3, v0, 5, 1")
    k.e("v_xor_b32 v4, 32, v1")
    k.e("v_lshlrev_b32 v4, 2, v4")
    WP = 8
    emit_wphi_load(k, 20, 13, WP, 2, 3, 5)
    k.e("s_mul_i32 s15, s12, 6144")
    k.e("v_lshlrev_b32 v5, 8, v3")
    k.e("v_lshl_add_u32 v5, v2, 1, v5")
    k.e("v_add_u32 v5, s15, v5")
    k.e("v_lshlrev_b32 v6, 6, v2")
    k.e("v_lshl_add_u32 v6, v3, 4, v6")
    k.e("v_add_u32 v6, s15, v6")
    k.e("v_bfe_u32 v7, v0, 2, 2")
    k.e("v_lshl_add_u32 v7, v3, 3, v7")
    k.e("v_lshlrev_b32 v7, 6, v7")
    k.e("v_bfe_u32 v16, v0, 4, 1")
    k.e("v_lshl_add_u32 v7, v16, 5, v7")
    k.e("v_and_b32 v16, 3, v0")
    k.e("v_lshl_add_u32 v7, v16, 3, v7")
    k.e("v_add_u32 v7, s15, v7")
    k.e("v_add_u32 v7, 4096, v7")
    k.e("v_lshlrev_b32 v17, 4, v1")
    k.e("v_add_u32 v17, s15, v17")
    for i in range(4):
        k.e("v_mov_b32 v%d, 0x3f803f80" % (20 + i))
    D2 = [64, 80]
    D3 = [96, 112]
    for i in range(64):
        k.e("v_mov_b32 v%d, 0" % (64 + i))
    D1 = 128
    KF = 24
    VT = 32
    PP, PM = 40, 48
    AF = 56
    BF = 60
    TMP = 144
    for tile in range(2):
        k.e("s_lshl_b32 s30, s14, 8")
        k.e("s_lshl_b32 s31, s12, 6")
        k.e("s_add_u32 s30, s30, s31")
        k.e("s_add_u32 s30, s30, %d" % (tile * 32))
        k.e("s_mul_i32 s31, s30, 6144")
        k.e("s_lshl_b32 s32, s13, 6")
        k.e("s_add_u32 s31, s31, s32")
        k.e("v_mul_u32_u24 v18, 6144, v2")
        k.e("v_lshl_add_u32 v18, v3, 4, v18")
        k.e("s_add_u32 s33, s31, 2048")
        k.e("buffer_load_dwordx4 v[%d:%d], v18, s[16:19], s33 offen" % (KF, KF + 3))
        k.e("buffer_load_dwordx4 v[%d:%d], v18, s[16:19], s33 offen offset:32" % (KF + 4, KF + 7))
        k.e("v_lshrrev_b32 v19, 2, v1")
        k.e("v_mul_u32_u24 v19, 6144, v19")
        k.e("v_and_b32 v16, 3, v1")
        k.e("v_lshl_add_u32 v19, v16, 4, v19")
        k.e("s_add_u32 s33, s31, 4096")
        k.e("buffer_load_dwordx4 v[%d:%d], v19, s[16:19], s33 offen" % (VT, VT + 3))
        k.e("s_add_u32 s33, s33, %d" % (16 * 6144))
        k.e("buffer_load_dwordx4 v[%d:%d], v19, s[16:19], s33 offen" % (VT + 4, VT + 7))
        for i in range(16):
            k.e("v_mov_b32 v%d, 0" % (D1 + i))
        k.e("s_waitcnt vmcnt(0)")
        k.e("ds_write_b128 v17, v[%d:%d] offset:4096" % (VT, VT + 3))
        k.e("ds_write_b128 v17, v[%d:%d] offset:5120" % (VT + 4, VT + 7))
        for t in range(2):
            k.e("v_mfma_f32_32x32x16_bf16 %s, %s, %s, %s" % (vr(D1, 16), vr(WP + 4 * t, 4), vr(KF + 4 * t, 4), vr(D1, 16)))
        k.nop(15); k.nop(3)
        emit_softmax_pm(k, D1, PP, PM, TMP, 4)
        for half, P in ((0, PP), (1, PM)):
            for i in range(8):
                r0 = 2 * i
                f = 8 * (r0 >> 2) + (r0 & 3)
                k.e("ds_write_b16 v5, v%d offset:%d" % (P + i, half * 2048 + f * 64))
                k.e("ds_write_b16_d16_hi v5, v%d offset:%d" % (P + i, half * 2048 + (f + 1) * 64))
        k.e("s_waitcnt lgkmcnt(0)")
        for t in range(2):
            k.e("ds_read_b64_tr_b16 %s, v7 offset:%d" % (vr(BF, 2), (16 * t) * 64))
            k.e("ds_read_b64_tr_b16 %s, v7 offset:%d" % (vr(BF + 2, 2), (16 * t + 4) * 64))
            for ft in range(2):
                k.e("ds_read_b128 %s, v6 offset:%d" % (vr(AF, 4), ft * 2048 + t * 32))
                k.e("s_waitcnt lgkmcnt(0)")
                k.e("v_mfma_f32_32x32x16_bf16 %s, %s, %s, %s" % (vr(D2[ft], 16), vr(AF, 4), vr(BF, 4), vr(D2[ft], 16)))
                k.e("v_mfma_f32_32x32x16_bf16 %s, %s, %s, %s" % (vr(D3[ft], 16), vr(AF, 4), vr(20, 4), vr(D3[ft], 16)))
                k.nop(7)
        k.nop(7)
    k.nop(15); k.nop(3)
    k.e("s_mul_i32 s15, s12, 8448")
    k.e("v_lshlrev_b32 v5, 9, v3")
    k.e("v_lshl_add_u32 v5, v2, 2, v5")
    k.e("v_add_u32 v5, s15, v5")
    k.e("v_add_u32 v5, 24576, v5")
    for ft in range(2):
        for r_ in range(16):
            f = 32 * ft + 8 * (r_ >> 2) + (r_ & 3)
            k.e("ds_write_b32 v5, v%d offset:%d" % (D2[ft] + r_, f * 128))
    k.e("v_lshlrev_b32 v6, 4, v3")
    k.e("v_add_u32 v6, s15, v6")
    k.e("v_add_u32 v6, 24576, v6")
    for ft in range(2):
        for r_ in range(16):
            f = 32 * ft + 8 * (r_ >> 2) + (r_ & 3)
            k.e("ds_write_b32 v6, v%d offset:%d" % (D3[ft] + r_, 8192 + f * 4))
    k.e("s_waitcnt lgkmcnt(0)")
    k.e("s_barrier")
    k.e("s_lshl_b32 s30, s13, 3")
    k.e("s_add_u32 s30, s30, s14")
    k.e("s_mul_i32 s30, s30, %d" % KVP_STRIDE)
    k.e("v_lshlrev_b32 v5, 2, v0")
    for j in range(9):
        if j == 8:
            k.e("v_cmp_gt_u32 vcc, 64, v0")
            k.e("s_and_saveexec_b64 s[42:43], vcc")
        for w in range(4):
            k.e("ds_read_b32 v%d, v5 offset:%d" % (8 + w, 24576 + w * 8448 + j * 1024))
        k.e("s_waitcnt lgkmcnt(0)")
        k.e("v_add_f32 v8, v8, v9")
        k.e("v_add_f32 v10, v10, v11")
        k.e("v_add_f32 v8, v8, v10")
        k.e("s_add_u32 s31, s30, %d" % (j * 1024))
        k.e("buffer_store_dword v8, v5, s[24:27], s31 offen")
    k.L(end)
    k.e("s_endpgm")
    return k, 184, 24576 + 4 * 8448, 256


def gen_attn(nwaves=8):
    k = K("attn_kernel")
    end = k.lab("END")
    k.e("s_cmp_ge_u32 s2, 32")
    k.e("s_cbranch_scc1 %s" % end)
    load_ptr(k, 4, "ws"); load_ptr(k, 6, "w_phi")
    k.e("v_lshrrev_b32 v1, 6, v0")
    k.nop(0)
    k.e("v_readfirstlane_b32 s12, v1")
    k.e("s_waitcnt lgkmcnt(0)")
    make_srd(k, 16, 4, WS_QKV, SZ_QKV)
    make_srd(k, 20, 6, 0, 32 * 32 * 32 * 2)
    make_srd(k, 24, 4, WS_KVP, 256 * KVP_STRIDE)
    make_srd(k, 36, 4, WS_O, SZ_ACT)
    k.e("s_mov_b32 s13, s2")
    k.e("v_and_b32 v1, 63, v0")
    k.e("v_and_b32 v2, 31, v0")
    k.e("v_bfe_u32 v3, v0, 5, 1")
    k.e("v_xor_b32 v4, 32, v1")
    k.e("v_lshlrev_b32 v4, 2, v4")
    WP = 8
    s1done = k.lab("S1D")
    k.e("s_cmp_ge_u32 s12, 4")
    k.e("s_cbranch_scc1 %s" % s1done)
    k.e("s_mul_i32 s30, s13, %d" % (8 * KVP_STRIDE))
    k.e("v_lshlrev_b32 v5, 2, v0")
    k.e("v_lshlrev_b32 v6, 7, v2")
    k.e("v_lshrrev_b32 v7, 5, v0")
    k.e("v_lshl_add_u32 v6, v7, 1, v6")
    for j in range(8):
        for cch in range(8):
            k.e("s_add_u32 s31, s30, %d" % (cch * KVP_STRIDE + j * 1024))
            k.e("buffer_load_dword v%d, v5, s[24:27], s31 offen" % (64 + j * 8 + cch))
    k.e("v_cmp_gt_u32 vcc, 64, v0")
    k.e("s_and_saveexec_b64 s[42:43], vcc")
    for cch in range(8):
        k.e("s_add_u32 s31, s30, %d" % (cch * KVP_STRIDE + 8 * 1024))
        k.e("buffer_load_dword v%d, v5, s[24:27], s31 offen" % (128 + cch))
    k.e("s_mov_b64 exec, s[42:43]")
    k.e("s_waitcnt vmcnt(0)")
    for j in range(9):
        b = 64 + j * 8
        for cch in range(1, 8):
            k.e("v_add_f32 v%d, v%d, v%d" % (b, b, b + cch))
        k.e("v_cvt_pk_bf16_f32 v%d, v%d, v%d" % (b, b, b))
        if j < 8:
            k.e("ds_write_b16 v6, v%d offset:%d" % (b, 16 * j))
    k.e("v_lshlrev_b32 v6, 1, v0")
    k.e("v_add_u32 v6, 4096, v6")
    k.e("s_and_saveexec_b64 s[42:43], vcc")
    k.e("ds_write_b16 v6, v128")
    k.e("s_mov_b64 exec, s[42:43]")
    k.L(s1done)
    emit_wphi_load(k, 20, 13, WP, 2, 3, 5)
    k.e("s_waitcnt lgkmcnt(0)")
    k.e("s_barrier")
    k.e("v_lshlrev_b32 v5, 7, v2")
    k.e("v_lshl_add_u32 v5, v3, 3, v5")
    k.e("v_lshlrev_b32 v6, 3, v3")
    k.e("v_add_u32 v6, 4096, v6")
    QF = 24
    PP, PM = 40, 48
    AF, ZF = 56, 60
    DN, DD = 64, 80
    D1 = 128
    TMP = 144
    QN = 184
    k.e("s_mov_b32 s44, s12")
    k.e("v_mul_u32_u24 v19, 6144, v2")
    k.e("v_lshl_add_u32 v19, v3, 4, v19")
    k.e("s_lshl_b32 s32, s13, 6")
    k.e("s_mul_i32 s45, s44, %d" % (32 * 6144))
    k.e("s_add_u32 s45, s45, s32")
    k.e("buffer_load_dwordx4 v[%d:%d], v19, s[16:19], s45 offen" % (QN, QN + 3))
    k.e("buffer_load_dwordx4 v[%d:%d], v19, s[16:19], s45 offen offset:32" % (QN + 4, QN + 7))
    loop = k.lab("TL")
    k.L(loop)
    k.e("s_lshl_b32 s30, s44, 5")
    k.e("s_waitcnt vmcnt(0)")
    for i in range(8):
        k.e("v_mov_b32 v%d, v%d" % (QF + i, QN + i))
    k.e("s_add_u32 s45, s45, %d" % (nwaves * 32 * 6144))
    k.e("buffer_load_dwordx4 v[%d:%d], v19, s[16:19], s45 offen" % (QN, QN + 3))
    k.e("buffer_load_dwordx4 v[%d:%d], v19, s[16:19], s45 offen offset:32" % (QN + 4, QN + 7))
    for i in range(16):
        k.e("v_mov_b32 v%d, 0" % (D1 + i))
    for i in range(32):
        k.e("v_mov_b32 v%d, 0" % (DN + i))
    for t in range(2):
        k.e("v_mfma_f32_32x32x16_bf16 %s, %s, %s, %s" % (vr(D1, 16), vr(WP + 4 * t, 4), vr(QF + 4 * t, 4), vr(D1, 16)))
    k.nop(15); k.nop(3)
    emit_softmax_pm(k, D1, PP, PM, TMP, 4)
    for tt in range(4):
        B = (PP if tt < 2 else PM) + 4 * (tt & 1)
        k.e("ds_read_b64 %s, v5 offset:%d" % (vr(AF, 2), tt * 32))
        k.e("ds_read_b64 %s, v5 offset:%d" % (vr(AF + 2, 2), tt * 32 + 16))
        k.e("ds_read_b64 %s, v6 offset:%d" % (vr(ZF, 2), tt * 32))
        k.e("ds_read_b64 %s, v6 offset:%d" % (vr(ZF + 2, 2), tt * 32 + 16))
        k.e("s_waitcnt lgkmcnt(0)")
        k.e("v_mfma_f32_32x32x16_bf16 %s, %s, %s, %s" % (vr(DN, 16), vr(AF, 4), vr(B, 4), vr(DN, 16)))
        k.e("v_mfma_f32_32x32x16_bf16 %s, %s, %s, %s" % (vr(DD, 16), vr(ZF, 4), vr(B, 4), vr(DD, 16)))
        k.nop(7)
    k.nop(15); k.nop(3)
    rnd_bf16(k, DD)
    k.e("v_add_f32 v%d, 0x358637bd, v%d" % (DD, DD))
    rnd_bf16(k, DD)
    k.e("v_rcp_f32 v%d, v%d" % (DD + 1, DD))
    k.nop(0)
    k.e("v_lshlrev_b32 v18, 11, v2")
    k.e("v_lshl_add_u32 v18, v3, 3, v18")
    k.e("s_lshl_b32 s31, s30, 11")
    k.e("s_add_u32 s31, s31, s32")
    for q in range(4):
        for i in range(4):
            x = DN + 4 * q + i
            rnd_bf16(k, x)
            k.e("v_mul_f32 v16, v%d, v%d" % (x, DD + 1))
            k.e("v_fma_f32 v17, -v16, v%d, v%d" % (DD, x))
            k.e("v_fma_f32 v%d, v17, v%d, v16" % (x, DD + 1))
        k.e("v_cvt_pk_bf16_f32 v16, v%d, v%d" % (DN + 4 * q, DN + 4 * q + 1))
        k.e("v_cvt_pk_bf16_f32 v17, v%d, v%d" % (DN + 4 * q + 2, DN + 4 * q + 3))
        k.e("buffer_store_dwordx2 v[16:17], v18, s[36:39], s31 offen offset:%d" % (q * 16))
        k.nop(1)
    k.e("s_add_u32 s44, s44, %d" % nwaves)
    k.e("s_cmp_lt_u32 s44, 64")
    k.e("s_cbranch_scc1 %s" % loop)
    k.L(end)
    k.e("s_endpgm")
    return k, 192, 8192, 64 * nwaves


def gemm4_wrap():
    r = gen_gemm4()
    return r


def merge(name, g1, n1, g2):
    r1 = g1(); r2 = g2()
    k = K(name)
    l2 = k.lab("BODY2")
    k.e("s_cmp_ge_u32 s2, %d" % n1)
    k.e("s_cbranch_scc1 %s" % l2)
    k.lines += r1[0].lines
    k.L(l2)
    k.e("s_sub_u32 s2, s2, %d" % n1)
    k.lines += r2[0].lines
    lds = max(r1[2] if len(r1) > 2 else 0, r2[2] if len(r2) > 2 else 0)
    b1 = r1[3] if len(r1) > 3 else 256
    b2 = r2[3] if len(r2) > 3 else 256
    assert b1 == b2, (b1, b2)
    return k, max(r1[1], r2[1]), lds, b1


HEADER = open("gated_mix__linear_kernel_hedgehog__mixer_s_mlp__prompt.s.ref").read().split("; Override launch")[0]


def main(out):
    kernels = []
    launches = []

    def add(gen, grid, block=None, lds=None):
        res = gen()
        k, v = res[0], res[1]
        l = res[2] if len(res) > 2 else 0
        b = res[3] if len(res) > 3 else 256
        kernels.append((k, v))
        launches.append("; @launch kernel=%s grid=(%d,1,1) block=(%d,1,1) lds=%d" % (k.name, grid, b, l))

    add(gen_prep, 1024)
    add(gen_gemm1, 256)
    add(lambda: merge("g2kv_kernel", gen_gemm2, 256, gen_kv), 512)
    add(gen_ln1, 512)
    add(lambda: merge("g4at_kernel", gen_gemm4, 224, gen_attn), 256)
    add(gen_gemm5, 256)
    txt = [HEADER.rstrip("\n")] + launches + ['.amdgcn_target "amdgcn-amd-amdhsa--gfx950"', ".text"]
    for k, v in kernels:
        txt += k.text(v)
    txt += ['.section .rodata,"a"', ".p2align 6"]
    for k, v in kernels:
        txt += desc(k.name, v)
        txt += [".p2align 6"]
    open(out, "w").write("\n".join(txt) + "\n")


if __name__ == "__main__":
    main(sys.argv[1] if len(sys.argv) > 1 else "gated_mix__linear_kernel_hedgehog__mixer_s_mlp__prompt.s")
```

```python
import sys, re

import os
DBG = set(os.environ.get('GENDBG', '').split(','))
MB = 1 << 20
WS_LNX = 0
WS_QKV = 4 * MB
WS_H = 16 * MB
WS_X1 = 20 * MB
WS_LNX1 = 24 * MB
WS_H3 = 28 * MB
WS_O = 44 * MB
WS_KVP = 48 * MB
WS_G = 52 * MB
WS_FLAG = 53 * MB
WS_PART = 56 * MB

KA = dict(A_x=0, wqkv=8, w_phi=16, wo=24, B_x=32, w1=40, w2=48, w3=56, w4=64, gate_w=72, out=80, dbg=88, ws=96)
SZ_ACT = 2048 * 1024 * 2
SZ_QKV = 2048 * 3072 * 2
SZ_H3 = 2048 * 3584 * 2
KVP_STRIDE = (64 * 32 + 64) * 4


class K:
    def __init__(self, name):
        self.name = name
        self.lines = []
        self.nlab = 0
        self.max_v = 0
        self.max_s = 0

    def e(self, s):
        if s.startswith("buffer_"):
            m = re.search(r"offset:(\d+)", s)
            assert not m or int(m.group(1)) < 4096, s
        if s.startswith("ds_"):
            m = re.search(r"offset:(\d+)", s)
            assert not m or int(m.group(1)) < 65536, s
        self.lines.append("    " + s)

    def c(self, s):
        self.lines.append("    ; " + s)

    def lab(self, base="L"):
        self.nlab += 1
        return "%s_%s_%d" % (base, self.name, self.nlab)

    def L(self, l):
        self.lines.append(l + ":")

    def nop(self, n=0):
        self.e("s_nop %d" % n)

    def text(self, vgprs, sgprs=102, lds=0):
        v = (vgprs + 7) // 8 * 8
        acc = (vgprs + 3) // 4 * 4
        hdr = [
            ".globl %s" % self.name,
            ".p2align 8",
            ".type %s,@function" % self.name,
            "%s:" % self.name,
        ]
        return hdr + self.lines


def desc(name, vgprs, sgprs=104):
    v = (vgprs + 7) // 8 * 8
    return [
        ".amdhsa_kernel %s" % name,
        "  .amdhsa_next_free_vgpr %d" % v,
        "  .amdhsa_next_free_sgpr %d" % min(sgprs, 102),
        "  .amdhsa_accum_offset %d" % v,
        "  .amdhsa_group_segment_fixed_size 0",
        "  .amdhsa_kernarg_size 104",
        "  .amdhsa_user_sgpr_count 2",
        "  .amdhsa_user_sgpr_kernarg_segment_ptr 1",
        "  .amdhsa_system_sgpr_workgroup_id_x 1",
        ".end_amdhsa_kernel",
    ]


def vr(a, n=1):
    return "v%d" % a if n == 1 else "v[%d:%d]" % (a, a + n - 1)


def sr(a, n=1):
    return "s%d" % a if n == 1 else "s[%d:%d]" % (a, a + n - 1)


def load_ptr(k, dst, key):
    k.e("s_load_dwordx2 %s, s[0:1], %d" % (sr(dst, 2), KA[key]))


def make_srd(k, dst, ptr, off, size):
    k.e("s_add_u32 s%d, s%d, 0x%x" % (dst, ptr, off))
    k.e("s_addc_u32 s%d, s%d, 0" % (dst + 1, ptr + 1))
    k.e("s_mov_b32 s%d, 0x%x" % (dst + 2, size))
    k.e("s_mov_b32 s%d, 0x00020000" % (dst + 3))


LOG2E = 0x3FB8AA3B


def rnd_bf16(k, v, tmp=None):
    k.e("v_cvt_pk_bf16_f32 %s, %s, %s" % (vr(v), vr(v), vr(v)))
    k.e("v_lshlrev_b32 %s, 16, %s" % (vr(v), vr(v)))


def wave_reduce(k, v, vaddr, vtmp, op="v_add_f32"):
    for m in (1, 2, 4, 8, 16, 32):
        k.e("v_xor_b32 %s, %d, %s" % (vr(vtmp), m * 4, vr(vaddr)))
        k.e("ds_bpermute_b32 %s, %s, %s" % (vr(vtmp), vr(vtmp), vr(v)))
        k.e("s_waitcnt lgkmcnt(0)")
        k.e("%s %s, %s, %s" % (op, vr(v), vr(v), vr(vtmp)))


def emit_ln(k, s_row, srd_in, srd_out):
    k.e("v_and_b32 v1, 63, v0")
    k.e("v_lshlrev_b32 v2, 4, v1")
    k.e("s_lshl_b32 s40, s%d, 11" % s_row)
    k.e("v_add_u32 v2, s40, v2")
    k.e("buffer_load_dwordx4 v[8:11], v2, %s, 0 offen" % sr(srd_in, 4))
    k.e("buffer_load_dwordx4 v[12:15], v2, %s, 0 offen offset:1024" % sr(srd_in, 4))
    k.e("v_lshlrev_b32 v3, 2, v1")
    k.e("s_waitcnt vmcnt(0)")
    for i in range(8):
        k.e("v_lshlrev_b32 v%d, 16, v%d" % (16 + 2 * i, 8 + i))
        k.e("v_and_b32 v%d, 0xffff0000, v%d" % (17 + 2 * i, 8 + i))
    k.e("v_add_f32 v4, v16, v17")
    for i in range(2, 16):
        k.e("v_add_f32 v4, v4, v%d" % (16 + i))
    wave_reduce(k, 4, 3, 5)
    k.e("v_mul_f32 v4, 0x3a800000, v4")
    k.e("v_sub_f32 v5, v16, v4")
    k.e("v_mul_f32 v6, v5, v5")
    for i in range(1, 16):
        k.e("v_sub_f32 v5, v%d, v4" % (16 + i))
        k.e("v_fmac_f32 v6, v5, v5")
    wave_reduce(k, 6, 3, 5)
    k.e("v_mul_f32 v6, 0x3a800000, v6")
    rnd_bf16(k, 4)
    rnd_bf16(k, 6)
    k.e("v_add_f32 v6, 0x3727c5ac, v6")
    rnd_bf16(k, 6)
    k.e("v_sqrt_f32 v6, v6")
    k.nop(0)
    rnd_bf16(k, 6)
    k.e("v_rcp_f32 v7, v6")
    k.nop(0)
    for i in range(16):
        x = 16 + i
        k.e("v_sub_f32 v%d, v%d, v4" % (x, x))
        rnd_bf16(k, x)
        k.e("v_mul_f32 v5, v%d, v7" % x)
        k.e("v_fma_f32 v32, -v5, v6, v%d" % x)
        k.e("v_fma_f32 v%d, v32, v7, v5" % x)
    for i in range(8):
        k.e("v_cvt_pk_bf16_f32 v%d, v%d, v%d" % (8 + i, 16 + 2 * i, 17 + 2 * i))
    k.e("buffer_store_dwordx4 v[8:11], v2, %s, 0 offen" % sr(srd_out, 4))
    k.e("buffer_store_dwordx4 v[12:15], v2, %s, 0 offen offset:1024" % sr(srd_out, 4))


def gen_prep():
    k = K("prep_kernel")
    k.e("s_cmp_ge_u32 s2, 1024")
    end = k.lab("END")
    k.e("s_cbranch_scc1 %s" % end)
    load_ptr(k, 4, "A_x")
    load_ptr(k, 6, "ws")
    load_ptr(k, 8, "A_x")
    load_ptr(k, 10, "gate_w")
    k.e("v_lshrrev_b32 v1, 6, v0")
    k.nop(0)
    k.e("v_readfirstlane_b32 s12, v1")
    load_ptr(k, 44, "wqkv"); load_ptr(k, 46, "w1")
    k.e("s_waitcnt lgkmcnt(0)")
    npf = k.lab("NOPF")
    k.e("s_cmp_lg_u32 s12, 0")
    k.e("s_cbranch_scc1 %s" % npf)
    make_srd(k, 32, 44, 0, 1024 * 3072 * 2)
    make_srd(k, 36, 46, 0, 1024 * 1024 * 2)
    k.e("v_lshlrev_b32 v2, 7, v0")
    k.e("v_mov_b32 v3, 0x7ffffff0")
    k.e("v_cmp_gt_u32 vcc, 48, v0")
    k.e("v_cndmask_b32 v2, v3, v2, vcc")
    k.e("s_mul_i32 s40, s2, %d" % (48 * 128))
    k.e("buffer_load_dword v47, v2, s[32:35], s40 offen")
    k.e("v_lshlrev_b32 v2, 7, v0")
    k.e("v_cmp_gt_u32 vcc, 16, v0")
    k.e("v_cndmask_b32 v2, v3, v2, vcc")
    k.e("s_lshl_b32 s40, s2, 11")
    k.e("buffer_load_dword v47, v2, s[36:39], s40 offen")
    k.L(npf)
    nz = k.lab("NOZERO")
    k.e("s_cmp_lg_u32 s2, 0")
    k.e("s_cbranch_scc1 %s" % nz)
    make_srd(k, 28, 6, WS_FLAG, 1024)
    k.e("v_lshlrev_b32 v1, 2, v0")
    k.e("v_mov_b32 v2, 0")
    k.e("buffer_store_dword v2, v1, s[28:31], 0 offen")
    k.L(nz)
    gate = k.lab("GATE")
    k.e("s_cmp_ge_u32 s2, 512")
    k.e("s_cbranch_scc1 %s" % gate)
    k.e("s_lshl_b32 s13, s2, 2")
    k.e("s_add_u32 s13, s13, s12")
    make_srd(k, 16, 4, 0, SZ_ACT)
    make_srd(k, 20, 6, WS_LNX, SZ_ACT)
    emit_ln(k, 13, 16, 20)
    k.e("s_endpgm")
    k.L(gate)
    k.e("s_sub_u32 s13, s2, 512")
    k.e("s_lshl_b32 s13, s13, 2")
    k.e("s_add_u32 s13, s13, s12")
    make_srd(k, 16, 8, 0, SZ_ACT)
    make_srd(k, 20, 10, 0, 2048)
    make_srd(k, 24, 6, WS_G, 2048 * 4)
    k.e("v_and_b32 v1, 63, v0")
    k.e("v_lshlrev_b32 v2, 4, v1")
    k.e("s_lshl_b32 s40, s13, 11")
    k.e("v_add_u32 v3, s40, v2")
    k.e("buffer_load_dwordx4 v[8:11], v3, s[16:19], 0 offen")
    k.e("buffer_load_dwordx4 v[12:15], v3, s[16:19], 0 offen offset:1024")
    k.e("buffer_load_dwordx4 v[32:35], v2, s[20:23], 0 offen")
    k.e("buffer_load_dwordx4 v[36:39], v2, s[20:23], 0 offen offset:1024")
    k.e("v_lshlrev_b32 v3, 2, v1")
    k.e("s_waitcnt vmcnt(0)")
    for i in range(8):
        k.e("v_lshlrev_b32 v%d, 16, v%d" % (16 + 2 * i, 8 + i))
        k.e("v_and_b32 v%d, 0xffff0000, v%d" % (17 + 2 * i, 8 + i))
        k.e("v_lshlrev_b32 v4, 16, v%d" % (32 + i))
        k.e("v_and_b32 v5, 0xffff0000, v%d" % (32 + i))
        k.e("v_mul_f32 v%d, v%d, v4" % (16 + 2 * i, 16 + 2 * i))
        k.e("v_mul_f32 v%d, v%d, v5" % (17 + 2 * i, 17 + 2 * i))
        k.e("v_cvt_pk_bf16_f32 v4, v%d, v%d" % (16 + 2 * i, 17 + 2 * i))
        k.e("v_lshlrev_b32 v%d, 16, v4" % (16 + 2 * i))
        k.e("v_and_b32 v%d, 0xffff0000, v4" % (17 + 2 * i))
    k.e("v_add_f32 v4, v16, v17")
    for i in range(2, 16):
        k.e("v_add_f32 v4, v4, v%d" % (16 + i))
    wave_reduce(k, 4, 3, 5)
    rnd_bf16(k, 4)
    k.e("v_mul_f32 v4, 0xbfb8aa3b, v4")
    k.e("v_exp_f32 v4, v4")
    k.nop(0)
    k.e("v_add_f32 v4, 1.0, v4")
    k.e("v_rcp_f32 v4, v4")
    k.nop(0)
    rnd_bf16(k, 4)
    k.e("v_cmp_eq_u32 vcc, 0, v1")
    k.e("s_and_saveexec_b64 s[42:43], vcc")
    k.e("s_lshl_b32 s40, s13, 2")
    k.e("v_mov_b32 v5, s40")
    k.e("buffer_store_dword v4, v5, s[24:27], 0 offen")
    k.L(end)
    k.e("s_endpgm")
    return k, 48


def gen_ln1():
    k = K("ln1_kernel")
    end = k.lab("END")
    k.e("s_cmp_ge_u32 s2, 512")
    k.e("s_cbranch_scc1 %s" % end)
    load_ptr(k, 6, "ws")
    k.e("v_lshrrev_b32 v1, 6, v0")
    k.nop(0)
    k.e("v_readfirstlane_b32 s12, v1")
    k.e("s_waitcnt lgkmcnt(0)")
    k.e("s_lshl_b32 s13, s2, 2")
    k.e("s_add_u32 s13, s13, s12")
    make_srd(k, 16, 6, WS_X1, SZ_ACT)
    make_srd(k, 20, 6, WS_LNX1, SZ_ACT)
    emit_ln(k, 13, 16, 20)
    k.L(end)
    k.e("s_endpgm")
    return k, 48


class GemmCfg:
    def __init__(self, WM, WN, TM, TN, NS=3):
        self.WM, self.WN, self.TM, self.TN, self.NS = WM, WN, TM, TN, NS
        self.BM = WM * TM * 32
        self.BN = WN * TN * 32
        self.NW = WM * WN
        self.XB = self.BM * 128
        self.RB = self.BN * 2
        self.WB = 64 * self.RB
        self.STAGE = self.XB + self.WB
        self.XI = self.XB // 1024 // self.NW
        self.WI = self.WB // 1024 // self.NW
        assert self.XI * 1024 * self.NW == self.XB and self.WI * 1024 * self.NW == self.WB
        self.PF = 0
        self.D = self.XI + self.WI
        self.R = TM + 2 * TN
        self.LDS = self.STAGE * NS


S_SRDX, S_SRDW, S_SRDC, S_SRDR, S_SRDG = 4, 8, 12, 16, 20
S_LDX, S_LDW, S_LDC, S_NK, S_M0, S_N0, S_WAVE, S_KT = 24, 25, 26, 27, 28, 29, 30, 31
S_KX, S_KW, S_CUR, S_OLD, S_DMX, S_DMW, S_T0, S_T1 = 32, 33, 34, 35, 36, 37, 38, 39
S_SHIFT, S_FLAG, S_T2, S_T3 = 40, 41, 42, 43


class GemmRegs:
    def __init__(self, cfg, shifted=False):
        c = cfg
        self.vt = list(range(1, 8))
        p = 8
        self.vpf = p; p += 2
        self.vxa = list(range(p, p + 4)); p += 4
        self.vwa = list(range(p, p + c.TN)); p += c.TN
        self.vxo = list(range(p, p + c.XI)); p += c.XI
        self.vwo = list(range(p, p + c.WI)); p += c.WI
        self.vxs = list(range(p, p + c.XI)) if shifted else None
        if shifted:
            p += c.XI
        p = (p + 3) // 4 * 4
        self.F = []
        for s in range(2):
            X = [p + 4 * i for i in range(c.TM)]; p += 4 * c.TM
            W = [p + 4 * i for i in range(c.TN)]; p += 4 * c.TN
            self.F.append((X, W))
        p = (p + 15) // 16 * 16
        self.acc = {}
        for tn in range(c.TN):
            for tm in range(c.TM):
                self.acc[(tn, tm)] = p; p += 16
        self.acc_base = self.acc[(0, 0)]
        self.nacc = 16 * c.TM * c.TN
        self.save = p
        self.end = p
        self.ep = None


def gemm_lane_setup(k, c, r):
    t0, t1, t2, t3 = r.vt[0:4]
    k.c("lane setup")
    k.e("v_and_b32 v%d, 63, v0" % t0)
    k.e("v_lshrrev_b32 v%d, 3, v%d" % (t1, t0))
    k.e("s_mul_i32 s%d, s%d, %d" % (S_T0, S_WAVE, c.XI * 8))
    k.e("v_add_u32 v%d, s%d, v%d" % (t1, S_T0, t1))
    k.e("v_mul_lo_u32 v%d, v%d, s%d" % (t1, t1, S_LDX))
    k.e("v_and_b32 v%d, 7, v%d" % (t2, t0))
    k.e("v_lshrrev_b32 v%d, 4, v%d" % (t3, t0))
    k.e("v_xor_b32 v%d, v%d, v%d" % (t2, t2, t3))
    for i in range(c.XI):
        k.e("s_mul_i32 s%d, s%d, %d" % (S_T0, S_WAVE, c.XI))
        k.e("s_add_u32 s%d, s%d, %d" % (S_T0, S_T0, i))
        k.e("s_and_b32 s%d, s%d, 1" % (S_T0, S_T0))
        k.e("s_lshl_b32 s%d, s%d, 2" % (S_T0, S_T0))
        k.e("v_xor_b32 v%d, s%d, v%d" % (t3, S_T0, t2))
        k.e("v_lshl_add_u32 v%d, v%d, 4, v%d" % (r.vxo[i], t3, t1))
        if i + 1 < c.XI:
            k.e("s_lshl_b32 s%d, s%d, 3" % (S_T0, S_LDX))
            k.e("v_add_u32 v%d, s%d, v%d" % (t1, S_T0, t1))
    if c.RB == 256:
        k.e("v_lshrrev_b32 v%d, 4, v%d" % (t1, t0))
        k.e("s_mul_i32 s%d, s%d, %d" % (S_T0, S_WAVE, c.WI * 4))
        k.e("v_add_u32 v%d, s%d, v%d" % (t2, S_T0, t1))
        k.e("v_mul_lo_u32 v%d, v%d, s%d" % (t2, t2, S_LDW))
        k.e("v_lshlrev_b32 v%d, 2, v%d" % (t1, t1))
        k.e("v_and_b32 v%d, 15, v%d" % (t3, t0))
        k.e("v_xor_b32 v%d, v%d, v%d" % (t3, t3, t1))
        for j in range(c.WI):
            k.e("v_lshl_add_u32 v%d, v%d, 4, v%d" % (r.vwo[j], t3, t2))
            if j + 1 < c.WI:
                k.e("s_lshl_b32 s%d, s%d, 2" % (S_T0, S_LDW))
                k.e("v_add_u32 v%d, s%d, v%d" % (t2, S_T0, t2))
    elif c.RB == 128:
        k.e("v_lshrrev_b32 v%d, 3, v%d" % (t1, t0))
        k.e("s_mul_i32 s%d, s%d, %d" % (S_T0, S_WAVE, c.WI * 8))
        k.e("v_add_u32 v%d, s%d, v%d" % (t2, S_T0, t1))
        k.e("v_mul_lo_u32 v%d, v%d, s%d" % (t2, t2, S_LDW))
        k.e("v_lshrrev_b32 v%d, 4, v%d" % (t1, t0))
        k.e("v_and_b32 v%d, 1, v%d" % (t1, t1))
        k.e("v_lshlrev_b32 v%d, 2, v%d" % (t1, t1))
        k.e("v_and_b32 v%d, 7, v%d" % (t3, t0))
        k.e("v_xor_b32 v%d, v%d, v%d" % (t3, t3, t1))
        for j in range(c.WI):
            k.e("v_lshl_add_u32 v%d, v%d, 4, v%d" % (r.vwo[j], t3, t2))
            if j + 1 < c.WI:
                k.e("s_lshl_b32 s%d, s%d, 3" % (S_T0, S_LDW))
                k.e("v_add_u32 v%d, s%d, v%d" % (t2, S_T0, t2))
    else:
        raise ValueError("RB")
    k.e("s_and_b32 s%d, s%d, %d" % (S_T2, S_WAVE, c.WM - 1))
    k.e("s_lshr_b32 s%d, s%d, %d" % (S_T3, S_WAVE, c.WM.bit_length() - 1))
    k.e("v_and_b32 v%d, 31, v%d" % (t1, t0))
    k.e("s_mul_i32 s%d, s%d, %d" % (S_T0, S_T2, c.TM * 32))
    k.e("v_add_u32 v%d, s%d, v%d" % (t1, S_T0, t1))
    k.e("v_lshlrev_b32 v%d, 7, v%d" % (t1, t1))
    k.e("v_lshrrev_b32 v%d, 5, v%d" % (t2, t0))
    k.e("v_bfe_u32 v%d, v%d, 1, 3" % (t3, t0))
    k.e("v_xor_b32 v%d, v%d, v%d" % (t2, t2, t3))
    for t in range(4):
        k.e("v_xor_b32 v%d, %d, v%d" % (t3, 2 * t, t2))
        k.e("v_lshl_add_u32 v%d, v%d, 4, v%d" % (r.vxa[t], t3, t1))
    k.e("v_bfe_u32 v%d, v%d, 2, 2" % (t1, t0))
    k.e("v_lshrrev_b32 v%d, 5, v%d" % (t2, t0))
    k.e("v_lshl_add_u32 v%d, v%d, 3, v%d" % (t2, t2, t1))
    k.e("v_mul_u32_u24 v%d, %d, v%d" % (t2, c.RB, t2))
    k.e("v_bfe_u32 v%d, v%d, 4, 1" % (t3, t0))
    k.e("v_lshl_add_u32 v%d, v%d, 5, v%d" % (t2, t3, t2))
    k.e("v_and_b32 v%d, 3, v%d" % (t3, t0))
    k.e("v_lshl_add_u32 v%d, v%d, 3, v%d" % (t2, t3, t2))
    k.e("v_add_u32 v%d, %d, v%d" % (t2, c.XB, t2))
    if c.RB == 128:
        k.e("v_lshrrev_b32 v%d, 1, v%d" % (t1, t1))
    for tn in range(c.TN):
        k.e("s_mul_i32 s%d, s%d, %d" % (S_T0, S_T3, c.TN))
        k.e("s_add_u32 s%d, s%d, %d" % (S_T0, S_T0, tn))
        k.e("v_xor_b32 v%d, s%d, v%d" % (t3, S_T0, t1))
        k.e("v_lshl_add_u32 v%d, v%d, 6, v%d" % (r.vwa[tn], t3, t2))
    k.e("s_mul_i32 s%d, s%d, %d" % (S_DMX, S_WAVE, c.XI * 1024))
    k.e("s_mul_i32 s%d, s%d, %d" % (S_DMW, S_WAVE, c.WI * 1024))
    k.e("s_add_u32 s%d, s%d, %d" % (S_DMW, S_DMW, c.XB))


def gemm_dma(k, c, r, s_stage, shifted):
    if 'nodma' in DBG:
        return
    xo = r.vxs if shifted else r.vxo
    k.e("s_add_u32 m0, s%d, s%d" % (s_stage, S_DMX))
    for i in range(c.XI):
        if i:
            k.e("s_add_u32 m0, m0, 1024")
        k.nop(0)
        k.e("buffer_load_dwordx4 v%d, %s, s%d offen lds" % (xo[i], sr(S_SRDX, 4), S_KX))
    k.e("s_add_u32 m0, s%d, s%d" % (s_stage, S_DMW))
    for j in range(c.WI):
        if j:
            k.e("s_add_u32 m0, m0, 1024")
        k.nop(0)
        k.e("buffer_load_dwordx4 v%d, %s, s%d offen lds" % (r.vwo[j], sr(S_SRDW, 4), S_KW))
    for p in range(c.PF):
        k.e("buffer_load_dword v%d, v%d, %s, s72 offen" % (r.vpf + 1, r.vpf, sr(64 + 4 * p, 4)))
    if c.PF:
        k.e("s_add_u32 s72, s72, %d" % (256 if c.NW == 8 else 512))


def gemm_shift_update(k, c, r, s_kidx):
    k.e("s_lshr_b32 s%d, s%d, 2" % (S_T0, s_kidx))
    k.e("s_and_b32 s%d, s%d, 1" % (S_T1, S_T0))
    k.e("s_lshr_b32 s%d, s%d, 1" % (S_T0, S_T0))
    k.e("s_lshl_b32 s%d, 2048, s%d" % (S_SHIFT, S_T0))
    k.e("s_sub_u32 s%d, 0, s%d" % (S_T0, S_SHIFT))
    k.e("s_cmp_eq_u32 s%d, 1" % S_T1)
    k.e("s_cselect_b32 s%d, s%d, s%d" % (S_SHIFT, S_SHIFT, S_T0))
    k.e("s_lshl_b32 s%d, s%d, 11" % (S_T0, S_M0))
    k.e("s_add_u32 s%d, s%d, s%d" % (S_SHIFT, S_SHIFT, S_T0))
    for i in range(c.XI):
        k.e("v_add_u32 v%d, s%d, v%d" % (r.vxs[i], S_SHIFT, r.vxo[i]))


def gemm_reads(k, c, r, t, fs):
    if 'noreads' in DBG:
        return
    X, W = r.F[fs]
    for tm in range(c.TM):
        k.e("ds_read_b128 %s, v%d offset:%d" % (vr(X[tm], 4), r.vxa[t], tm * 4096))
    for tn in range(c.TN):
        for u in range(2):
            k.e("ds_read_b64_tr_b16 %s, v%d offset:%d" % (vr(W[tn] + 2 * u, 2), r.vwa[tn], (16 * t + 4 * u) * c.RB))


def gemm_mfma(k, c, r, fs, accmap=None):
    if 'nomfma' in DBG:
        return
    X, W = r.F[fs]
    for tn in range(c.TN):
        for tm in range(c.TM):
            a = r.acc[(tn, tm)]
            k.e("v_mfma_f32_32x32x16_bf16 %s, %s, %s, %s" % (vr(a, 16), vr(W[tn], 4), vr(X[tm], 4), vr(a, 16)))


def gemm_kloop(k, c, r, shifted=False):
    D, R, NS = c.D, c.R, c.NS
    k.c("K loop prologue")
    k.e("s_mov_b32 s%d, 0" % S_CUR)
    k.e("s_lshl_b32 s%d, s%d, 6" % (S_T2, S_LDW))
    for i in range(r.nacc):
        k.e("v_mov_b32 v%d, 0" % (r.acc_base + i))
    k.e("s_mov_b32 s%d, 0" % S_KT)
    for s in range(NS):
        if shifted:
            gemm_shift_update(k, c, r, S_KT)
        k.e("s_mov_b32 s%d, %d" % (S_OLD, s * c.STAGE))
        gemm_dma(k, c, r, S_OLD, shifted)
        k.e("s_add_u32 s%d, s%d, 128" % (S_KX, S_KX))
        k.e("s_add_u32 s%d, s%d, s%d" % (S_KW, S_KW, S_T2))
        k.e("s_add_u32 s%d, s%d, 1" % (S_KT, S_KT))
    k.e("s_waitcnt vmcnt(%d)" % ((NS - 1) * D))
    k.e("s_barrier")
    gemm_reads(k, c, r, 0, 0)
    k.e("s_mov_b32 s%d, 0" % S_T3)
    loop = k.lab("KLOOP")
    last = k.lab("KLAST")
    nod = k.lab("NODMA")
    w0 = k.lab("W0")
    w1 = k.lab("W1")
    done = k.lab("KDONE")
    k.L(loop)
    for t in range(3):
        gemm_reads(k, c, r, t + 1, (t + 1) & 1)
        k.e("s_waitcnt lgkmcnt(%d)" % R)
        gemm_mfma(k, c, r, t & 1)
    k.e("s_add_u32 s%d, s%d, 1" % (S_T3, S_T3))
    k.e("s_cmp_ge_u32 s%d, s%d" % (S_T3, S_NK))
    k.e("s_cbranch_scc1 %s" % last)
    k.e("s_add_u32 s%d, s%d, %d" % (S_T0, S_T3, NS - 1))
    k.e("s_cmp_eq_u32 s%d, s%d" % (S_T0, S_KT))
    k.e("s_cbranch_scc1 %s" % w0)
    k.e("s_waitcnt vmcnt(0) lgkmcnt(0)")
    k.e("s_branch %s" % w1)
    k.L(w0)
    k.e("s_waitcnt vmcnt(%d) lgkmcnt(0)" % ((NS - 2) * D))
    k.L(w1)
    k.e("s_barrier")
    k.e("s_mov_b32 s%d, s%d" % (S_OLD, S_CUR))
    k.e("s_add_u32 s%d, s%d, %d" % (S_CUR, S_CUR, c.STAGE))
    k.e("s_cmp_eq_u32 s%d, %d" % (S_CUR, c.STAGE * NS))
    k.e("s_cselect_b32 s%d, 0, s%d" % (S_CUR, S_CUR))
    k.e("s_sub_u32 s%d, s%d, s%d" % (S_T0, S_CUR, S_OLD))
    for v in r.vxa + r.vwa:
        k.e("v_add_u32 v%d, s%d, v%d" % (v, S_T0, v))
    gemm_reads(k, c, r, 0, 0)
    k.e("s_cmp_ge_u32 s%d, s%d" % (S_KT, S_NK))
    k.e("s_cbranch_scc1 %s" % nod)
    if shifted:
        gemm_shift_update(k, c, r, S_KT)
    gemm_dma(k, c, r, S_OLD, shifted)
    k.e("s_add_u32 s%d, s%d, 128" % (S_KX, S_KX))
    k.e("s_add_u32 s%d, s%d, s%d" % (S_KW, S_KW, S_T2))
    k.e("s_add_u32 s%d, s%d, 1" % (S_KT, S_KT))
    k.L(nod)
    gemm_mfma(k, c, r, 1)
    k.e("s_branch %s" % loop)
    k.L(last)
    k.e("s_waitcnt lgkmcnt(0)")
    gemm_mfma(k, c, r, 1)
    k.L(done)
    k.e("s_sub_u32 s%d, 0, s%d" % (S_T0, S_CUR))
    for v in r.vxa + r.vwa:
        k.e("v_add_u32 v%d, s%d, v%d" % (v, S_T0, v))


def emit_gelu(k, x, t0, t1):
    k.e("v_mul_f32 v%d, v%d, v%d" % (t0, x, x))
    k.e("v_mov_b32 v%d, 0x3d372713" % t1)
    k.e("v_fma_f32 v%d, v%d, v%d, 1.0" % (t0, t0, t1))
    k.e("v_mul_f32 v%d, v%d, v%d" % (t0, t0, x))
    k.e("v_mul_f32 v%d, 0xc0135761, v%d" % (t0, t0))
    k.e("v_exp_f32 v%d, v%d" % (t0, t0))
    k.nop(0)
    k.e("v_add_f32 v%d, 1.0, v%d" % (t0, t0))
    k.e("v_rcp_f32 v%d, v%d" % (t0, t0))
    k.nop(0)
    k.e("v_mul_f32 v%d, v%d, v%d" % (x, x, t0))


def gemm_epilogue(k, c, r, mode):
    t0, t1, t2, t3, t4, t5, t6 = r.vt
    if 'noepi' in DBG:
        return
    k.c("epilogue " + mode)
    k.nop(15)
    k.nop(7)
    k.e("s_and_b32 s%d, s%d, %d" % (S_T2, S_WAVE, c.WM - 1))
    k.e("s_lshr_b32 s%d, s%d, %d" % (S_T3, S_WAVE, c.WM.bit_length() - 1))
    k.e("s_mul_i32 s%d, s%d, %d" % (S_T0, S_T2, c.TM * 32))
    k.e("s_add_u32 s%d, s%d, s%d" % (S_T0, S_T0, S_M0))
    k.e("s_mul_i32 s%d, s%d, %d" % (S_T1, S_T3, c.TN * 32))
    k.e("s_add_u32 s%d, s%d, s%d" % (S_T1, S_T1, S_N0))
    k.e("s_lshl_b32 s%d, s%d, 1" % (S_T1, S_T1))
    k.e("v_and_b32 v%d, 31, v0" % t0)
    k.e("v_add_u32 v%d, s%d, v%d" % (t0, S_T0, t0))
    k.e("v_bfe_u32 v%d, v0, 5, 1" % t1)
    k.e("v_mul_lo_u32 v%d, v%d, s%d" % (t2, t0, S_LDC))
    k.e("v_add_u32 v%d, s%d, v%d" % (t2, S_T1, t2))
    k.e("v_lshl_add_u32 v%d, v%d, 4, v%d" % (t3, t1, t2))
    k.e("v_lshl_add_u32 v%d, v%d, 3, v%d" % (t4, t1, t2))
    k.e("v_lshlrev_b32 v%d, 2, v%d" % (t5, t0))
    ep = r.ep
    P = [ep + i for i in range(8)]
    RS = [ep + 8 + i for i in range(8)]
    a0, a1, a2, a3 = ep + 16, ep + 17, ep + 18, ep + 19
    for tm in range(c.TM):
        k.e("s_lshl_b32 s%d, s%d, 5" % (S_T0, S_LDC))
        k.e("s_mul_i32 s%d, s%d, %d" % (S_T0, S_T0, tm))
        if mode == 'final':
            k.e("buffer_load_dword v%d, v%d, %s, 0 offen offset:%d" % (a3, t5, sr(S_SRDG, 4), tm * 128))
        for tn in range(c.TN):
            a = r.acc[(tn, tm)]
            if mode in ('resid', 'final'):
                for q in range(4):
                    k.e("buffer_load_dwordx2 %s, v%d, %s, s%d offen offset:%d" %
                        (vr(RS[2 * q], 2), t4, sr(S_SRDR, 4), S_T0, tn * 64 + q * 16))
                k.e("s_waitcnt vmcnt(0)")
            for q in range(4):
                lo, hi = P[2 * q], P[2 * q + 1]
                k.e("v_cvt_pk_bf16_f32 v%d, v%d, v%d" % (lo, a + 4 * q, a + 4 * q + 1))
                k.e("v_cvt_pk_bf16_f32 v%d, v%d, v%d" % (hi, a + 4 * q + 2, a + 4 * q + 3))
                if mode == 'store':
                    continue
                for (pk, rs) in ((lo, RS[2 * q]), (hi, RS[2 * q + 1])):
                    k.e("v_lshlrev_b32 v%d, 16, v%d" % (a0, pk))
                    k.e("v_and_b32 v%d, 0xffff0000, v%d" % (a1, pk))
                    if mode == 'gelu':
                        emit_gelu(k, a0, a2, t6)
                        emit_gelu(k, a1, a2, t6)
                    else:
                        k.e("v_lshlrev_b32 v%d, 16, v%d" % (a2, rs))
                        k.e("v_add_f32 v%d, v%d, v%d" % (a0, a0, a2))
                        k.e("v_and_b32 v%d, 0xffff0000, v%d" % (a2, rs))
                        k.e("v_add_f32 v%d, v%d, v%d" % (a1, a1, a2))
                        if mode == 'final':
                            k.e("v_cvt_pk_bf16_f32 v%d, v%d, v%d" % (a2, a0, a1))
                            k.e("v_lshlrev_b32 v%d, 16, v%d" % (a0, a2))
                            k.e("v_and_b32 v%d, 0xffff0000, v%d" % (a1, a2))
                            k.e("v_sub_f32 v%d, 1.0, v%d" % (a2, a3))
                            rnd_bf16(k, a2)
                            k.e("v_mul_f32 v%d, v%d, v%d" % (a0, a0, a2))
                            k.e("v_mul_f32 v%d, v%d, v%d" % (a1, a1, a2))
                            k.e("v_cvt_pk_bf16_f32 v%d, v%d, v%d" % (a2, a0, a1))
                            k.e("v_lshlrev_b32 v%d, 16, v%d" % (a0, a2))
                            k.e("v_and_b32 v%d, 0xffff0000, v%d" % (a1, a2))
                            sa = r.save + (a - r.acc_base) + 4 * q + (0 if pk == lo else 2)
                            k.e("v_cvt_pk_bf16_f32 v%d, v%d, v%d" % (a2, sa, sa + 1))
                            k.e("v_lshlrev_b32 v%d, 16, v%d" % (t6, a2))
                            k.e("v_and_b32 v%d, 0xffff0000, v%d" % (a2, a2))
                            k.e("v_mul_f32 v%d, v%d, v%d" % (t6, t6, a3))
                            k.e("v_mul_f32 v%d, v%d, v%d" % (a2, a2, a3))
                            k.e("v_cvt_pk_bf16_f32 v%d, v%d, v%d" % (a2, t6, a2))
                            k.e("v_lshlrev_b32 v%d, 16, v%d" % (t6, a2))
                            k.e("v_and_b32 v%d, 0xffff0000, v%d" % (a2, a2))
                            k.e("v_add_f32 v%d, v%d, v%d" % (a0, a0, t6))
                            k.e("v_add_f32 v%d, v%d, v%d" % (a1, a1, a2))
                    k.e("v_cvt_pk_bf16_f32 v%d, v%d, v%d" % (pk, a0, a1))
            k.nop(1)
            for p in range(2):
                k.e("v_permlane32_swap_b32 v%d, v%d" % (P[4 * p], P[4 * p + 2]))
                k.e("v_permlane32_swap_b32 v%d, v%d" % (P[4 * p + 1], P[4 * p + 3]))
            k.nop(1)
            for p in range(2):
                k.e("buffer_store_dwordx4 %s, v%d, %s, s%d offen offset:%d" %
                    (vr(P[4 * p], 4), t3, sr(S_SRDC, 4), S_T0, tn * 64 + p * 32))
            k.nop(3)


class GemmRegsPP:
    def __init__(self, cfg, shifted=False, nsave=0):
        c = cfg
        self.vt = list(range(1, 8))
        p = 8
        self.vpf = p; p += 2
        self.vxa = list(range(p, p + 4)); p += 4
        self.vwa = list(range(p, p + c.TN)); p += c.TN
        self.vxo = list(range(p, p + c.XI)); p += c.XI
        self.vwo = list(range(p, p + c.WI)); p += c.WI
        self.vxs = list(range(p, p + c.XI)) if shifted else None
        if shifted:
            p += c.XI
        p = (p + 3) // 4 * 4
        self.FX = [[p + 4 * (tm * 4 + t) for t in range(4)] for tm in range(c.TM)]; p += 16 * c.TM
        self.FW = [[p + 4 * (tn * 4 + t) for t in range(4)] for tn in range(c.TN)]; p += 16 * c.TN
        p = (p + 15) // 16 * 16
        self.acc = {}
        for tn in range(c.TN):
            for tm in range(c.TM):
                self.acc[(tn, tm)] = p; p += 16
        self.acc_base = self.acc[(0, 0)]
        self.nacc = 16 * c.TM * c.TN
        self.save = p
        p += nsave
        self.end = p
        self.ep = self.FX[0][0]


def pp_reads(k, c, r):
    if 'noreads' in DBG:
        return
    for t in range(4):
        for tm in range(c.TM):
            k.e("ds_read_b128 %s, v%d offset:%d" % (vr(r.FX[tm][t], 4), r.vxa[t], tm * 4096))
        for tn in range(c.TN):
            for u in range(2):
                k.e("ds_read_b64_tr_b16 %s, v%d offset:%d" % (vr(r.FW[tn][t] + 2 * u, 2), r.vwa[tn], (16 * t + 4 * u) * c.RB))


def pp_mfma(k, c, r):
    if 'nomfma' in DBG:
        return
    for t in range(4):
        for tn in range(c.TN):
            for tm in range(c.TM):
                a = r.acc[(tn, tm)]
                k.e("v_mfma_f32_32x32x16_bf16 %s, %s, %s, %s" % (vr(a, 16), vr(r.FW[tn][t], 4), vr(r.FX[tm][t], 4), vr(a, 16)))


def pp_loop_body(k, c, r, grpB, shifted):
    D = c.D
    loop = k.lab("PPL"); nod = k.lab("PPN"); w0 = k.lab("PW0"); w1 = k.lab("PW1"); x0 = k.lab("PX0"); x1 = k.lab("PX1")
    k.L(loop)
    if 'istamp' in DBG:
        k.e("s_memtime s[80:81]")
        k.e("s_waitcnt lgkmcnt(0)")
        k.e("s_mov_b32 m0, s%d" % S_T3)
        k.e("s_movreld_b32 s84, s80")
    pp_reads(k, c, r)
    k.e("s_cmp_ge_u32 s%d, s%d" % (S_KT, S_NK))
    k.e("s_cbranch_scc1 %s" % nod)
    if shifted:
        gemm_shift_update(k, c, r, S_KT)
    gemm_dma(k, c, r, S_OLD, shifted)
    k.e("s_add_u32 s%d, s%d, 128" % (S_KX, S_KX))
    k.e("s_add_u32 s%d, s%d, s%d" % (S_KW, S_KW, S_T2))
    k.e("s_add_u32 s%d, s%d, 1" % (S_KT, S_KT))
    k.L(nod)
    if grpB:
        k.e("s_add_u32 s%d, s%d, %d" % (S_T0, S_T3, c.NS))
        k.e("s_cmp_eq_u32 s%d, s%d" % (S_T0, S_KT))
        k.e("s_cbranch_scc1 %s" % w0)
        k.e("s_waitcnt vmcnt(0) lgkmcnt(0)")
        k.e("s_branch %s" % w1)
        k.L(w0)
        k.e("s_waitcnt vmcnt(%d) lgkmcnt(0)" % ((c.NS - 2) * D))
        k.L(w1)
    else:
        k.e("s_waitcnt lgkmcnt(0)")
    k.e("s_barrier")
    k.e("s_setprio 1")
    pp_mfma(k, c, r)
    k.e("s_setprio 0")
    k.e("s_mov_b32 s%d, s%d" % (S_T1, S_CUR))
    k.e("s_add_u32 s%d, s%d, %d" % (S_CUR, S_CUR, c.STAGE))
    k.e("s_cmp_eq_u32 s%d, %d" % (S_CUR, c.STAGE * c.NS))
    k.e("s_cselect_b32 s%d, 0, s%d" % (S_CUR, S_CUR))
    k.e("s_sub_u32 s%d, s%d, s%d" % (S_T0, S_CUR, S_T1))
    for v in r.vxa + r.vwa:
        k.e("v_add_u32 v%d, s%d, v%d" % (v, S_T0, v))
    k.e("s_add_u32 s%d, s%d, %d" % (S_OLD, S_OLD, c.STAGE))
    k.e("s_cmp_eq_u32 s%d, %d" % (S_OLD, c.STAGE * c.NS))
    k.e("s_cselect_b32 s%d, 0, s%d" % (S_OLD, S_OLD))
    k.e("s_add_u32 s%d, s%d, 1" % (S_T3, S_T3))
    if not grpB:
        k.e("s_add_u32 s%d, s%d, %d" % (S_T0, S_T3, c.NS - 1))
        k.e("s_cmp_eq_u32 s%d, s%d" % (S_T0, S_KT))
        k.e("s_cbranch_scc1 %s" % x0)
        k.e("s_waitcnt vmcnt(0)")
        k.e("s_branch %s" % x1)
        k.L(x0)
        k.e("s_waitcnt vmcnt(%d)" % ((c.NS - 2) * D))
        k.L(x1)
    k.e("s_barrier")
    k.e("s_cmp_lt_u32 s%d, s%d" % (S_T3, S_NK))
    k.e("s_cbranch_scc1 %s" % loop)


def gemm_kloop_pp(k, c, r, shifted=False):
    assert c.NW == 8
    D = c.D
    k.c("K loop (ping-pong) prologue")
    k.e("s_lshl_b32 s%d, s%d, 6" % (S_T2, S_LDW))
    for i in range(r.nacc):
        k.e("v_mov_b32 v%d, 0" % (r.acc_base + i))
    k.e("s_mov_b32 s%d, 0" % S_KT)
    for s in range(c.NS - 1):
        if shifted:
            gemm_shift_update(k, c, r, S_KT)
        k.e("s_mov_b32 s%d, %d" % (S_OLD, s * c.STAGE))
        gemm_dma(k, c, r, S_OLD, shifted)
        k.e("s_add_u32 s%d, s%d, 128" % (S_KX, S_KX))
        k.e("s_add_u32 s%d, s%d, s%d" % (S_KW, S_KW, S_T2))
        k.e("s_add_u32 s%d, s%d, 1" % (S_KT, S_KT))
    k.e("s_mov_b32 s%d, %d" % (S_OLD, (c.NS - 1) * c.STAGE))
    k.e("s_mov_b32 s%d, 0" % S_CUR)
    k.e("s_mov_b32 s%d, 0" % S_T3)
    k.e("s_waitcnt vmcnt(%d)" % ((c.NS - 2) * D))
    k.e("s_barrier")
    gb = k.lab("GRPB"); done = k.lab("PPD")
    k.e("s_cmp_ge_u32 s%d, 4" % S_WAVE)
    k.e("s_cbranch_scc1 %s" % gb)
    pp_loop_body(k, c, r, False, shifted)
    k.e("s_barrier")
    k.e("s_branch %s" % done)
    k.L(gb)
    k.e("s_barrier")
    pp_loop_body(k, c, r, True, shifted)
    k.L(done)
    k.e("s_sub_u32 s%d, 0, s%d" % (S_T0, S_CUR))
    for v in r.vxa + r.vwa:
        k.e("v_add_u32 v%d, s%d, v%d" % (v, S_T0, v))


def gemm_epilogue_lds(k, c, r, mode, lds_base=0):
    if 'noepi' in DBG:
        return
    t0, t1, t2, t3, t4, t5, t6 = r.vt
    RC = c.BN * 2
    TILE = c.BM * RC
    ep = r.ep
    P = [ep + i for i in range(8)]
    a0, a1, a2, a3 = ep + 8, ep + 9, ep + 10, ep + 11
    k.c("epilogue(lds) " + mode)
    k.nop(15)
    k.nop(7)
    k.e("s_and_b32 s%d, s%d, %d" % (S_T2, S_WAVE, c.WM - 1))
    k.e("s_lshr_b32 s%d, s%d, %d" % (S_T3, S_WAVE, c.WM.bit_length() - 1))
    k.e("v_and_b32 v%d, 31, v0" % t0)
    k.e("s_mul_i32 s%d, s%d, %d" % (S_T0, S_T2, c.TM * 32))
    k.e("v_add_u32 v%d, s%d, v%d" % (t0, S_T0, t0))
    k.e("v_mul_u32_u24 v%d, %d, v%d" % (t1, RC, t0))
    k.e("v_and_b32 v%d, 7, v0" % t0)
    k.e("v_lshl_or_b32 v%d, v%d, 4, v%d" % (t1, t0, t1))
    k.e("v_bfe_u32 v%d, v0, 5, 1" % t0)
    k.e("v_lshl_or_b32 v%d, v%d, 3, v%d" % (t1, t0, t1))
    k.e("s_mul_i32 s%d, s%d, %d" % (S_T0, S_T3, c.TN * 64))
    k.e("v_xor_b32 v%d, s%d, v%d" % (t1, S_T0, t1))
    sets = [(r.acc, 0)] if mode != 'final' else [(r.acc, 0), (None, TILE)]
    for which, (accmap, lbase) in enumerate(sets):
        for tm in range(c.TM):
            for tn in range(c.TN):
                a = r.acc[(tn, tm)] if which == 0 else r.save + (r.acc[(tn, tm)] - r.acc_base)
                for q in range(4):
                    lo, hi = P[0], P[1]
                    k.e("v_cvt_pk_bf16_f32 v%d, v%d, v%d" % (lo, a + 4 * q, a + 4 * q + 1))
                    k.e("v_cvt_pk_bf16_f32 v%d, v%d, v%d" % (hi, a + 4 * q + 2, a + 4 * q + 3))
                    if mode == 'gelu':
                        for pk in (lo, hi):
                            k.e("v_lshlrev_b32 v%d, 16, v%d" % (a0, pk))
                            k.e("v_and_b32 v%d, 0xffff0000, v%d" % (a1, pk))
                            emit_gelu(k, a0, a2, t6)
                            emit_gelu(k, a1, a2, t6)
                            k.e("v_cvt_pk_bf16_f32 v%d, v%d, v%d" % (pk, a0, a1))
                    k.e("v_xor_b32 v%d, %d, v%d" % (t0, (tn * 4 + q) << 4, t1))
                    k.e("ds_write_b64 v%d, v[%d:%d] offset:%d" % (t0, lo, hi, lds_base + lbase + tm * 32 * RC))
    k.e("s_waitcnt lgkmcnt(0)")
    k.e("s_barrier")
    CPR = RC // 16
    RPI = 64 // CPR
    NI = TILE // 1024 // c.NW
    sh = CPR.bit_length() - 1
    k.e("v_and_b32 v%d, 63, v0" % t0)
    k.e("v_lshrrev_b32 v%d, %d, v%d" % (t1, sh, t0))
    k.e("s_mul_i32 s%d, s%d, %d" % (S_T0, S_WAVE, NI * RPI))
    k.e("v_add_u32 v%d, s%d, v%d" % (t1, S_T0, t1))
    k.e("v_and_b32 v%d, %d, v%d" % (t2, CPR - 1, t0))
    k.e("v_and_b32 v%d, 7, v%d" % (t3, t1))
    k.e("v_xor_b32 v%d, v%d, v%d" % (t3, t3, t2))
    k.e("v_mul_u32_u24 v%d, %d, v%d" % (t4, RC, t1))
    k.e("v_lshl_add_u32 v%d, v%d, 4, v%d" % (t4, t3, t4))
    k.e("v_add_u32 v%d, s%d, v%d" % (t3, S_M0, t1))
    k.e("v_mul_lo_u32 v%d, v%d, s%d" % (t5, t3, S_LDC))
    k.e("v_lshl_add_u32 v%d, v%d, 4, v%d" % (t5, t2, t5))
    k.e("s_lshl_b32 s%d, s%d, 1" % (S_T0, S_N0))
    k.e("v_add_u32 v%d, s%d, v%d" % (t5, S_T0, t5))
    k.e("v_lshlrev_b32 v%d, 2, v%d" % (t6, t3))
    assert RPI % 8 == 0 or RPI == 4
    for i in range(NI):
        if RPI == 4 and i > 0:
            k.e("v_add_u32 v%d, %d, v%d" % (t1, RPI, t1))
            k.e("v_and_b32 v%d, 7, v%d" % (t3, t1))
            k.e("v_xor_b32 v%d, v%d, v%d" % (t3, t3, t2))
            k.e("v_mul_u32_u24 v%d, %d, v%d" % (t4, RC, t1))
            k.e("v_lshl_add_u32 v%d, v%d, 4, v%d" % (t4, t3, t4))
        loff = 0 if RPI == 4 else i * 1024
        k.e("s_mul_i32 s%d, s%d, %d" % (S_T1, S_LDC, i * RPI))
        X = ep + 12
        Y = ep + 16
        Z = ep + 20
        k.e("ds_read_b128 %s, v%d offset:%d" % (vr(X, 4), t4, lds_base + loff))
        if mode == 'resid':
            k.e("buffer_load_dwordx4 %s, v%d, %s, s%d offen" % (vr(Y, 4), t5, sr(S_SRDR, 4), S_T1))
            k.e("s_waitcnt vmcnt(0) lgkmcnt(0)")
            for j in range(4):
                k.e("v_lshlrev_b32 v%d, 16, v%d" % (a0, X + j))
                k.e("v_and_b32 v%d, 0xffff0000, v%d" % (a1, X + j))
                k.e("v_lshlrev_b32 v%d, 16, v%d" % (a2, Y + j))
                k.e("v_and_b32 v%d, 0xffff0000, v%d" % (a3, Y + j))
                k.e("v_add_f32 v%d, v%d, v%d" % (a0, a0, a2))
                k.e("v_add_f32 v%d, v%d, v%d" % (a1, a1, a3))
                k.e("v_cvt_pk_bf16_f32 v%d, v%d, v%d" % (X + j, a0, a1))
        elif mode == 'final':
            k.e("ds_read_b128 %s, v%d offset:%d" % (vr(Z, 4), t4, lds_base + TILE + loff))
            k.e("buffer_load_dwordx4 %s, v%d, %s, s%d offen" % (vr(Y, 4), t5, sr(S_SRDR, 4), S_T1))
            k.e("buffer_load_dword v%d, v%d, %s, 0 offen offset:%d" % (P[2], t6, sr(S_SRDG, 4), i * RPI * 4))
            k.e("s_waitcnt vmcnt(0) lgkmcnt(0)")
            k.e("v_sub_f32 v%d, 1.0, v%d" % (P[3], P[2]))
            rnd_bf16(k, P[3])
            for j in range(4):
                k.e("v_lshlrev_b32 v%d, 16, v%d" % (a0, X + j))
                k.e("v_and_b32 v%d, 0xffff0000, v%d" % (a1, X + j))
                k.e("v_lshlrev_b32 v%d, 16, v%d" % (a2, Y + j))
                k.e("v_and_b32 v%d, 0xffff0000, v%d" % (a3, Y + j))
                k.e("v_add_f32 v%d, v%d, v%d" % (a0, a0, a2))
                k.e("v_add_f32 v%d, v%d, v%d" % (a1, a1, a3))
                k.e("v_cvt_pk_bf16_f32 v%d, v%d, v%d" % (a2, a0, a1))
                k.e("v_lshlrev_b32 v%d, 16, v%d" % (a0, a2))
                k.e("v_and_b32 v%d, 0xffff0000, v%d" % (a1, a2))
                k.e("v_mul_f32 v%d, v%d, v%d" % (a0, a0, P[3]))
                k.e("v_mul_f32 v%d, v%d, v%d" % (a1, a1, P[3]))
                k.e("v_cvt_pk_bf16_f32 v%d, v%d, v%d" % (a2, a0, a1))
                k.e("v_lshlrev_b32 v%d, 16, v%d" % (a0, a2))
                k.e("v_and_b32 v%d, 0xffff0000, v%d" % (a1, a2))
                k.e("v_lshlrev_b32 v%d, 16, v%d" % (a2, Z + j))
                k.e("v_and_b32 v%d, 0xffff0000, v%d" % (a3, Z + j))
                k.e("v_mul_f32 v%d, v%d, v%d" % (a2, a2, P[2]))
                k.e("v_mul_f32 v%d, v%d, v%d" % (a3, a3, P[2]))
                k.e("v_cvt_pk_bf16_f32 v%d, v%d, v%d" % (a3, a2, a3))
                k.e("v_lshlrev_b32 v%d, 16, v%d" % (a2, a3))
                k.e("v_and_b32 v%d, 0xffff0000, v%d" % (a3, a3))
                k.e("v_add_f32 v%d, v%d, v%d" % (a0, a0, a2))
                k.e("v_add_f32 v%d, v%d, v%d" % (a1, a1, a3))
                k.e("v_cvt_pk_bf16_f32 v%d, v%d, v%d" % (X + j, a0, a1))
        else:
            k.e("s_waitcnt lgkmcnt(0)")
        sfx = ""
        if 'stnt' in DBG: sfx = " nt"
        if 'stsc1' in DBG: sfx = " sc1"
        if 'stsc01' in DBG: sfx = " sc0 sc1"
        if 'nost' not in DBG:
            k.e("buffer_store_dwordx4 %s, v%d, %s, s%d offen%s" % (vr(X, 4), t5, sr(S_SRDC, 4), S_T1, sfx))
        k.nop(1)


def emit_gelu2(k, x0, x1, t0, t1, c1, c2):
    k.e("v_pk_mul_f32 v[%d:%d], v[%d:%d], v[%d:%d]" % (t0, t0 + 1, x0, x0 + 1, x0, x0 + 1))
    k.e("v_pk_fma_f32 v[%d:%d], v[%d:%d], v[%d:%d], 1.0 op_sel_hi:[1,1,0]" % (t0, t0 + 1, t0, t0 + 1, c1, c1 + 1))
    k.e("v_pk_mul_f32 v[%d:%d], v[%d:%d], v[%d:%d]" % (t0, t0 + 1, t0, t0 + 1, x0, x0 + 1))
    k.e("v_pk_mul_f32 v[%d:%d], v[%d:%d], v[%d:%d]" % (t0, t0 + 1, t0, t0 + 1, c2, c2 + 1))
    k.e("v_exp_f32 v%d, v%d" % (t0, t0))
    k.e("v_exp_f32 v%d, v%d" % (t0 + 1, t0 + 1))
    k.nop(0)
    k.e("v_pk_add_f32 v[%d:%d], v[%d:%d], 1.0 op_sel_hi:[1,0]" % (t0, t0 + 1, t0, t0 + 1))
    k.e("v_rcp_f32 v%d, v%d" % (t0, t0))
    k.e("v_rcp_f32 v%d, v%d" % (t0 + 1, t0 + 1))
    k.nop(0)
    k.e("v_pk_mul_f32 v[%d:%d], v[%d:%d], v[%d:%d]" % (x0, x0 + 1, x0, x0 + 1, t0, t0 + 1))


def gemm_epilogue2(k, c, r, mode):
    if 'noepi' in DBG:
        return
    t0, t1, t2, t3, t4, t5, t6 = r.vt
    RCF = c.BN * 4
    TILE = c.BM * RCF
    ep = r.ep
    CPR = c.BN // 8
    RPI = 64 // CPR
    NI = c.BM // RPI // c.NW
    sh = CPR.bit_length() - 1
    pre = mode in ('resid', 'final')
    k.c("epilogue2 " + mode)
    k.e("v_and_b32 v%d, 63, v0" % t0)
    k.e("v_lshrrev_b32 v%d, %d, v%d" % (t1, sh, t0))
    k.e("s_mul_i32 s%d, s%d, %d" % (S_T0, S_WAVE, NI * RPI))
    k.e("v_add_u32 v%d, s%d, v%d" % (t1, S_T0, t1))
    k.e("v_and_b32 v%d, %d, v%d" % (t2, CPR - 1, t0))
    k.e("v_and_b32 v%d, 7, v%d" % (t3, t1))
    k.e("v_lshlrev_b32 v%d, 1, v%d" % (t4, t2))
    k.e("v_xor_b32 v%d, v%d, v%d" % (t3, t3, t4))
    k.e("v_mul_u32_u24 v%d, %d, v%d" % (t4, RCF, t1))
    k.e("v_lshl_add_u32 v%d, v%d, 4, v%d" % (t4, t3, t4))
    k.e("v_add_u32 v%d, s%d, v%d" % (t3, S_M0, t1))
    k.e("v_mul_lo_u32 v%d, v%d, s%d" % (t5, t3, S_LDC))
    k.e("v_lshl_add_u32 v%d, v%d, 4, v%d" % (t5, t2, t5))
    k.e("s_lshl_b32 s%d, s%d, 1" % (S_T0, S_N0))
    k.e("v_add_u32 v%d, s%d, v%d" % (t5, S_T0, t5))
    k.e("v_lshlrev_b32 v%d, 2, v%d" % (t6, t3))
    X = ep; X2 = ep + 4; Z = ep + 8; Z2 = ep + 12
    T = ep + 16; G1 = ep + 18; C1 = ep + 20; C2 = ep + 22; U = ep + 24
    YB = ep + 28
    GB = YB + 4 * NI
    if pre:
        for i in range(NI):
            k.e("s_mul_i32 s%d, s%d, %d" % (S_T1, S_LDC, i * RPI))
            k.e("buffer_load_dwordx4 %s, v%d, %s, s%d offen" % (vr(YB + 4 * i, 4), t5, sr(S_SRDR, 4), S_T1))
            if mode == 'final':
                k.e("buffer_load_dword v%d, v%d, %s, 0 offen offset:%d" % (GB + i, t6, sr(S_SRDG, 4), i * RPI * 4))
    k.nop(15)
    k.nop(7)
    k.e("s_and_b32 s%d, s%d, %d" % (S_T2, S_WAVE, c.WM - 1))
    k.e("s_lshr_b32 s%d, s%d, %d" % (S_T3, S_WAVE, c.WM.bit_length() - 1))
    k.e("v_and_b32 v%d, 31, v0" % t0)
    k.e("s_mul_i32 s%d, s%d, %d" % (S_T0, S_T2, c.TM * 32))
    k.e("v_add_u32 v%d, s%d, v%d" % (t0, S_T0, t0))
    k.e("v_mul_u32_u24 v%d, %d, v%d" % (t1, RCF, t0))
    k.e("v_and_b32 v%d, 7, v0" % t0)
    k.e("v_bfe_u32 v%d, v0, 5, 1" % t2)
    k.e("v_xor_b32 v%d, v%d, v%d" % (t0, t0, t2))
    k.e("s_mul_i32 s%d, s%d, %d" % (S_T0, S_T3, c.TN * 8))
    k.e("v_xor_b32 v%d, s%d, v%d" % (t0, S_T0, t0))
    k.e("v_lshl_add_u32 v%d, v%d, 4, v%d" % (t1, t0, t1))
    nset = 2 if mode == 'final' else 1
    for which in range(nset):
        if which == 1:
            k.e("v_add_u32 v%d, %d, v%d" % (t1, TILE, t1))
        for tm in range(c.TM):
            for tn in range(c.TN):
                a = r.acc[(tn, tm)] if which == 0 else r.save + (r.acc[(tn, tm)] - r.acc_base)
                for q in range(4):
                    k.e("v_xor_b32 v%d, %d, v%d" % (t0, (2 * q + 8 * tn) << 4, t1))
                    k.e("ds_write_b128 v%d, v[%d:%d] offset:%d" % (t0, a + 4 * q, a + 4 * q + 3, tm * 32 * RCF))
    k.e("s_waitcnt lgkmcnt(0)")
    k.e("s_barrier")
    k.e("s_mov_b32 s%d, 0" % S_T1)
    k.e("s_mul_i32 s%d, s%d, %d" % (S_T3, S_LDC, RPI))
    if mode == 'gelu':
        k.e("v_mov_b32 v%d, 0x3d372713" % C1); k.e("v_mov_b32 v%d, 0x3d372713" % (C1 + 1))
        k.e("v_mov_b32 v%d, 0xc0135761" % C2); k.e("v_mov_b32 v%d, 0xc0135761" % (C2 + 1))

    def body(i):
        k.e("v_xor_b32 v%d, 16, v%d" % (t0, t4))
        k.e("ds_read_b128 %s, v%d" % (vr(X, 4), t4))
        k.e("ds_read_b128 %s, v%d" % (vr(X2, 4), t0))
        if mode == 'final':
            k.e("v_add_u32 v%d, %d, v%d" % (t1, TILE, t4))
            k.e("v_add_u32 v%d, %d, v%d" % (t2, TILE, t0))
            k.e("ds_read_b128 %s, v%d" % (vr(Z, 4), t1))
            k.e("ds_read_b128 %s, v%d" % (vr(Z2, 4), t2))
        if pre and i == 0:
            k.e("s_waitcnt vmcnt(0) lgkmcnt(0)")
        else:
            k.e("s_waitcnt lgkmcnt(0)")
        G = GB + i if pre else None
        if mode == 'final':
            k.e("v_sub_f32 v%d, 1.0, v%d" % (G1, G))
            rnd_bf16(k, G1)
        for j in range(4):
            xa = X + 2 * j
            if mode == 'store':
                k.e("v_cvt_pk_bf16_f32 v%d, v%d, v%d" % (U + j, xa, xa + 1))
                continue
            k.e("v_cvt_pk_bf16_f32 v%d, v%d, v%d" % (T, xa, xa + 1))
            k.e("v_lshlrev_b32 v%d, 16, v%d" % (xa, T))
            k.e("v_and_b32 v%d, 0xffff0000, v%d" % (xa + 1, T))
            if mode == 'gelu':
                emit_gelu2(k, xa, xa + 1, T, None, C1, C2)
            else:
                Y = YB + 4 * i
                k.e("v_lshlrev_b32 v%d, 16, v%d" % (T, Y + j))
                k.e("v_and_b32 v%d, 0xffff0000, v%d" % (T + 1, Y + j))
                k.e("v_pk_add_f32 v[%d:%d], v[%d:%d], v[%d:%d]" % (xa, xa + 1, xa, xa + 1, T, T + 1))
                if mode == 'final':
                    k.e("v_cvt_pk_bf16_f32 v%d, v%d, v%d" % (T, xa, xa + 1))
                    k.e("v_lshlrev_b32 v%d, 16, v%d" % (xa, T))
                    k.e("v_and_b32 v%d, 0xffff0000, v%d" % (xa + 1, T))
                    k.e("v_mul_f32 v%d, v%d, v%d" % (xa, xa, G1))
                    k.e("v_mul_f32 v%d, v%d, v%d" % (xa + 1, xa + 1, G1))
                    k.e("v_cvt_pk_bf16_f32 v%d, v%d, v%d" % (T, xa, xa + 1))
                    k.e("v_lshlrev_b32 v%d, 16, v%d" % (xa, T))
                    k.e("v_and_b32 v%d, 0xffff0000, v%d" % (xa + 1, T))
                    za = Z + 2 * j
                    k.e("v_cvt_pk_bf16_f32 v%d, v%d, v%d" % (T, za, za + 1))
                    k.e("v_lshlrev_b32 v%d, 16, v%d" % (za, T))
                    k.e("v_and_b32 v%d, 0xffff0000, v%d" % (za + 1, T))
                    k.e("v_mul_f32 v%d, v%d, v%d" % (za, za, G))
                    k.e("v_mul_f32 v%d, v%d, v%d" % (za + 1, za + 1, G))
                    k.e("v_cvt_pk_bf16_f32 v%d, v%d, v%d" % (T, za, za + 1))
                    k.e("v_lshlrev_b32 v%d, 16, v%d" % (za, T))
                    k.e("v_and_b32 v%d, 0xffff0000, v%d" % (za + 1, T))
                    k.e("v_pk_add_f32 v[%d:%d], v[%d:%d], v[%d:%d]" % (xa, xa + 1, xa, xa + 1, za, za + 1))
            k.e("v_cvt_pk_bf16_f32 v%d, v%d, v%d" % (U + j, xa, xa + 1))
        k.e("buffer_store_dwordx4 %s, v%d, %s, s%d offen" % (vr(U, 4), t5, sr(S_SRDC, 4), S_T1))
        k.e("v_add_u32 v%d, %d, v%d" % (t4, RPI * RCF, t4))
        if RPI == 4:
            k.e("v_xor_b32 v%d, 64, v%d" % (t4, t4))
        k.e("s_add_u32 s%d, s%d, s%d" % (S_T1, S_T1, S_T3))

    if pre:
        for i in range(NI):
            body(i)
    else:
        k.e("s_mov_b32 s%d, %d" % (S_KT, NI))
        loop = k.lab("EPL")
        k.L(loop)
        body(0)
        k.e("s_sub_u32 s%d, s%d, 1" % (S_KT, S_KT))
        k.e("s_cmp_lg_u32 s%d, 0" % S_KT)
        k.e("s_cbranch_scc1 %s" % loop)


def stamp(k, idx):
    if 'stamp' not in DBG:
        return
    k.e("s_memtime s[%d:%d]" % (80 + 2 * idx, 81 + 2 * idx))


def stamp_flush(k, n):
    if 'stamp' not in DBG:
        return
    skip = k.lab("SKIPST")
    k.e("s_waitcnt lgkmcnt(0)")
    k.e("s_cmp_lg_u32 s2, 5")
    k.e("s_cbranch_scc1 %s" % skip)
    k.e("s_cmp_lg_u32 s%d, 0" % S_WAVE)
    k.e("s_cbranch_scc1 %s" % skip)
    k.e("s_load_dwordx2 s[56:57], s[0:1], 88")
    k.e("s_waitcnt lgkmcnt(0)")
    k.e("s_mov_b32 s58, 256")
    k.e("s_mov_b32 s59, 0x00020000")
    for i in range(n):
        k.e("v_mov_b32 v1, s%d" % (80 + 2 * i))
        k.e("v_mov_b32 v2, %d" % (4 * i))
        k.e("buffer_store_dword v1, v2, s[56:59], 0 offen")
    k.L(skip)


def istamp_flush(k, n=16):
    if 'istamp' not in DBG:
        return
    skip = k.lab("SKIPST")
    k.e("s_cmp_lg_u32 s2, 5")
    k.e("s_cbranch_scc1 %s" % skip)
    k.e("s_cmp_lg_u32 s%d, 0" % S_WAVE)
    k.e("s_cbranch_scc1 %s" % skip)
    k.e("s_load_dwordx2 s[56:57], s[0:1], 88")
    k.e("s_waitcnt lgkmcnt(0)")
    k.e("s_mov_b32 s58, 256")
    k.e("s_mov_b32 s59, 0x00020000")
    for i in range(n):
        k.e("v_mov_b32 v1, s%d" % (84 + i))
        k.e("v_mov_b32 v2, %d" % (4 * i))
        k.e("buffer_store_dword v1, v2, s[56:59], 0 offen")
    k.L(skip)


def rstamp_begin(k):
    if 'rstamp' in DBG:
        k.e("s_memrealtime s[70:71]")


def rstamp_end(k):
    if 'rstamp' not in DBG:
        return
    skip = k.lab("SKIPRS")
    k.e("s_memrealtime s[72:73]")
    k.e("s_waitcnt lgkmcnt(0)")
    k.e("s_cmp_lg_u32 s%d, 0" % S_WAVE)
    k.e("s_cbranch_scc1 %s" % skip)
    k.e("s_load_dwordx2 s[56:57], s[0:1], 96")
    k.e("s_waitcnt lgkmcnt(0)")
    k.e("s_add_u32 s56, s56, 0xc800000")
    k.e("s_addc_u32 s57, s57, 0")
    k.e("s_mov_b32 s58, 65536")
    k.e("s_mov_b32 s59, 0x00020000")
    k.e("s_lshl_b32 s74, s2, 3")
    k.e("v_mov_b32 v2, s70")
    k.e("v_mov_b32 v3, s72")
    k.e("v_mov_b32 v4, s74")
    k.e("buffer_store_dwordx2 v[2:3], v4, s[56:59], 0 offen")
    k.L(skip)


def gemm_head(k, nwg):
    end = k.lab("END")
    for d in DBG:
        if d.startswith('lim'):
            nwg = int(d[3:])
    k.e("s_cmp_ge_u32 s2, %d" % nwg)
    k.e("s_cbranch_scc1 %s" % end)
    k.e("v_lshrrev_b32 v1, 6, v0")
    k.nop(0)
    k.e("v_readfirstlane_b32 s%d, v1" % S_WAVE)
    return end


def setup_prefetch(k, c, r, items):
    c.PF = len(items)
    c.D = c.XI + c.WI + c.PF
    for p, (key, nb) in enumerate(items):
        load_ptr(k, 74, key)
        k.e("s_waitcnt lgkmcnt(0)")
        make_srd(k, 64 + 4 * p, 74, 0, nb)
    k.e("v_and_b32 v%d, 63, v0" % r.vpf)
    k.e("v_cmp_gt_u32 vcc, %d, v%d" % (16 // c.NW, r.vpf))
    k.e("v_lshlrev_b32 v%d, 7, v%d" % (r.vpf, r.vpf))
    k.e("v_mov_b32 v%d, 0x7ffffff0" % (r.vpf + 1))
    k.e("v_cndmask_b32 v%d, v%d, v%d, vcc" % (r.vpf, r.vpf + 1, r.vpf))
    k.e("s_mul_i32 s72, s2, %d" % c.NW)
    k.e("s_add_u32 s72, s72, s%d" % S_WAVE)
    k.e("s_mul_i32 s72, s72, s%d" % S_NK)
    k.e("s_lshl_b32 s72, s72, %d" % (8 if c.NW == 8 else 9))


def gen_gemm1():
    BIGW = 'nobigw' not in DBG
    if BIGW:
        c = GemmCfg(2, 2, 4, 2)
        r = GemmRegs(c)
        r.ep = r.end
    else:
        c = GemmCfg(4, 2, 2, 2)
        r = GemmRegsPP(c)
    k = K("gemm1_kernel")
    end = gemm_head(k, 256)
    stamp(k, 0)
    rstamp_begin(k)
    load_ptr(k, 44, "A_x"); load_ptr(k, 46, "wqkv"); load_ptr(k, 48, "ws"); load_ptr(k, 50, "w1")
    k.e("s_waitcnt lgkmcnt(0)")
    pb = k.lab("PB"); go = k.lab("GO")
    k.e("s_and_b32 s%d, s2, 1" % S_M0)
    k.e("s_lshl_b32 s%d, s%d, 2" % (S_M0, S_M0))
    k.e("s_bfe_u32 s%d, s2, 0x20003" % S_T0)
    k.e("s_add_u32 s%d, s%d, s%d" % (S_M0, S_M0, S_T0))
    k.e("s_lshl_b32 s%d, s%d, 8" % (S_M0, S_M0))
    k.e("s_bfe_u32 s%d, s2, 0x20001" % S_T1)
    k.e("s_lshl_b32 s%d, s%d, 3" % (S_T1, S_T1))
    k.e("s_lshr_b32 s%d, s2, 5" % S_T0)
    k.e("s_add_u32 s%d, s%d, s%d" % (S_T1, S_T1, S_T0))
    k.e("s_cmp_ge_u32 s%d, 24" % S_T1)
    k.e("s_cbranch_scc1 %s" % pb)
    make_srd(k, S_SRDX, 44, 0, SZ_ACT)
    make_srd(k, S_SRDW, 46, 0, 1024 * 3072 * 2)
    make_srd(k, S_SRDC, 48, WS_QKV, SZ_QKV)
    k.e("s_mov_b32 s%d, 2048" % S_LDX); k.e("s_mov_b32 s%d, 6144" % S_LDW); k.e("s_mov_b32 s%d, 6144" % S_LDC)
    k.e("s_mov_b32 s%d, 0" % S_FLAG)
    k.e("s_branch %s" % go)
    k.L(pb)
    make_srd(k, S_SRDX, 48, WS_LNX, SZ_ACT)
    make_srd(k, S_SRDW, 50, 0, 1024 * 1024 * 2)
    make_srd(k, S_SRDC, 48, WS_H, SZ_ACT)
    k.e("s_mov_b32 s%d, 2048" % S_LDX); k.e("s_mov_b32 s%d, 2048" % S_LDW); k.e("s_mov_b32 s%d, 2048" % S_LDC)
    k.e("s_mov_b32 s%d, 1" % S_FLAG)
    k.e("s_sub_u32 s%d, s%d, 24" % (S_T1, S_T1))
    k.L(go)
    k.e("s_mov_b32 s%d, 16" % S_NK)
    k.e("s_lshl_b32 s%d, s%d, 7" % (S_N0, S_T1))
    setup_prefetch(k, c, r, [('w3', 1024 * 3584 * 2), ('w2', 1024 * 1024 * 2)])
    gemm_lane_setup(k, c, r)
    k.e("s_mul_i32 s%d, s%d, s%d" % (S_KX, S_M0, S_LDX))
    k.e("s_lshl_b32 s%d, s%d, 1" % (S_KW, S_N0))
    stamp(k, 1)
    if BIGW:
        gemm_kloop(k, c, r)
        k.e("s_barrier")
    else:
        gemm_kloop_pp(k, c, r)
    istamp_flush(k)
    stamp(k, 2)
    eg = k.lab("EG")
    k.e("s_cmp_eq_u32 s%d, 1" % S_FLAG)
    k.e("s_cbranch_scc1 %s" % eg)
    gemm_epilogue2(k, c, r, 'store')
    stamp(k, 3)
    k.e('s_waitcnt vmcnt(0)')
    stamp(k, 4)
    stamp_flush(k, 5)
    rstamp_end(k)
    k.e("s_endpgm")
    k.L(eg)
    gemm_epilogue2(k, c, r, 'gelu')
    k.L(end)
    k.e("s_endpgm")
    return k, (r.end + 48 if BIGW else r.end), c.LDS, 64 * c.NW


def gen_gemm2():
    c = GemmCfg(2, 2, 2, 1)
    r = GemmRegs(c, shifted=True)
    r.ep = r.end
    k = K("gemm2_kernel")
    end = gemm_head(k, 256)
    load_ptr(k, 44, "A_x"); load_ptr(k, 46, "w2"); load_ptr(k, 48, "ws")
    k.e("s_waitcnt lgkmcnt(0)")
    make_srd(k, S_SRDX, 48, WS_H, SZ_ACT)
    make_srd(k, S_SRDW, 46, 0, 1024 * 1024 * 2)
    make_srd(k, S_SRDC, 48, WS_X1, SZ_ACT)
    make_srd(k, S_SRDR, 44, 0, SZ_ACT)
    k.e("s_mov_b32 s%d, 2048" % S_LDX); k.e("s_mov_b32 s%d, 2048" % S_LDW); k.e("s_mov_b32 s%d, 2048" % S_LDC)
    k.e("s_mov_b32 s%d, 16" % S_NK)
    k.e("s_and_b32 s%d, s2, 15" % S_M0)
    k.e("s_lshl_b32 s%d, s%d, 7" % (S_M0, S_M0))
    k.e("s_lshr_b32 s%d, s2, 4" % S_N0)
    k.e("s_lshl_b32 s%d, s%d, 6" % (S_N0, S_N0))
    gemm_lane_setup(k, c, r)
    k.e("s_mov_b32 s%d, 0" % S_KX)
    k.e("s_lshl_b32 s%d, s%d, 1" % (S_KW, S_N0))
    gemm_kloop(k, c, r, shifted=True)
    k.e('s_barrier')
    gemm_epilogue2(k, c, r, 'resid')
    k.L(end)
    k.e("s_endpgm")
    return k, r.ep + 48, c.LDS, 256


def gen_gemm4():
    c = GemmCfg(4, 2, 2, 2)
    r = GemmRegsPP(c)
    k = K("gemm4_kernel")
    end = gemm_head(k, 224)
    load_ptr(k, 46, "w3"); load_ptr(k, 48, "ws")
    k.e("s_waitcnt lgkmcnt(0)")
    make_srd(k, S_SRDX, 48, WS_LNX1, SZ_ACT)
    make_srd(k, S_SRDW, 46, 0, 1024 * 3584 * 2)
    make_srd(k, S_SRDC, 48, WS_H3, SZ_H3)
    k.e("s_mov_b32 s%d, 2048" % S_LDX); k.e("s_mov_b32 s%d, 7168" % S_LDW); k.e("s_mov_b32 s%d, 7168" % S_LDC)
    k.e("s_mov_b32 s%d, 16" % S_NK)
    k.e("s_and_b32 s%d, s2, 7" % S_M0)
    k.e("s_lshl_b32 s%d, s%d, 8" % (S_M0, S_M0))
    k.e("s_lshr_b32 s%d, s2, 3" % S_N0)
    k.e("s_lshl_b32 s%d, s%d, 7" % (S_N0, S_N0))
    setup_prefetch(k, c, r, [('w4', 1024 * 3584 * 2), ('wo', 1024 * 1024 * 2)])
    gemm_lane_setup(k, c, r)
    k.e("s_mul_i32 s%d, s%d, s%d" % (S_KX, S_M0, S_LDX))
    k.e("s_lshl_b32 s%d, s%d, 1" % (S_KW, S_N0))
    gemm_kloop_pp(k, c, r)
    istamp_flush(k)
    gemm_epilogue2(k, c, r, 'gelu')
    k.L(end)
    k.e("s_endpgm")
    return k, r.end, c.LDS, 512


def gen_gemm5():
    c = GemmCfg(2, 4, 2, 1, NS=4)
    r = GemmRegsPP(c, nsave=32)
    k = K("gemm5_kernel")
    end = gemm_head(k, 256)
    stamp(k, 0)
    load_ptr(k, 44, "wo"); load_ptr(k, 46, "w4"); load_ptr(k, 48, "ws"); load_ptr(k, 50, "out")
    k.e("s_waitcnt lgkmcnt(0)")
    make_srd(k, S_SRDC, 50, 0, SZ_ACT)
    make_srd(k, S_SRDR, 48, WS_X1, SZ_ACT)
    make_srd(k, S_SRDG, 48, WS_G, 2048 * 4)
    make_srd(k, 52, 48, WS_PART, 128 * 65536)
    make_srd(k, 56, 48, WS_FLAG, 1024)
    k.e("s_mov_b32 s%d, 2048" % S_LDW); k.e("s_mov_b32 s%d, 2048" % S_LDC)
    k.e("s_bfe_u32 s%d, s2, 0x10003" % S_FLAG)
    k.e("s_lshr_b32 s60, s2, 4")
    k.e("s_lshl_b32 s60, s60, 3")
    k.e("s_and_b32 s61, s2, 7")
    k.e("s_add_u32 s60, s60, s61")
    k.e("s_and_b32 s%d, s60, 15" % S_M0)
    k.e("s_lshl_b32 s%d, s%d, 7" % (S_M0, S_M0))
    k.e("s_lshr_b32 s%d, s60, 4" % S_N0)
    k.e("s_lshl_b32 s%d, s%d, 7" % (S_N0, S_N0))
    h1 = k.lab("HALF1"); fin = k.lab("FIN")
    k.e("s_cmp_eq_u32 s%d, 1" % S_FLAG)
    k.e("s_cbranch_scc1 %s" % h1)
    make_srd(k, S_SRDX, 48, WS_O, SZ_ACT)
    make_srd(k, S_SRDW, 44, 0, 1024 * 1024 * 2)
    k.e("s_mov_b32 s%d, 2048" % S_LDX)
    k.e("s_mov_b32 s%d, 16" % S_NK)
    gemm_lane_setup(k, c, r)
    k.e("s_mul_i32 s%d, s%d, s%d" % (S_KX, S_M0, S_LDX))
    k.e("s_lshl_b32 s%d, s%d, 1" % (S_KW, S_N0))
    gemm_kloop_pp(k, c, r)
    stamp(k, 1)
    k.nop(15); k.nop(7)
    for i in range(r.nacc):
        k.e("v_mov_b32 v%d, v%d" % (r.save + i, r.acc_base + i))
    make_srd(k, S_SRDX, 48, WS_H3, SZ_H3)
    make_srd(k, S_SRDW, 46, 0, 3584 * 1024 * 2)
    k.e("s_mov_b32 s%d, 7168" % S_LDX)
    k.e("s_mov_b32 s%d, 20" % S_NK)
    gemm_lane_setup(k, c, r)
    k.e("s_mul_i32 s%d, s%d, s%d" % (S_KX, S_M0, S_LDX))
    k.e("s_lshl_b32 s%d, s%d, 1" % (S_KW, S_N0))
    gemm_kloop_pp(k, c, r)
    istamp_flush(k)
    stamp(k, 2)
    k.nop(15); k.nop(7)
    poll = k.lab("POLL"); got = k.lab("GOT")
    k.e("s_lshl_b32 s61, s60, 2")
    k.e("v_mov_b32 v1, s61")
    k.e("s_mov_b32 s62, 0")
    k.L(poll)
    k.e("buffer_load_dword v2, v1, s[56:59], 0 offen sc1")
    k.e("s_waitcnt vmcnt(0)")
    k.e("v_readfirstlane_b32 s63, v2")
    k.e("s_cmp_eq_u32 s63, 0x5a5a")
    k.e("s_cbranch_scc1 %s" % got)
    k.e("s_sleep 2")
    k.e("s_add_u32 s62, s62, 1")
    k.e("s_cmp_lt_u32 s62, 0x400000")
    k.e("s_cbranch_scc1 %s" % poll)
    k.L(got)
    stamp(k, 3)
    k.e("s_barrier")
    k.e("s_lshl_b32 s61, s60, 16")
    k.e("s_mul_i32 s62, s%d, 8192" % S_WAVE)
    k.e("s_add_u32 s61, s61, s62")
    k.e("v_and_b32 v1, 63, v0")
    k.e("v_lshlrev_b32 v1, 4, v1")
    F = r.FX[0][0]
    for i in range(8):
        k.e("buffer_load_dwordx4 %s, v1, s[52:55], s61 offen offset:%d sc1" % (vr(F + 4 * i, 4), (i & 3) * 1024))
        if i == 3:
            k.e("s_add_u32 s61, s61, 4096")
    k.e("s_waitcnt vmcnt(0)")
    for i in range(32):
        k.e("v_add_f32 v%d, v%d, v%d" % (r.acc_base + i, r.acc_base + i, F + i))
    gemm_epilogue2(k, c, r, 'final')
    stamp(k, 4)
    stamp_flush(k, 5)
    k.e("s_endpgm")
    k.L(h1)
    make_srd(k, S_SRDX, 48, WS_H3, SZ_H3)
    make_srd(k, S_SRDW, 46, 0, 3584 * 1024 * 2)
    k.e("s_mov_b32 s%d, 7168" % S_LDX)
    k.e("s_mov_b32 s%d, 36" % S_NK)
    gemm_lane_setup(k, c, r)
    k.e("s_mul_i32 s%d, s%d, s%d" % (S_KX, S_M0, S_LDX))
    k.e("s_add_u32 s%d, s%d, %d" % (S_KX, S_KX, 20 * 128))
    k.e("s_lshl_b32 s%d, s%d, 1" % (S_KW, S_N0))
    k.e("s_add_u32 s%d, s%d, %d" % (S_KW, S_KW, 20 * 64 * 2048))
    gemm_kloop_pp(k, c, r)
    k.nop(15); k.nop(7)
    k.e("s_lshl_b32 s61, s60, 16")
    k.e("s_mul_i32 s62, s%d, 8192" % S_WAVE)
    k.e("s_add_u32 s61, s61, s62")
    k.e("v_and_b32 v1, 63, v0")
    k.e("v_lshlrev_b32 v1, 4, v1")
    for i in range(8):
        k.e("buffer_store_dwordx4 %s, v1, s[52:55], s61 offen offset:%d sc1" % (vr(r.acc_base + 4 * i, 4), (i & 3) * 1024))
        if i == 3:
            k.e("s_add_u32 s61, s61, 4096")
    k.e("s_waitcnt vmcnt(0)")
    k.e("s_barrier")
    k.e("s_cmp_lg_u32 s%d, 0" % S_WAVE)
    k.e("s_cbranch_scc1 %s" % end)
    k.e("s_lshl_b32 s61, s60, 2")
    k.e("v_mov_b32 v1, s61")
    k.e("v_mov_b32 v2, 0x5a5a")
    k.e("v_cmp_eq_u32 vcc, 0, v0")
    k.e("s_and_saveexec_b64 s[62:63], vcc")
    k.e("buffer_store_dword v2, v1, s[56:59], 0 offen sc1")
    k.L(end)
    k.e("s_endpgm")
    return k, r.end, c.LDS, 512


def emit_softmax_pm(k, d, ep_, em_, tmp, vperm):
    mx, mn, t0, t1, sp, sm = tmp, tmp + 1, tmp + 2, tmp + 3, tmp + 4, tmp + 5
    E = tmp + 6
    for i in range(8):
        k.e("v_cvt_pk_bf16_f32 v%d, v%d, v%d" % (t0, d + 2 * i, d + 2 * i + 1))
        k.e("v_lshlrev_b32 v%d, 16, v%d" % (d + 2 * i, t0))
        k.e("v_and_b32 v%d, 0xffff0000, v%d" % (d + 2 * i + 1, t0))
    k.e("v_max_f32 v%d, v%d, v%d" % (mx, d, d + 1))
    k.e("v_min_f32 v%d, v%d, v%d" % (mn, d, d + 1))
    for i in range(1, 8):
        k.e("v_max3_f32 v%d, v%d, v%d, v%d" % (mx, mx, d + 2 * i, d + 2 * i + 1))
        k.e("v_min3_f32 v%d, v%d, v%d, v%d" % (mn, mn, d + 2 * i, d + 2 * i + 1))
    k.e("ds_bpermute_b32 v%d, v%d, v%d" % (t0, vperm, mx))
    k.e("ds_bpermute_b32 v%d, v%d, v%d" % (t1, vperm, mn))
    k.e("s_waitcnt lgkmcnt(0)")
    k.e("v_max_f32 v%d, v%d, v%d" % (mx, mx, t0))
    k.e("v_min_f32 v%d, v%d, v%d" % (mn, mn, t1))
    k.e("v_mul_f32 v%d, 0x%x, v%d" % (mx, LOG2E ^ 0x80000000, mx))
    k.e("v_mul_f32 v%d, 0x%x, v%d" % (mn, LOG2E, mn))
    k.e("v_mov_b32 v%d, 0x%x" % (t0, LOG2E))
    for i in range(16):
        k.e("v_fma_f32 v%d, v%d, v%d, v%d" % (E + i, d + i, t0, mx))
        k.e("v_fma_f32 v%d, -v%d, v%d, v%d" % (E + 16 + i, d + i, t0, mn))
        k.e("v_exp_f32 v%d, v%d" % (E + i, E + i))
        k.e("v_exp_f32 v%d, v%d" % (E + 16 + i, E + 16 + i))
    k.nop(0)
    k.e("v_add_f32 v%d, v%d, v%d" % (sp, E, E + 1))
    k.e("v_add_f32 v%d, v%d, v%d" % (sm, E + 16, E + 17))
    for i in range(2, 16):
        k.e("v_add_f32 v%d, v%d, v%d" % (sp, sp, E + i))
        k.e("v_add_f32 v%d, v%d, v%d" % (sm, sm, E + 16 + i))
    k.e("ds_bpermute_b32 v%d, v%d, v%d" % (t0, vperm, sp))
    k.e("ds_bpermute_b32 v%d, v%d, v%d" % (t1, vperm, sm))
    k.e("s_waitcnt lgkmcnt(0)")
    k.e("v_add_f32 v%d, v%d, v%d" % (sp, sp, t0))
    k.e("v_add_f32 v%d, v%d, v%d" % (sm, sm, t1))
    k.e("v_rcp_f32 v%d, v%d" % (sp, sp))
    k.e("v_rcp_f32 v%d, v%d" % (sm, sm))
    k.nop(0)
    for i in range(8):
        k.e("v_mul_f32 v%d, v%d, v%d" % (E + 2 * i, E + 2 * i, sp))
        k.e("v_mul_f32 v%d, v%d, v%d" % (E + 2 * i + 1, E + 2 * i + 1, sp))
        k.e("v_cvt_pk_bf16_f32 v%d, v%d, v%d" % (ep_ + i, E + 2 * i, E + 2 * i + 1))
        k.e("v_mul_f32 v%d, v%d, v%d" % (E + 16 + 2 * i, E + 16 + 2 * i, sm))
        k.e("v_mul_f32 v%d, v%d, v%d" % (E + 16 + 2 * i + 1, E + 16 + 2 * i + 1, sm))
        k.e("v_cvt_pk_bf16_f32 v%d, v%d, v%d" % (em_ + i, E + 16 + 2 * i, E + 16 + 2 * i + 1))


def emit_wphi_load(k, srd, s_hd, wp, vlane31, vh, t0, tmp=144):
    k.e("v_lshlrev_b32 v%d, 9, v%d" % (t0, vh))
    k.e("v_lshl_add_u32 v%d, v%d, 1, v%d" % (t0, vlane31, t0))
    k.e("s_lshl_b32 s40, s%d, 11" % s_hd)
    for t in range(2):
        for e in range(8):
            k.e("buffer_load_ushort v%d, v%d, %s, s40 offen offset:%d" % (tmp + 8 * t + e, t0, sr(srd, 4), (16 * t + e) * 64))
    k.e("s_waitcnt vmcnt(0)")
    for t in range(2):
        for e in range(0, 8, 2):
            k.e("v_lshl_or_b32 v%d, v%d, 16, v%d" % (wp + 4 * t + e // 2, tmp + 8 * t + e + 1, tmp + 8 * t + e))


def gen_kv():
    k = K("kv_kernel")
    end = k.lab("END")
    k.e("s_cmp_ge_u32 s2, 256")
    k.e("s_cbranch_scc1 %s" % end)
    load_ptr(k, 4, "ws"); load_ptr(k, 6, "w_phi")
    k.e("v_lshrrev_b32 v1, 6, v0")
    k.nop(0)
    k.e("v_readfirstlane_b32 s12, v1")
    k.e("s_waitcnt lgkmcnt(0)")
    make_srd(k, 16, 4, WS_QKV, SZ_QKV)
    make_srd(k, 20, 6, 0, 32 * 32 * 32 * 2)
    make_srd(k, 24, 4, WS_KVP, 256 * KVP_STRIDE)
    k.e("s_and_b32 s13, s2, 31")
    k.e("s_lshr_b32 s14, s2, 5")
    k.e("v_and_b32 v1, 63, v0")
    k.e("v_and_b32 v2, 31, v0")
    k.e("v_bfe_u32 v3, v0, 5, 1")
    k.e("v_xor_b32 v4, 32, v1")
    k.e("v_lshlrev_b32 v4, 2, v4")
    WP = 8
    emit_wphi_load(k, 20, 13, WP, 2, 3, 5)
    k.e("s_mul_i32 s15, s12, 6144")
    k.e("v_lshlrev_b32 v5, 8, v3")
    k.e("v_lshl_add_u32 v5, v2, 1, v5")
    k.e("v_add_u32 v5, s15, v5")
    k.e("v_lshlrev_b32 v6, 6, v2")
    k.e("v_lshl_add_u32 v6, v3, 4, v6")
    k.e("v_add_u32 v6, s15, v6")
    k.e("v_bfe_u32 v7, v0, 2, 2")
    k.e("v_lshl_add_u32 v7, v3, 3, v7")
    k.e("v_lshlrev_b32 v7, 6, v7")
    k.e("v_bfe_u32 v16, v0, 4, 1")
    k.e("v_lshl_add_u32 v7, v16, 5, v7")
    k.e("v_and_b32 v16, 3, v0")
    k.e("v_lshl_add_u32 v7, v16, 3, v7")
    k.e("v_add_u32 v7, s15, v7")
    k.e("v_add_u32 v7, 4096, v7")
    k.e("v_lshlrev_b32 v17, 4, v1")
    k.e("v_add_u32 v17, s15, v17")
    for i in range(4):
        k.e("v_mov_b32 v%d, 0x3f803f80" % (20 + i))
    D2 = [64, 80]
    D3 = [96, 112]
    for i in range(64):
        k.e("v_mov_b32 v%d, 0" % (64 + i))
    D1 = 128
    KF = 24
    VT = 32
    PP, PM = 40, 48
    AF = 56
    BF = 60
    TMP = 144
    for tile in range(2):
        k.e("s_lshl_b32 s30, s14, 8")
        k.e("s_lshl_b32 s31, s12, 6")
        k.e("s_add_u32 s30, s30, s31")
        k.e("s_add_u32 s30, s30, %d" % (tile * 32))
        k.e("s_mul_i32 s31, s30, 6144")
        k.e("s_lshl_b32 s32, s13, 6")
        k.e("s_add_u32 s31, s31, s32")
        k.e("v_mul_u32_u24 v18, 6144, v2")
        k.e("v_lshl_add_u32 v18, v3, 4, v18")
        k.e("s_add_u32 s33, s31, 2048")
        k.e("buffer_load_dwordx4 v[%d:%d], v18, s[16:19], s33 offen" % (KF, KF + 3))
        k.e("buffer_load_dwordx4 v[%d:%d], v18, s[16:19], s33 offen offset:32" % (KF + 4, KF + 7))
        k.e("v_lshrrev_b32 v19, 2, v1")
        k.e("v_mul_u32_u24 v19, 6144, v19")
        k.e("v_and_b32 v16, 3, v1")
        k.e("v_lshl_add_u32 v19, v16, 4, v19")
        k.e("s_add_u32 s33, s31, 4096")
        k.e("buffer_load_dwordx4 v[%d:%d], v19, s[16:19], s33 offen" % (VT, VT + 3))
        k.e("s_add_u32 s33, s33, %d" % (16 * 6144))
        k.e("buffer_load_dwordx4 v[%d:%d], v19, s[16:19], s33 offen" % (VT + 4, VT + 7))
        for i in range(16):
            k.e("v_mov_b32 v%d, 0" % (D1 + i))
        k.e("s_waitcnt vmcnt(0)")
        k.e("ds_write_b128 v17, v[%d:%d] offset:4096" % (VT, VT + 3))
        k.e("ds_write_b128 v17, v[%d:%d] offset:5120" % (VT + 4, VT + 7))
        for t in range(2):
            k.e("v_mfma_f32_32x32x16_bf16 %s, %s, %s, %s" % (vr(D1, 16), vr(WP + 4 * t, 4), vr(KF + 4 * t, 4), vr(D1, 16)))
        k.nop(15); k.nop(3)
        emit_softmax_pm(k, D1, PP, PM, TMP, 4)
        for half, P in ((0, PP), (1, PM)):
            for i in range(8):
                r0 = 2 * i
                f = 8 * (r0 >> 2) + (r0 & 3)
                k.e("ds_write_b16 v5, v%d offset:%d" % (P + i, half * 2048 + f * 64))
                k.e("ds_write_b16_d16_hi v5, v%d offset:%d" % (P + i, half * 2048 + (f + 1) * 64))
        k.e("s_waitcnt lgkmcnt(0)")
        for t in range(2):
            k.e("ds_read_b64_tr_b16 %s, v7 offset:%d" % (vr(BF, 2), (16 * t) * 64))
            k.e("ds_read_b64_tr_b16 %s, v7 offset:%d" % (vr(BF + 2, 2), (16 * t + 4) * 64))
            for ft in range(2):
                k.e("ds_read_b128 %s, v6 offset:%d" % (vr(AF, 4), ft * 2048 + t * 32))
                k.e("s_waitcnt lgkmcnt(0)")
                k.e("v_mfma_f32_32x32x16_bf16 %s, %s, %s, %s" % (vr(D2[ft], 16), vr(AF, 4), vr(BF, 4), vr(D2[ft], 16)))
                k.e("v_mfma_f32_32x32x16_bf16 %s, %s, %s, %s" % (vr(D3[ft], 16), vr(AF, 4), vr(20, 4), vr(D3[ft], 16)))
                k.nop(7)
        k.nop(7)
    k.nop(15); k.nop(3)
    k.e("s_mul_i32 s15, s12, 8448")
    k.e("v_lshlrev_b32 v5, 9, v3")
    k.e("v_lshl_add_u32 v5, v2, 2, v5")
    k.e("v_add_u32 v5, s15, v5")
    k.e("v_add_u32 v5, 24576, v5")
    for ft in range(2):
        for r_ in range(16):
            f = 32 * ft + 8 * (r_ >> 2) + (r_ & 3)
            k.e("ds_write_b32 v5, v%d offset:%d" % (D2[ft] + r_, f * 128))
    k.e("v_lshlrev_b32 v6, 4, v3")
    k.e("v_add_u32 v6, s15, v6")
    k.e("v_add_u32 v6, 24576, v6")
    for ft in range(2):
        for r_ in range(16):
            f = 32 * ft + 8 * (r_ >> 2) + (r_ & 3)
            k.e("ds_write_b32 v6, v%d offset:%d" % (D3[ft] + r_, 8192 + f * 4))
    k.e("s_waitcnt lgkmcnt(0)")
    k.e("s_barrier")
    k.e("s_lshl_b32 s30, s13, 3")
    k.e("s_add_u32 s30, s30, s14")
    k.e("s_mul_i32 s30, s30, %d" % KVP_STRIDE)
    k.e("v_lshlrev_b32 v5, 2, v0")
    for j in range(9):
        if j == 8:
            k.e("v_cmp_gt_u32 vcc, 64, v0")
            k.e("s_and_saveexec_b64 s[42:43], vcc")
        for w in range(4):
            k.e("ds_read_b32 v%d, v5 offset:%d" % (8 + w, 24576 + w * 8448 + j * 1024))
        k.e("s_waitcnt lgkmcnt(0)")
        k.e("v_add_f32 v8, v8, v9")
        k.e("v_add_f32 v10, v10, v11")
        k.e("v_add_f32 v8, v8, v10")
        k.e("s_add_u32 s31, s30, %d" % (j * 1024))
        k.e("buffer_store_dword v8, v5, s[24:27], s31 offen")
    k.L(end)
    k.e("s_endpgm")
    return k, 184, 24576 + 4 * 8448, 256


def gen_attn(nwaves=8):
    k = K("attn_kernel")
    end = k.lab("END")
    k.e("s_cmp_ge_u32 s2, 32")
    k.e("s_cbranch_scc1 %s" % end)
    load_ptr(k, 4, "ws"); load_ptr(k, 6, "w_phi")
    k.e("v_lshrrev_b32 v1, 6, v0")
    k.nop(0)
    k.e("v_readfirstlane_b32 s12, v1")
    k.e("s_waitcnt lgkmcnt(0)")
    make_srd(k, 16, 4, WS_QKV, SZ_QKV)
    make_srd(k, 20, 6, 0, 32 * 32 * 32 * 2)
    make_srd(k, 24, 4, WS_KVP, 256 * KVP_STRIDE)
    make_srd(k, 36, 4, WS_O, SZ_ACT)
    k.e("s_mov_b32 s13, s2")
    k.e("v_and_b32 v1, 63, v0")
    k.e("v_and_b32 v2, 31, v0")
    k.e("v_bfe_u32 v3, v0, 5, 1")
    k.e("v_xor_b32 v4, 32, v1")
    k.e("v_lshlrev_b32 v4, 2, v4")
    WP = 8
    s1done = k.lab("S1D")
    k.e("s_cmp_ge_u32 s12, 4")
    k.e("s_cbranch_scc1 %s" % s1done)
    k.e("s_mul_i32 s30, s13, %d" % (8 * KVP_STRIDE))
    k.e("v_lshlrev_b32 v5, 2, v0")
    k.e("v_lshlrev_b32 v6, 7, v2")
    k.e("v_lshrrev_b32 v7, 5, v0")
    k.e("v_lshl_add_u32 v6, v7, 1, v6")
    for j in range(8):
        for cch in range(8):
            k.e("s_add_u32 s31, s30, %d" % (cch * KVP_STRIDE + j * 1024))
            k.e("buffer_load_dword v%d, v5, s[24:27], s31 offen" % (64 + j * 8 + cch))
    k.e("v_cmp_gt_u32 vcc, 64, v0")
    k.e("s_and_saveexec_b64 s[42:43], vcc")
    for cch in range(8):
        k.e("s_add_u32 s31, s30, %d" % (cch * KVP_STRIDE + 8 * 1024))
        k.e("buffer_load_dword v%d, v5, s[24:27], s31 offen" % (128 + cch))
    k.e("s_mov_b64 exec, s[42:43]")
    k.e("s_waitcnt vmcnt(0)")
    for j in range(9):
        b = 64 + j * 8
        for cch in range(1, 8):
            k.e("v_add_f32 v%d, v%d, v%d" % (b, b, b + cch))
        k.e("v_cvt_pk_bf16_f32 v%d, v%d, v%d" % (b, b, b))
        if j < 8:
            k.e("ds_write_b16 v6, v%d offset:%d" % (b, 16 * j))
    k.e("v_lshlrev_b32 v6, 1, v0")
    k.e("v_add_u32 v6, 4096, v6")
    k.e("s_and_saveexec_b64 s[42:43], vcc")
    k.e("ds_write_b16 v6, v128")
    k.e("s_mov_b64 exec, s[42:43]")
    k.L(s1done)
    emit_wphi_load(k, 20, 13, WP, 2, 3, 5)
    k.e("s_waitcnt lgkmcnt(0)")
    k.e("s_barrier")
    k.e("v_lshlrev_b32 v5, 7, v2")
    k.e("v_lshl_add_u32 v5, v3, 3, v5")
    k.e("v_lshlrev_b32 v6, 3, v3")
    k.e("v_add_u32 v6, 4096, v6")
    QF = 24
    PP, PM = 40, 48
    AF, ZF = 56, 60
    DN, DD = 64, 80
    D1 = 128
    TMP = 144
    QN = 184
    k.e("s_mov_b32 s44, s12")
    k.e("v_mul_u32_u24 v19, 6144, v2")
    k.e("v_lshl_add_u32 v19, v3, 4, v19")
    k.e("s_lshl_b32 s32, s13, 6")
    k.e("s_mul_i32 s45, s44, %d" % (32 * 6144))
    k.e("s_add_u32 s45, s45, s32")
    k.e("buffer_load_dwordx4 v[%d:%d], v19, s[16:19], s45 offen" % (QN, QN + 3))
    k.e("buffer_load_dwordx4 v[%d:%d], v19, s[16:19], s45 offen offset:32" % (QN + 4, QN + 7))
    loop = k.lab("TL")
    k.L(loop)
    k.e("s_lshl_b32 s30, s44, 5")
    k.e("s_waitcnt vmcnt(0)")
    for i in range(8):
        k.e("v_mov_b32 v%d, v%d" % (QF + i, QN + i))
    k.e("s_add_u32 s45, s45, %d" % (nwaves * 32 * 6144))
    k.e("buffer_load_dwordx4 v[%d:%d], v19, s[16:19], s45 offen" % (QN, QN + 3))
    k.e("buffer_load_dwordx4 v[%d:%d], v19, s[16:19], s45 offen offset:32" % (QN + 4, QN + 7))
    for i in range(16):
        k.e("v_mov_b32 v%d, 0" % (D1 + i))
    for i in range(32):
        k.e("v_mov_b32 v%d, 0" % (DN + i))
    for t in range(2):
        k.e("v_mfma_f32_32x32x16_bf16 %s, %s, %s, %s" % (vr(D1, 16), vr(WP + 4 * t, 4), vr(QF + 4 * t, 4), vr(D1, 16)))
    k.nop(15); k.nop(3)
    emit_softmax_pm(k, D1, PP, PM, TMP, 4)
    for tt in range(4):
        B = (PP if tt < 2 else PM) + 4 * (tt & 1)
        k.e("ds_read_b64 %s, v5 offset:%d" % (vr(AF, 2), tt * 32))
        k.e("ds_read_b64 %s, v5 offset:%d" % (vr(AF + 2, 2), tt * 32 + 16))
        k.e("ds_read_b64 %s, v6 offset:%d" % (vr(ZF, 2), tt * 32))
        k.e("ds_read_b64 %s, v6 offset:%d" % (vr(ZF + 2, 2), tt * 32 + 16))
        k.e("s_waitcnt lgkmcnt(0)")
        k.e("v_mfma_f32_32x32x16_bf16 %s, %s, %s, %s" % (vr(DN, 16), vr(AF, 4), vr(B, 4), vr(DN, 16)))
        k.e("v_mfma_f32_32x32x16_bf16 %s, %s, %s, %s" % (vr(DD, 16), vr(ZF, 4), vr(B, 4), vr(DD, 16)))
        k.nop(7)
    k.nop(15); k.nop(3)
    rnd_bf16(k, DD)
    k.e("v_add_f32 v%d, 0x358637bd, v%d" % (DD, DD))
    rnd_bf16(k, DD)
    k.e("v_rcp_f32 v%d, v%d" % (DD + 1, DD))
    k.nop(0)
    k.e("v_lshlrev_b32 v18, 11, v2")
    k.e("v_lshl_add_u32 v18, v3, 3, v18")
    k.e("s_lshl_b32 s31, s30, 11")
    k.e("s_add_u32 s31, s31, s32")
    for q in range(4):
        for i in range(4):
            x = DN + 4 * q + i
            rnd_bf16(k, x)
            k.e("v_mul_f32 v16, v%d, v%d" % (x, DD + 1))
            k.e("v_fma_f32 v17, -v16, v%d, v%d" % (DD, x))
            k.e("v_fma_f32 v%d, v17, v%d, v16" % (x, DD + 1))
        k.e("v_cvt_pk_bf16_f32 v16, v%d, v%d" % (DN + 4 * q, DN + 4 * q + 1))
        k.e("v_cvt_pk_bf16_f32 v17, v%d, v%d" % (DN + 4 * q + 2, DN + 4 * q + 3))
        k.e("buffer_store_dwordx2 v[16:17], v18, s[36:39], s31 offen offset:%d" % (q * 16))
        k.nop(1)
    k.e("s_add_u32 s44, s44, %d" % nwaves)
    k.e("s_cmp_lt_u32 s44, 64")
    k.e("s_cbranch_scc1 %s" % loop)
    k.L(end)
    k.e("s_endpgm")
    return k, 192, 8192, 64 * nwaves


def gemm4_wrap():
    r = gen_gemm4()
    return r


def merge(name, g1, n1, g2):
    r1 = g1(); r2 = g2()
    k = K(name)
    l2 = k.lab("BODY2")
    k.e("s_cmp_ge_u32 s2, %d" % n1)
    k.e("s_cbranch_scc1 %s" % l2)
    k.lines += r1[0].lines
    k.L(l2)
    k.e("s_sub_u32 s2, s2, %d" % n1)
    k.lines += r2[0].lines
    lds = max(r1[2] if len(r1) > 2 else 0, r2[2] if len(r2) > 2 else 0)
    b1 = r1[3] if len(r1) > 3 else 256
    b2 = r2[3] if len(r2) > 3 else 256
    assert b1 == b2, (b1, b2)
    return k, max(r1[1], r2[1]), lds, b1


HEADER = open("gated_mix__linear_kernel_hedgehog__mixer_s_mlp__prompt.s.ref").read().split("; Override launch")[0]


def main(out):
    kernels = []
    launches = []

    def add(gen, grid, block=None, lds=None):
        res = gen()
        k, v = res[0], res[1]
        l = res[2] if len(res) > 2 else 0
        b = res[3] if len(res) > 3 else 256
        kernels.append((k, v))
        launches.append("; @launch kernel=%s grid=(%d,1,1) block=(%d,1,1) lds=%d" % (k.name, grid, b, l))

    add(gen_prep, 1024)
    add(gen_gemm1, 256)
    add(lambda: merge("g2kv_kernel", gen_gemm2, 256, gen_kv), 512)
    add(gen_ln1, 512)
    add(lambda: merge("g4at_kernel", gen_gemm4, 224, gen_attn), 256)
    add(gen_gemm5, 256)
    txt = [HEADER.rstrip("\n")] + launches + ['.amdgcn_target "amdgcn-amd-amdhsa--gfx950"', ".text"]
    for k, v in kernels:
        txt += k.text(v)
    txt += ['.section .rodata,"a"', ".p2align 6"]
    for k, v in kernels:
        txt += desc(k.name, v)
        txt += [".p2align 6"]
    open(out, "w").write("\n".join(txt) + "\n")


if __name__ == "__main__":
    main(sys.argv[1] if len(sys.argv) > 1 else "gated_mix__linear_kernel_hedgehog__mixer_s_mlp__prompt.s")
```

```python
import sys, re

import os
DBG = set(os.environ.get('GENDBG', '').split(','))
MB = 1 << 20
WS_LNX = 0
WS_QKV = 4 * MB
WS_H = 16 * MB
WS_X1 = 20 * MB
WS_LNX1 = 24 * MB
WS_H3 = 28 * MB
WS_O = 44 * MB
WS_KVP = 48 * MB
WS_G = 52 * MB
WS_FLAG = 53 * MB
WS_PART = 56 * MB

KA = dict(A_x=0, wqkv=8, w_phi=16, wo=24, B_x=32, w1=40, w2=48, w3=56, w4=64, gate_w=72, out=80, dbg=88, ws=96)
SZ_ACT = 2048 * 1024 * 2
SZ_QKV = 2048 * 3072 * 2
SZ_H3 = 2048 * 3584 * 2
KVP_STRIDE = (64 * 32 + 64) * 4


class K:
    def __init__(self, name):
        self.name = name
        self.lines = []
        self.nlab = 0
        self.max_v = 0
        self.max_s = 0

    def e(self, s):
        if s.startswith("buffer_"):
            m = re.search(r"offset:(\d+)", s)
            assert not m or int(m.group(1)) < 4096, s
        if s.startswith("ds_"):
            m = re.search(r"offset:(\d+)", s)
            assert not m or int(m.group(1)) < 65536, s
        self.lines.append("    " + s)

    def c(self, s):
        self.lines.append("    ; " + s)

    def lab(self, base="L"):
        self.nlab += 1
        return "%s_%s_%d" % (base, self.name, self.nlab)

    def L(self, l):
        self.lines.append(l + ":")

    def nop(self, n=0):
        self.e("s_nop %d" % n)

    def text(self, vgprs, sgprs=102, lds=0):
        v = (vgprs + 7) // 8 * 8
        acc = (vgprs + 3) // 4 * 4
        hdr = [
            ".globl %s" % self.name,
            ".p2align 8",
            ".type %s,@function" % self.name,
            "%s:" % self.name,
        ]
        return hdr + self.lines


def desc(name, vgprs, sgprs=104):
    v = (vgprs + 7) // 8 * 8
    return [
        ".amdhsa_kernel %s" % name,
        "  .amdhsa_next_free_vgpr %d" % v,
        "  .amdhsa_next_free_sgpr %d" % min(sgprs, 102),
        "  .amdhsa_accum_offset %d" % v,
        "  .amdhsa_group_segment_fixed_size 0",
        "  .amdhsa_kernarg_size 104",
        "  .amdhsa_user_sgpr_count 2",
        "  .amdhsa_user_sgpr_kernarg_segment_ptr 1",
        "  .amdhsa_system_sgpr_workgroup_id_x 1",
        ".end_amdhsa_kernel",
    ]


def vr(a, n=1):
    return "v%d" % a if n == 1 else "v[%d:%d]" % (a, a + n - 1)


def sr(a, n=1):
    return "s%d" % a if n == 1 else "s[%d:%d]" % (a, a + n - 1)


def load_ptr(k, dst, key):
    k.e("s_load_dwordx2 %s, s[0:1], %d" % (sr(dst, 2), KA[key]))


def make_srd(k, dst, ptr, off, size):
    k.e("s_add_u32 s%d, s%d, 0x%x" % (dst, ptr, off))
    k.e("s_addc_u32 s%d, s%d, 0" % (dst + 1, ptr + 1))
    k.e("s_mov_b32 s%d, 0x%x" % (dst + 2, size))
    k.e("s_mov_b32 s%d, 0x00020000" % (dst + 3))


LOG2E = 0x3FB8AA3B


def rnd_bf16(k, v, tmp=None):
    k.e("v_cvt_pk_bf16_f32 %s, %s, %s" % (vr(v), vr(v), vr(v)))
    k.e("v_lshlrev_b32 %s, 16, %s" % (vr(v), vr(v)))


def wave_reduce(k, v, vaddr, vtmp, op="v_add_f32"):
    for m in (1, 2, 4, 8, 16, 32):
        k.e("v_xor_b32 %s, %d, %s" % (vr(vtmp), m * 4, vr(vaddr)))
        k.e("ds_bpermute_b32 %s, %s, %s" % (vr(vtmp), vr(vtmp), vr(v)))
        k.e("s_waitcnt lgkmcnt(0)")
        k.e("%s %s, %s, %s" % (op, vr(v), vr(v), vr(vtmp)))


def emit_ln(k, s_row, srd_in, srd_out):
    k.e("v_and_b32 v1, 63, v0")
    k.e("v_lshlrev_b32 v2, 4, v1")
    k.e("s_lshl_b32 s40, s%d, 11" % s_row)
    k.e("v_add_u32 v2, s40, v2")
    k.e("buffer_load_dwordx4 v[8:11], v2, %s, 0 offen" % sr(srd_in, 4))
    k.e("buffer_load_dwordx4 v[12:15], v2, %s, 0 offen offset:1024" % sr(srd_in, 4))
    k.e("v_lshlrev_b32 v3, 2, v1")
    k.e("s_waitcnt vmcnt(0)")
    for i in range(8):
        k.e("v_lshlrev_b32 v%d, 16, v%d" % (16 + 2 * i, 8 + i))
        k.e("v_and_b32 v%d, 0xffff0000, v%d" % (17 + 2 * i, 8 + i))
    k.e("v_add_f32 v4, v16, v17")
    for i in range(2, 16):
        k.e("v_add_f32 v4, v4, v%d" % (16 + i))
    wave_reduce(k, 4, 3, 5)
    k.e("v_mul_f32 v4, 0x3a800000, v4")
    k.e("v_sub_f32 v5, v16, v4")
    k.e("v_mul_f32 v6, v5, v5")
    for i in range(1, 16):
        k.e("v_sub_f32 v5, v%d, v4" % (16 + i))
        k.e("v_fmac_f32 v6, v5, v5")
    wave_reduce(k, 6, 3, 5)
    k.e("v_mul_f32 v6, 0x3a800000, v6")
    rnd_bf16(k, 4)
    rnd_bf16(k, 6)
    k.e("v_add_f32 v6, 0x3727c5ac, v6")
    rnd_bf16(k, 6)
    k.e("v_sqrt_f32 v6, v6")
    k.nop(0)
    rnd_bf16(k, 6)
    k.e("v_rcp_f32 v7, v6")
    k.nop(0)
    for i in range(16):
        x = 16 + i
        k.e("v_sub_f32 v%d, v%d, v4" % (x, x))
        rnd_bf16(k, x)
        k.e("v_mul_f32 v5, v%d, v7" % x)
        k.e("v_fma_f32 v32, -v5, v6, v%d" % x)
        k.e("v_fma_f32 v%d, v32, v7, v5" % x)
    for i in range(8):
        k.e("v_cvt_pk_bf16_f32 v%d, v%d, v%d" % (8 + i, 16 + 2 * i, 17 + 2 * i))
    k.e("buffer_store_dwordx4 v[8:11], v2, %s, 0 offen" % sr(srd_out, 4))
    k.e("buffer_store_dwordx4 v[12:15], v2, %s, 0 offen offset:1024" % sr(srd_out, 4))


def gen_prep():
    k = K("prep_kernel")
    k.e("s_cmp_ge_u32 s2, 1024")
    end = k.lab("END")
    k.e("s_cbranch_scc1 %s" % end)
    load_ptr(k, 4, "A_x")
    load_ptr(k, 6, "ws")
    load_ptr(k, 8, "A_x")
    load_ptr(k, 10, "gate_w")
    k.e("v_lshrrev_b32 v1, 6, v0")
    k.nop(0)
    k.e("v_readfirstlane_b32 s12, v1")
    load_ptr(k, 44, "wqkv"); load_ptr(k, 46, "w1")
    k.e("s_waitcnt lgkmcnt(0)")
    npf = k.lab("NOPF")
    if 'preppf' in DBG:
        k.e("s_cmp_lg_u32 s12, 0")
    else:
        k.e("s_cmp_eq_u32 s12, s12")
    k.e("s_cbranch_scc1 %s" % npf)
    make_srd(k, 32, 44, 0, 1024 * 3072 * 2)
    make_srd(k, 36, 46, 0, 1024 * 1024 * 2)
    k.e("v_lshlrev_b32 v2, 7, v0")
    k.e("v_mov_b32 v3, 0x7ffffff0")
    k.e("v_cmp_gt_u32 vcc, 48, v0")
    k.e("v_cndmask_b32 v2, v3, v2, vcc")
    k.e("s_mul_i32 s40, s2, %d" % (48 * 128))
    k.e("buffer_load_dword v47, v2, s[32:35], s40 offen")
    k.e("v_lshlrev_b32 v2, 7, v0")
    k.e("v_cmp_gt_u32 vcc, 16, v0")
    k.e("v_cndmask_b32 v2, v3, v2, vcc")
    k.e("s_lshl_b32 s40, s2, 11")
    k.e("buffer_load_dword v47, v2, s[36:39], s40 offen")
    k.L(npf)
    nz = k.lab("NOZERO")
    k.e("s_cmp_lg_u32 s2, 0")
    k.e("s_cbranch_scc1 %s" % nz)
    make_srd(k, 28, 6, WS_FLAG, 1024)
    k.e("v_lshlrev_b32 v1, 2, v0")
    k.e("v_mov_b32 v2, 0")
    k.e("buffer_store_dword v2, v1, s[28:31], 0 offen")
    k.L(nz)
    gate = k.lab("GATE")
    k.e("s_cmp_ge_u32 s2, 512")
    k.e("s_cbranch_scc1 %s" % gate)
    k.e("s_lshl_b32 s13, s2, 2")
    k.e("s_add_u32 s13, s13, s12")
    make_srd(k, 16, 4, 0, SZ_ACT)
    make_srd(k, 20, 6, WS_LNX, SZ_ACT)
    emit_ln(k, 13, 16, 20)
    k.e("s_endpgm")
    k.L(gate)
    k.e("s_sub_u32 s13, s2, 512")
    k.e("s_lshl_b32 s13, s13, 2")
    k.e("s_add_u32 s13, s13, s12")
    make_srd(k, 16, 8, 0, SZ_ACT)
    make_srd(k, 20, 10, 0, 2048)
    make_srd(k, 24, 6, WS_G, 2048 * 4)
    k.e("v_and_b32 v1, 63, v0")
    k.e("v_lshlrev_b32 v2, 4, v1")
    k.e("s_lshl_b32 s40, s13, 11")
    k.e("v_add_u32 v3, s40, v2")
    k.e("buffer_load_dwordx4 v[8:11], v3, s[16:19], 0 offen")
    k.e("buffer_load_dwordx4 v[12:15], v3, s[16:19], 0 offen offset:1024")
    k.e("buffer_load_dwordx4 v[32:35], v2, s[20:23], 0 offen")
    k.e("buffer_load_dwordx4 v[36:39], v2, s[20:23], 0 offen offset:1024")
    k.e("v_lshlrev_b32 v3, 2, v1")
    k.e("s_waitcnt vmcnt(0)")
    for i in range(8):
        k.e("v_lshlrev_b32 v%d, 16, v%d" % (16 + 2 * i, 8 + i))
        k.e("v_and_b32 v%d, 0xffff0000, v%d" % (17 + 2 * i, 8 + i))
        k.e("v_lshlrev_b32 v4, 16, v%d" % (32 + i))
        k.e("v_and_b32 v5, 0xffff0000, v%d" % (32 + i))
        k.e("v_mul_f32 v%d, v%d, v4" % (16 + 2 * i, 16 + 2 * i))
        k.e("v_mul_f32 v%d, v%d, v5" % (17 + 2 * i, 17 + 2 * i))
        k.e("v_cvt_pk_bf16_f32 v4, v%d, v%d" % (16 + 2 * i, 17 + 2 * i))
        k.e("v_lshlrev_b32 v%d, 16, v4" % (16 + 2 * i))
        k.e("v_and_b32 v%d, 0xffff0000, v4" % (17 + 2 * i))
    k.e("v_add_f32 v4, v16, v17")
    for i in range(2, 16):
        k.e("v_add_f32 v4, v4, v%d" % (16 + i))
    wave_reduce(k, 4, 3, 5)
    rnd_bf16(k, 4)
    k.e("v_mul_f32 v4, 0xbfb8aa3b, v4")
    k.e("v_exp_f32 v4, v4")
    k.nop(0)
    k.e("v_add_f32 v4, 1.0, v4")
    k.e("v_rcp_f32 v4, v4")
    k.nop(0)
    rnd_bf16(k, 4)
    k.e("v_cmp_eq_u32 vcc, 0, v1")
    k.e("s_and_saveexec_b64 s[42:43], vcc")
    k.e("s_lshl_b32 s40, s13, 2")
    k.e("v_mov_b32 v5, s40")
    k.e("buffer_store_dword v4, v5, s[24:27], 0 offen")
    k.L(end)
    k.e("s_endpgm")
    return k, 48


def gen_ln1():
    k = K("ln1_kernel")
    end = k.lab("END")
    k.e("s_cmp_ge_u32 s2, 512")
    k.e("s_cbranch_scc1 %s" % end)
    load_ptr(k, 6, "ws")
    k.e("v_lshrrev_b32 v1, 6, v0")
    k.nop(0)
    k.e("v_readfirstlane_b32 s12, v1")
    k.e("s_waitcnt lgkmcnt(0)")
    k.e("s_lshl_b32 s13, s2, 2")
    k.e("s_add_u32 s13, s13, s12")
    make_srd(k, 16, 6, WS_X1, SZ_ACT)
    make_srd(k, 20, 6, WS_LNX1, SZ_ACT)
    emit_ln(k, 13, 16, 20)
    k.L(end)
    k.e("s_endpgm")
    return k, 48


class GemmCfg:
    def __init__(self, WM, WN, TM, TN, NS=3):
        self.WM, self.WN, self.TM, self.TN, self.NS = WM, WN, TM, TN, NS
        self.BM = WM * TM * 32
        self.BN = WN * TN * 32
        self.NW = WM * WN
        self.XB = self.BM * 128
        self.RB = self.BN * 2
        self.WB = 64 * self.RB
        self.STAGE = self.XB + self.WB
        self.XI = self.XB // 1024 // self.NW
        self.WI = self.WB // 1024 // self.NW
        assert self.XI * 1024 * self.NW == self.XB and self.WI * 1024 * self.NW == self.WB
        self.PF = 0
        self.D = self.XI + self.WI
        self.R = TM + 2 * TN
        self.LDS = self.STAGE * NS


S_SRDX, S_SRDW, S_SRDC, S_SRDR, S_SRDG = 4, 8, 12, 16, 20
S_LDX, S_LDW, S_LDC, S_NK, S_M0, S_N0, S_WAVE, S_KT = 24, 25, 26, 27, 28, 29, 30, 31
S_KX, S_KW, S_CUR, S_OLD, S_DMX, S_DMW, S_T0, S_T1 = 32, 33, 34, 35, 36, 37, 38, 39
S_SHIFT, S_FLAG, S_T2, S_T3 = 40, 41, 42, 43


class GemmRegs:
    def __init__(self, cfg, shifted=False):
        c = cfg
        self.vt = list(range(1, 8))
        p = 8
        self.vpf = p; p += 2
        self.vxa = list(range(p, p + 4)); p += 4
        self.vwa = list(range(p, p + c.TN)); p += c.TN
        self.vxo = list(range(p, p + c.XI)); p += c.XI
        self.vwo = list(range(p, p + c.WI)); p += c.WI
        self.vxs = list(range(p, p + c.XI)) if shifted else None
        if shifted:
            p += c.XI
        p = (p + 3) // 4 * 4
        self.F = []
        for s in range(2):
            X = [p + 4 * i for i in range(c.TM)]; p += 4 * c.TM
            W = [p + 4 * i for i in range(c.TN)]; p += 4 * c.TN
            self.F.append((X, W))
        p = (p + 15) // 16 * 16
        self.acc = {}
        for tn in range(c.TN):
            for tm in range(c.TM):
                self.acc[(tn, tm)] = p; p += 16
        self.acc_base = self.acc[(0, 0)]
        self.nacc = 16 * c.TM * c.TN
        self.save = p
        self.end = p
        self.ep = None


def gemm_lane_setup(k, c, r, part='all'):
    t0, t1, t2, t3 = r.vt[0:4]
    k.c("lane setup")
    k.e("v_and_b32 v%d, 63, v0" % t0)
    if part in ('all', 'dma'):
        _lane_setup_dma(k, c, r)
    if part in ('all', 'frag'):
        _lane_setup_frag(k, c, r)


def _lane_setup_dma(k, c, r):
    t0, t1, t2, t3 = r.vt[0:4]
    k.e("v_lshrrev_b32 v%d, 3, v%d" % (t1, t0))
    k.e("s_mul_i32 s%d, s%d, %d" % (S_T0, S_WAVE, c.XI * 8))
    k.e("v_add_u32 v%d, s%d, v%d" % (t1, S_T0, t1))
    k.e("v_mul_lo_u32 v%d, v%d, s%d" % (t1, t1, S_LDX))
    k.e("v_and_b32 v%d, 7, v%d" % (t2, t0))
    k.e("v_lshrrev_b32 v%d, 4, v%d" % (t3, t0))
    k.e("v_xor_b32 v%d, v%d, v%d" % (t2, t2, t3))
    for i in range(c.XI):
        k.e("s_mul_i32 s%d, s%d, %d" % (S_T0, S_WAVE, c.XI))
        k.e("s_add_u32 s%d, s%d, %d" % (S_T0, S_T0, i))
        k.e("s_and_b32 s%d, s%d, 1" % (S_T0, S_T0))
        k.e("s_lshl_b32 s%d, s%d, 2" % (S_T0, S_T0))
        k.e("v_xor_b32 v%d, s%d, v%d" % (t3, S_T0, t2))
        k.e("v_lshl_add_u32 v%d, v%d, 4, v%d" % (r.vxo[i], t3, t1))
        if i + 1 < c.XI:
            k.e("s_lshl_b32 s%d, s%d, 3" % (S_T0, S_LDX))
            k.e("v_add_u32 v%d, s%d, v%d" % (t1, S_T0, t1))
    if c.RB == 256:
        k.e("v_lshrrev_b32 v%d, 4, v%d" % (t1, t0))
        k.e("s_mul_i32 s%d, s%d, %d" % (S_T0, S_WAVE, c.WI * 4))
        k.e("v_add_u32 v%d, s%d, v%d" % (t2, S_T0, t1))
        k.e("v_mul_lo_u32 v%d, v%d, s%d" % (t2, t2, S_LDW))
        k.e("v_lshlrev_b32 v%d, 2, v%d" % (t1, t1))
        k.e("v_and_b32 v%d, 15, v%d" % (t3, t0))
        k.e("v_xor_b32 v%d, v%d, v%d" % (t3, t3, t1))
        for j in range(c.WI):
            k.e("v_lshl_add_u32 v%d, v%d, 4, v%d" % (r.vwo[j], t3, t2))
            if j + 1 < c.WI:
                k.e("s_lshl_b32 s%d, s%d, 2" % (S_T0, S_LDW))
                k.e("v_add_u32 v%d, s%d, v%d" % (t2, S_T0, t2))
    elif c.RB == 128:
        k.e("v_lshrrev_b32 v%d, 3, v%d" % (t1, t0))
        k.e("s_mul_i32 s%d, s%d, %d" % (S_T0, S_WAVE, c.WI * 8))
        k.e("v_add_u32 v%d, s%d, v%d" % (t2, S_T0, t1))
        k.e("v_mul_lo_u32 v%d, v%d, s%d" % (t2, t2, S_LDW))
        k.e("v_lshrrev_b32 v%d, 4, v%d" % (t1, t0))
        k.e("v_and_b32 v%d, 1, v%d" % (t1, t1))
        k.e("v_lshlrev_b32 v%d, 2, v%d" % (t1, t1))
        k.e("v_and_b32 v%d, 7, v%d" % (t3, t0))
        k.e("v_xor_b32 v%d, v%d, v%d" % (t3, t3, t1))
        for j in range(c.WI):
            k.e("v_lshl_add_u32 v%d, v%d, 4, v%d" % (r.vwo[j], t3, t2))
            if j + 1 < c.WI:
                k.e("s_lshl_b32 s%d, s%d, 3" % (S_T0, S_LDW))
                k.e("v_add_u32 v%d, s%d, v%d" % (t2, S_T0, t2))
    else:
        raise ValueError("RB")
    k.e("s_mul_i32 s%d, s%d, %d" % (S_DMX, S_WAVE, c.XI * 1024))
    k.e("s_mul_i32 s%d, s%d, %d" % (S_DMW, S_WAVE, c.WI * 1024))
    k.e("s_add_u32 s%d, s%d, %d" % (S_DMW, S_DMW, c.XB))


def _lane_setup_frag(k, c, r):
    t0, t1, t2, t3 = r.vt[0:4]
    k.e("s_and_b32 s%d, s%d, %d" % (S_T2, S_WAVE, c.WM - 1))
    k.e("s_lshr_b32 s%d, s%d, %d" % (S_T3, S_WAVE, c.WM.bit_length() - 1))
    k.e("v_and_b32 v%d, 31, v%d" % (t1, t0))
    k.e("s_mul_i32 s%d, s%d, %d" % (S_T0, S_T2, c.TM * 32))
    k.e("v_add_u32 v%d, s%d, v%d" % (t1, S_T0, t1))
    k.e("v_lshlrev_b32 v%d, 7, v%d" % (t1, t1))
    k.e("v_lshrrev_b32 v%d, 5, v%d" % (t2, t0))
    k.e("v_bfe_u32 v%d, v%d, 1, 3" % (t3, t0))
    k.e("v_xor_b32 v%d, v%d, v%d" % (t2, t2, t3))
    for t in range(4):
        k.e("v_xor_b32 v%d, %d, v%d" % (t3, 2 * t, t2))
        k.e("v_lshl_add_u32 v%d, v%d, 4, v%d" % (r.vxa[t], t3, t1))
    k.e("v_bfe_u32 v%d, v%d, 2, 2" % (t1, t0))
    k.e("v_lshrrev_b32 v%d, 5, v%d" % (t2, t0))
    k.e("v_lshl_add_u32 v%d, v%d, 3, v%d" % (t2, t2, t1))
    k.e("v_mul_u32_u24 v%d, %d, v%d" % (t2, c.RB, t2))
    k.e("v_bfe_u32 v%d, v%d, 4, 1" % (t3, t0))
    k.e("v_lshl_add_u32 v%d, v%d, 5, v%d" % (t2, t3, t2))
    k.e("v_and_b32 v%d, 3, v%d" % (t3, t0))
    k.e("v_lshl_add_u32 v%d, v%d, 3, v%d" % (t2, t3, t2))
    k.e("v_add_u32 v%d, %d, v%d" % (t2, c.XB, t2))
    if c.RB == 128:
        k.e("v_lshrrev_b32 v%d, 1, v%d" % (t1, t1))
    for tn in range(c.TN):
        k.e("s_mul_i32 s%d, s%d, %d" % (S_T0, S_T3, c.TN))
        k.e("s_add_u32 s%d, s%d, %d" % (S_T0, S_T0, tn))
        k.e("v_xor_b32 v%d, s%d, v%d" % (t3, S_T0, t1))
        k.e("v_lshl_add_u32 v%d, v%d, 6, v%d" % (r.vwa[tn], t3, t2))


def gemm_dma(k, c, r, s_stage, shifted):
    if 'nodma' in DBG:
        return
    xo = r.vxs if shifted else r.vxo
    k.e("s_add_u32 m0, s%d, s%d" % (s_stage, S_DMX))
    for i in range(c.XI):
        if i:
            k.e("s_add_u32 m0, m0, 1024")
        k.nop(0)
        k.e("buffer_load_dwordx4 v%d, %s, s%d offen lds" % (xo[i], sr(S_SRDX, 4), S_KX))
    k.e("s_add_u32 m0, s%d, s%d" % (s_stage, S_DMW))
    for j in range(c.WI):
        if j:
            k.e("s_add_u32 m0, m0, 1024")
        k.nop(0)
        k.e("buffer_load_dwordx4 v%d, %s, s%d offen lds" % (r.vwo[j], sr(S_SRDW, 4), S_KW))
    for p in range(c.PF):
        k.e("buffer_load_dword v%d, v%d, %s, s72 offen" % (r.vpf + 1, r.vpf, sr(64 + 4 * p, 4)))
    if c.PF:
        k.e("s_add_u32 s72, s72, %d" % (256 if c.NW == 8 else 512))


def gemm_shift_update(k, c, r, s_kidx):
    k.e("s_lshr_b32 s%d, s%d, 2" % (S_T0, s_kidx))
    k.e("s_and_b32 s%d, s%d, 1" % (S_T1, S_T0))
    k.e("s_lshr_b32 s%d, s%d, 1" % (S_T0, S_T0))
    k.e("s_lshl_b32 s%d, 2048, s%d" % (S_SHIFT, S_T0))
    k.e("s_sub_u32 s%d, 0, s%d" % (S_T0, S_SHIFT))
    k.e("s_cmp_eq_u32 s%d, 1" % S_T1)
    k.e("s_cselect_b32 s%d, s%d, s%d" % (S_SHIFT, S_SHIFT, S_T0))
    k.e("s_lshl_b32 s%d, s%d, 11" % (S_T0, S_M0))
    k.e("s_add_u32 s%d, s%d, s%d" % (S_SHIFT, S_SHIFT, S_T0))
    for i in range(c.XI):
        k.e("v_add_u32 v%d, s%d, v%d" % (r.vxs[i], S_SHIFT, r.vxo[i]))


def gemm_reads(k, c, r, t, fs):
    if 'noreads' in DBG:
        return
    X, W = r.F[fs]
    for tm in range(c.TM):
        k.e("ds_read_b128 %s, v%d offset:%d" % (vr(X[tm], 4), r.vxa[t], tm * 4096))
    for tn in range(c.TN):
        for u in range(2):
            k.e("ds_read_b64_tr_b16 %s, v%d offset:%d" % (vr(W[tn] + 2 * u, 2), r.vwa[tn], (16 * t + 4 * u) * c.RB))


def gemm_mfma(k, c, r, fs, accmap=None):
    if 'nomfma' in DBG:
        return
    X, W = r.F[fs]
    for tn in range(c.TN):
        for tm in range(c.TM):
            a = r.acc[(tn, tm)]
            k.e("v_mfma_f32_32x32x16_bf16 %s, %s, %s, %s" % (vr(a, 16), vr(W[tn], 4), vr(X[tm], 4), vr(a, 16)))


def gemm_kloop(k, c, r, shifted=False):
    D, R, NS = c.D, c.R, c.NS
    k.c("K loop prologue")
    k.e("s_mov_b32 s%d, 0" % S_CUR)
    k.e("s_lshl_b32 s%d, s%d, 6" % (S_T2, S_LDW))
    for i in range(r.nacc):
        k.e("v_mov_b32 v%d, 0" % (r.acc_base + i))
    k.e("s_mov_b32 s%d, 0" % S_KT)
    for s in range(NS):
        if shifted:
            gemm_shift_update(k, c, r, S_KT)
        k.e("s_mov_b32 s%d, %d" % (S_OLD, s * c.STAGE))
        gemm_dma(k, c, r, S_OLD, shifted)
        k.e("s_add_u32 s%d, s%d, 128" % (S_KX, S_KX))
        k.e("s_add_u32 s%d, s%d, s%d" % (S_KW, S_KW, S_T2))
        k.e("s_add_u32 s%d, s%d, 1" % (S_KT, S_KT))
    k.e("s_waitcnt vmcnt(%d)" % ((NS - 1) * D))
    k.e("s_barrier")
    gemm_reads(k, c, r, 0, 0)
    k.e("s_mov_b32 s%d, 0" % S_T3)
    loop = k.lab("KLOOP")
    last = k.lab("KLAST")
    nod = k.lab("NODMA")
    w0 = k.lab("W0")
    w1 = k.lab("W1")
    done = k.lab("KDONE")
    k.L(loop)
    for t in range(3):
        gemm_reads(k, c, r, t + 1, (t + 1) & 1)
        k.e("s_waitcnt lgkmcnt(%d)" % R)
        gemm_mfma(k, c, r, t & 1)
    k.e("s_add_u32 s%d, s%d, 1" % (S_T3, S_T3))
    k.e("s_cmp_ge_u32 s%d, s%d" % (S_T3, S_NK))
    k.e("s_cbranch_scc1 %s" % last)
    k.e("s_add_u32 s%d, s%d, %d" % (S_T0, S_T3, NS - 1))
    k.e("s_cmp_eq_u32 s%d, s%d" % (S_T0, S_KT))
    k.e("s_cbranch_scc1 %s" % w0)
    k.e("s_waitcnt vmcnt(0) lgkmcnt(0)")
    k.e("s_branch %s" % w1)
    k.L(w0)
    k.e("s_waitcnt vmcnt(%d) lgkmcnt(0)" % ((NS - 2) * D))
    k.L(w1)
    k.e("s_barrier")
    k.e("s_mov_b32 s%d, s%d" % (S_OLD, S_CUR))
    k.e("s_add_u32 s%d, s%d, %d" % (S_CUR, S_CUR, c.STAGE))
    k.e("s_cmp_eq_u32 s%d, %d" % (S_CUR, c.STAGE * NS))
    k.e("s_cselect_b32 s%d, 0, s%d" % (S_CUR, S_CUR))
    k.e("s_sub_u32 s%d, s%d, s%d" % (S_T0, S_CUR, S_OLD))
    for v in r.vxa + r.vwa:
        k.e("v_add_u32 v%d, s%d, v%d" % (v, S_T0, v))
    gemm_reads(k, c, r, 0, 0)
    k.e("s_cmp_ge_u32 s%d, s%d" % (S_KT, S_NK))
    k.e("s_cbranch_scc1 %s" % nod)
    if shifted:
        gemm_shift_update(k, c, r, S_KT)
    gemm_dma(k, c, r, S_OLD, shifted)
    k.e("s_add_u32 s%d, s%d, 128" % (S_KX, S_KX))
    k.e("s_add_u32 s%d, s%d, s%d" % (S_KW, S_KW, S_T2))
    k.e("s_add_u32 s%d, s%d, 1" % (S_KT, S_KT))
    k.L(nod)
    gemm_mfma(k, c, r, 1)
    k.e("s_branch %s" % loop)
    k.L(last)
    k.e("s_waitcnt lgkmcnt(0)")
    gemm_mfma(k, c, r, 1)
    k.L(done)
    k.e("s_sub_u32 s%d, 0, s%d" % (S_T0, S_CUR))
    for v in r.vxa + r.vwa:
        k.e("v_add_u32 v%d, s%d, v%d" % (v, S_T0, v))


def emit_gelu(k, x, t0, t1):
    k.e("v_mul_f32 v%d, v%d, v%d" % (t0, x, x))
    k.e("v_mov_b32 v%d, 0x3d372713" % t1)
    k.e("v_fma_f32 v%d, v%d, v%d, 1.0" % (t0, t0, t1))
    k.e("v_mul_f32 v%d, v%d, v%d" % (t0, t0, x))
    k.e("v_mul_f32 v%d, 0xc0135761, v%d" % (t0, t0))
    k.e("v_exp_f32 v%d, v%d" % (t0, t0))
    k.nop(0)
    k.e("v_add_f32 v%d, 1.0, v%d" % (t0, t0))
    k.e("v_rcp_f32 v%d, v%d" % (t0, t0))
    k.nop(0)
    k.e("v_mul_f32 v%d, v%d, v%d" % (x, x, t0))


def gemm_epilogue(k, c, r, mode):
    t0, t1, t2, t3, t4, t5, t6 = r.vt
    if 'noepi' in DBG:
        return
    k.c("epilogue " + mode)
    k.nop(15)
    k.nop(7)
    k.e("s_and_b32 s%d, s%d, %d" % (S_T2, S_WAVE, c.WM - 1))
    k.e("s_lshr_b32 s%d, s%d, %d" % (S_T3, S_WAVE, c.WM.bit_length() - 1))
    k.e("s_mul_i32 s%d, s%d, %d" % (S_T0, S_T2, c.TM * 32))
    k.e("s_add_u32 s%d, s%d, s%d" % (S_T0, S_T0, S_M0))
    k.e("s_mul_i32 s%d, s%d, %d" % (S_T1, S_T3, c.TN * 32))
    k.e("s_add_u32 s%d, s%d, s%d" % (S_T1, S_T1, S_N0))
    k.e("s_lshl_b32 s%d, s%d, 1" % (S_T1, S_T1))
    k.e("v_and_b32 v%d, 31, v0" % t0)
    k.e("v_add_u32 v%d, s%d, v%d" % (t0, S_T0, t0))
    k.e("v_bfe_u32 v%d, v0, 5, 1" % t1)
    k.e("v_mul_lo_u32 v%d, v%d, s%d" % (t2, t0, S_LDC))
    k.e("v_add_u32 v%d, s%d, v%d" % (t2, S_T1, t2))
    k.e("v_lshl_add_u32 v%d, v%d, 4, v%d" % (t3, t1, t2))
    k.e("v_lshl_add_u32 v%d, v%d, 3, v%d" % (t4, t1, t2))
    k.e("v_lshlrev_b32 v%d, 2, v%d" % (t5, t0))
    ep = r.ep
    P = [ep + i for i in range(8)]
    RS = [ep + 8 + i for i in range(8)]
    a0, a1, a2, a3 = ep + 16, ep + 17, ep + 18, ep + 19
    for tm in range(c.TM):
        k.e("s_lshl_b32 s%d, s%d, 5" % (S_T0, S_LDC))
        k.e("s_mul_i32 s%d, s%d, %d" % (S_T0, S_T0, tm))
        if mode == 'final':
            k.e("buffer_load_dword v%d, v%d, %s, 0 offen offset:%d" % (a3, t5, sr(S_SRDG, 4), tm * 128))
        for tn in range(c.TN):
            a = r.acc[(tn, tm)]
            if mode in ('resid', 'final'):
                for q in range(4):
                    k.e("buffer_load_dwordx2 %s, v%d, %s, s%d offen offset:%d" %
                        (vr(RS[2 * q], 2), t4, sr(S_SRDR, 4), S_T0, tn * 64 + q * 16))
                k.e("s_waitcnt vmcnt(0)")
            for q in range(4):
                lo, hi = P[2 * q], P[2 * q + 1]
                k.e("v_cvt_pk_bf16_f32 v%d, v%d, v%d" % (lo, a + 4 * q, a + 4 * q + 1))
                k.e("v_cvt_pk_bf16_f32 v%d, v%d, v%d" % (hi, a + 4 * q + 2, a + 4 * q + 3))
                if mode == 'store':
                    continue
                for (pk, rs) in ((lo, RS[2 * q]), (hi, RS[2 * q + 1])):
                    k.e("v_lshlrev_b32 v%d, 16, v%d" % (a0, pk))
                    k.e("v_and_b32 v%d, 0xffff0000, v%d" % (a1, pk))
                    if mode == 'gelu':
                        emit_gelu(k, a0, a2, t6)
                        emit_gelu(k, a1, a2, t6)
                    else:
                        k.e("v_lshlrev_b32 v%d, 16, v%d" % (a2, rs))
                        k.e("v_add_f32 v%d, v%d, v%d" % (a0, a0, a2))
                        k.e("v_and_b32 v%d, 0xffff0000, v%d" % (a2, rs))
                        k.e("v_add_f32 v%d, v%d, v%d" % (a1, a1, a2))
                        if mode == 'final':
                            k.e("v_cvt_pk_bf16_f32 v%d, v%d, v%d" % (a2, a0, a1))
                            k.e("v_lshlrev_b32 v%d, 16, v%d" % (a0, a2))
                            k.e("v_and_b32 v%d, 0xffff0000, v%d" % (a1, a2))
                            k.e("v_sub_f32 v%d, 1.0, v%d" % (a2, a3))
                            rnd_bf16(k, a2)
                            k.e("v_mul_f32 v%d, v%d, v%d" % (a0, a0, a2))
                            k.e("v_mul_f32 v%d, v%d, v%d" % (a1, a1, a2))
                            k.e("v_cvt_pk_bf16_f32 v%d, v%d, v%d" % (a2, a0, a1))
                            k.e("v_lshlrev_b32 v%d, 16, v%d" % (a0, a2))
                            k.e("v_and_b32 v%d, 0xffff0000, v%d" % (a1, a2))
                            sa = r.save + (a - r.acc_base) + 4 * q + (0 if pk == lo else 2)
                            k.e("v_cvt_pk_bf16_f32 v%d, v%d, v%d" % (a2, sa, sa + 1))
                            k.e("v_lshlrev_b32 v%d, 16, v%d" % (t6, a2))
                            k.e("v_and_b32 v%d, 0xffff0000, v%d" % (a2, a2))
                            k.e("v_mul_f32 v%d, v%d, v%d" % (t6, t6, a3))
                            k.e("v_mul_f32 v%d, v%d, v%d" % (a2, a2, a3))
                            k.e("v_cvt_pk_bf16_f32 v%d, v%d, v%d" % (a2, t6, a2))
                            k.e("v_lshlrev_b32 v%d, 16, v%d" % (t6, a2))
                            k.e("v_and_b32 v%d, 0xffff0000, v%d" % (a2, a2))
                            k.e("v_add_f32 v%d, v%d, v%d" % (a0, a0, t6))
                            k.e("v_add_f32 v%d, v%d, v%d" % (a1, a1, a2))
                    k.e("v_cvt_pk_bf16_f32 v%d, v%d, v%d" % (pk, a0, a1))
            k.nop(1)
            for p in range(2):
                k.e("v_permlane32_swap_b32 v%d, v%d" % (P[4 * p], P[4 * p + 2]))
                k.e("v_permlane32_swap_b32 v%d, v%d" % (P[4 * p + 1], P[4 * p + 3]))
            k.nop(1)
            for p in range(2):
                k.e("buffer_store_dwordx4 %s, v%d, %s, s%d offen offset:%d" %
                    (vr(P[4 * p], 4), t3, sr(S_SRDC, 4), S_T0, tn * 64 + p * 32))
            k.nop(3)


class GemmRegsPP:
    def __init__(self, cfg, shifted=False, nsave=0):
        c = cfg
        self.vt = list(range(1, 8))
        p = 8
        self.vpf = p; p += 2
        self.vxa = list(range(p, p + 4)); p += 4
        self.vwa = list(range(p, p + c.TN)); p += c.TN
        self.vxo = list(range(p, p + c.XI)); p += c.XI
        self.vwo = list(range(p, p + c.WI)); p += c.WI
        self.vxs = list(range(p, p + c.XI)) if shifted else None
        if shifted:
            p += c.XI
        p = (p + 3) // 4 * 4
        self.FX = [[p + 4 * (tm * 4 + t) for t in range(4)] for tm in range(c.TM)]; p += 16 * c.TM
        self.FW = [[p + 4 * (tn * 4 + t) for t in range(4)] for tn in range(c.TN)]; p += 16 * c.TN
        p = (p + 15) // 16 * 16
        self.acc = {}
        for tn in range(c.TN):
            for tm in range(c.TM):
                self.acc[(tn, tm)] = p; p += 16
        self.acc_base = self.acc[(0, 0)]
        self.nacc = 16 * c.TM * c.TN
        self.save = p
        p += nsave
        self.end = p
        self.ep = self.FX[0][0]


def pp_reads(k, c, r):
    if 'noreads' in DBG:
        return
    for t in range(4):
        for tm in range(c.TM):
            k.e("ds_read_b128 %s, v%d offset:%d" % (vr(r.FX[tm][t], 4), r.vxa[t], tm * 4096))
        for tn in range(c.TN):
            for u in range(2):
                k.e("ds_read_b64_tr_b16 %s, v%d offset:%d" % (vr(r.FW[tn][t] + 2 * u, 2), r.vwa[tn], (16 * t + 4 * u) * c.RB))


def pp_mfma(k, c, r):
    if 'nomfma' in DBG:
        return
    for t in range(4):
        for tn in range(c.TN):
            for tm in range(c.TM):
                a = r.acc[(tn, tm)]
                k.e("v_mfma_f32_32x32x16_bf16 %s, %s, %s, %s" % (vr(a, 16), vr(r.FW[tn][t], 4), vr(r.FX[tm][t], 4), vr(a, 16)))


def pp_loop_body(k, c, r, grpB, shifted):
    D = c.D
    loop = k.lab("PPL"); nod = k.lab("PPN"); w0 = k.lab("PW0"); w1 = k.lab("PW1"); x0 = k.lab("PX0"); x1 = k.lab("PX1")
    k.L(loop)
    if 'istamp' in DBG:
        k.e("s_memtime s[80:81]")
        k.e("s_waitcnt lgkmcnt(0)")
        k.e("s_mov_b32 m0, s%d" % S_T3)
        k.e("s_movreld_b32 s84, s80")
    pp_reads(k, c, r)
    k.e("s_cmp_ge_u32 s%d, s%d" % (S_KT, S_NK))
    k.e("s_cbranch_scc1 %s" % nod)
    if shifted:
        gemm_shift_update(k, c, r, S_KT)
    gemm_dma(k, c, r, S_OLD, shifted)
    k.e("s_add_u32 s%d, s%d, 128" % (S_KX, S_KX))
    k.e("s_add_u32 s%d, s%d, s%d" % (S_KW, S_KW, S_T2))
    k.e("s_add_u32 s%d, s%d, 1" % (S_KT, S_KT))
    k.L(nod)
    if grpB:
        k.e("s_add_u32 s%d, s%d, %d" % (S_T0, S_T3, c.NS))
        k.e("s_cmp_eq_u32 s%d, s%d" % (S_T0, S_KT))
        k.e("s_cbranch_scc1 %s" % w0)
        k.e("s_waitcnt vmcnt(0) lgkmcnt(0)")
        k.e("s_branch %s" % w1)
        k.L(w0)
        k.e("s_waitcnt vmcnt(%d) lgkmcnt(0)" % ((c.NS - 2) * D))
        k.L(w1)
    else:
        k.e("s_waitcnt lgkmcnt(0)")
    k.e("s_barrier")
    k.e("s_setprio 1")
    pp_mfma(k, c, r)
    k.e("s_setprio 0")
    k.e("s_mov_b32 s%d, s%d" % (S_T1, S_CUR))
    k.e("s_add_u32 s%d, s%d, %d" % (S_CUR, S_CUR, c.STAGE))
    k.e("s_cmp_eq_u32 s%d, %d" % (S_CUR, c.STAGE * c.NS))
    k.e("s_cselect_b32 s%d, 0, s%d" % (S_CUR, S_CUR))
    k.e("s_sub_u32 s%d, s%d, s%d" % (S_T0, S_CUR, S_T1))
    for v in r.vxa + r.vwa:
        k.e("v_add_u32 v%d, s%d, v%d" % (v, S_T0, v))
    k.e("s_add_u32 s%d, s%d, %d" % (S_OLD, S_OLD, c.STAGE))
    k.e("s_cmp_eq_u32 s%d, %d" % (S_OLD, c.STAGE * c.NS))
    k.e("s_cselect_b32 s%d, 0, s%d" % (S_OLD, S_OLD))
    k.e("s_add_u32 s%d, s%d, 1" % (S_T3, S_T3))
    if not grpB:
        k.e("s_add_u32 s%d, s%d, %d" % (S_T0, S_T3, c.NS - 1))
        k.e("s_cmp_eq_u32 s%d, s%d" % (S_T0, S_KT))
        k.e("s_cbranch_scc1 %s" % x0)
        k.e("s_waitcnt vmcnt(0)")
        k.e("s_branch %s" % x1)
        k.L(x0)
        k.e("s_waitcnt vmcnt(%d)" % ((c.NS - 2) * D))
        k.L(x1)
    k.e("s_barrier")
    k.e("s_cmp_lt_u32 s%d, s%d" % (S_T3, S_NK))
    k.e("s_cbranch_scc1 %s" % loop)


def gemm_kloop_pp(k, c, r, shifted=False, late_frag=False):
    assert c.NW == 8
    D = c.D
    k.c("K loop (ping-pong) prologue")
    k.e("s_lshl_b32 s%d, s%d, 6" % (S_T2, S_LDW))
    if not late_frag:
        for i in range(r.nacc):
            k.e("v_mov_b32 v%d, 0" % (r.acc_base + i))
    k.e("s_mov_b32 s%d, 0" % S_KT)
    for s in range(c.NS - 1):
        if shifted:
            gemm_shift_update(k, c, r, S_KT)
        k.e("s_mov_b32 s%d, %d" % (S_OLD, s * c.STAGE))
        gemm_dma(k, c, r, S_OLD, shifted)
        k.e("s_add_u32 s%d, s%d, 128" % (S_KX, S_KX))
        k.e("s_add_u32 s%d, s%d, s%d" % (S_KW, S_KW, S_T2))
        k.e("s_add_u32 s%d, s%d, 1" % (S_KT, S_KT))
    if late_frag:
        k.e("s_mov_b32 s79, s%d" % S_T2)
        gemm_lane_setup(k, c, r, 'frag')
        k.e("s_mov_b32 s%d, s79" % S_T2)
        for i in range(r.nacc):
            k.e("v_mov_b32 v%d, 0" % (r.acc_base + i))
    k.e("s_mov_b32 s%d, %d" % (S_OLD, (c.NS - 1) * c.STAGE))
    k.e("s_mov_b32 s%d, 0" % S_CUR)
    k.e("s_mov_b32 s%d, 0" % S_T3)
    k.e("s_waitcnt vmcnt(%d)" % ((c.NS - 2) * D))
    k.e("s_barrier")
    gb = k.lab("GRPB"); done = k.lab("PPD")
    k.e("s_cmp_ge_u32 s%d, 4" % S_WAVE)
    k.e("s_cbranch_scc1 %s" % gb)
    pp_loop_body(k, c, r, False, shifted)
    k.e("s_barrier")
    k.e("s_branch %s" % done)
    k.L(gb)
    k.e("s_barrier")
    pp_loop_body(k, c, r, True, shifted)
    k.L(done)
    k.e("s_sub_u32 s%d, 0, s%d" % (S_T0, S_CUR))
    for v in r.vxa + r.vwa:
        k.e("v_add_u32 v%d, s%d, v%d" % (v, S_T0, v))


def gemm_epilogue_lds(k, c, r, mode, lds_base=0):
    if 'noepi' in DBG:
        return
    t0, t1, t2, t3, t4, t5, t6 = r.vt
    RC = c.BN * 2
    TILE = c.BM * RC
    ep = r.ep
    P = [ep + i for i in range(8)]
    a0, a1, a2, a3 = ep + 8, ep + 9, ep + 10, ep + 11
    k.c("epilogue(lds) " + mode)
    k.nop(15)
    k.nop(7)
    k.e("s_and_b32 s%d, s%d, %d" % (S_T2, S_WAVE, c.WM - 1))
    k.e("s_lshr_b32 s%d, s%d, %d" % (S_T3, S_WAVE, c.WM.bit_length() - 1))
    k.e("v_and_b32 v%d, 31, v0" % t0)
    k.e("s_mul_i32 s%d, s%d, %d" % (S_T0, S_T2, c.TM * 32))
    k.e("v_add_u32 v%d, s%d, v%d" % (t0, S_T0, t0))
    k.e("v_mul_u32_u24 v%d, %d, v%d" % (t1, RC, t0))
    k.e("v_and_b32 v%d, 7, v0" % t0)
    k.e("v_lshl_or_b32 v%d, v%d, 4, v%d" % (t1, t0, t1))
    k.e("v_bfe_u32 v%d, v0, 5, 1" % t0)
    k.e("v_lshl_or_b32 v%d, v%d, 3, v%d" % (t1, t0, t1))
    k.e("s_mul_i32 s%d, s%d, %d" % (S_T0, S_T3, c.TN * 64))
    k.e("v_xor_b32 v%d, s%d, v%d" % (t1, S_T0, t1))
    sets = [(r.acc, 0)] if mode != 'final' else [(r.acc, 0), (None, TILE)]
    for which, (accmap, lbase) in enumerate(sets):
        for tm in range(c.TM):
            for tn in range(c.TN):
                a = r.acc[(tn, tm)] if which == 0 else r.save + (r.acc[(tn, tm)] - r.acc_base)
                for q in range(4):
                    lo, hi = P[0], P[1]
                    k.e("v_cvt_pk_bf16_f32 v%d, v%d, v%d" % (lo, a + 4 * q, a + 4 * q + 1))
                    k.e("v_cvt_pk_bf16_f32 v%d, v%d, v%d" % (hi, a + 4 * q + 2, a + 4 * q + 3))
                    if mode == 'gelu':
                        for pk in (lo, hi):
                            k.e("v_lshlrev_b32 v%d, 16, v%d" % (a0, pk))
                            k.e("v_and_b32 v%d, 0xffff0000, v%d" % (a1, pk))
                            emit_gelu(k, a0, a2, t6)
                            emit_gelu(k, a1, a2, t6)
                            k.e("v_cvt_pk_bf16_f32 v%d, v%d, v%d" % (pk, a0, a1))
                    k.e("v_xor_b32 v%d, %d, v%d" % (t0, (tn * 4 + q) << 4, t1))
                    k.e("ds_write_b64 v%d, v[%d:%d] offset:%d" % (t0, lo, hi, lds_base + lbase + tm * 32 * RC))
    k.e("s_waitcnt lgkmcnt(0)")
    k.e("s_barrier")
    CPR = RC // 16
    RPI = 64 // CPR
    NI = TILE // 1024 // c.NW
    sh = CPR.bit_length() - 1
    k.e("v_and_b32 v%d, 63, v0" % t0)
    k.e("v_lshrrev_b32 v%d, %d, v%d" % (t1, sh, t0))
    k.e("s_mul_i32 s%d, s%d, %d" % (S_T0, S_WAVE, NI * RPI))
    k.e("v_add_u32 v%d, s%d, v%d" % (t1, S_T0, t1))
    k.e("v_and_b32 v%d, %d, v%d" % (t2, CPR - 1, t0))
    k.e("v_and_b32 v%d, 7, v%d" % (t3, t1))
    k.e("v_xor_b32 v%d, v%d, v%d" % (t3, t3, t2))
    k.e("v_mul_u32_u24 v%d, %d, v%d" % (t4, RC, t1))
    k.e("v_lshl_add_u32 v%d, v%d, 4, v%d" % (t4, t3, t4))
    k.e("v_add_u32 v%d, s%d, v%d" % (t3, S_M0, t1))
    k.e("v_mul_lo_u32 v%d, v%d, s%d" % (t5, t3, S_LDC))
    k.e("v_lshl_add_u32 v%d, v%d, 4, v%d" % (t5, t2, t5))
    k.e("s_lshl_b32 s%d, s%d, 1" % (S_T0, S_N0))
    k.e("v_add_u32 v%d, s%d, v%d" % (t5, S_T0, t5))
    k.e("v_lshlrev_b32 v%d, 2, v%d" % (t6, t3))
    assert RPI % 8 == 0 or RPI == 4
    for i in range(NI):
        if RPI == 4 and i > 0:
            k.e("v_add_u32 v%d, %d, v%d" % (t1, RPI, t1))
            k.e("v_and_b32 v%d, 7, v%d" % (t3, t1))
            k.e("v_xor_b32 v%d, v%d, v%d" % (t3, t3, t2))
            k.e("v_mul_u32_u24 v%d, %d, v%d" % (t4, RC, t1))
            k.e("v_lshl_add_u32 v%d, v%d, 4, v%d" % (t4, t3, t4))
        loff = 0 if RPI == 4 else i * 1024
        k.e("s_mul_i32 s%d, s%d, %d" % (S_T1, S_LDC, i * RPI))
        X = ep + 12
        Y = ep + 16
        Z = ep + 20
        k.e("ds_read_b128 %s, v%d offset:%d" % (vr(X, 4), t4, lds_base + loff))
        if mode == 'resid':
            k.e("buffer_load_dwordx4 %s, v%d, %s, s%d offen" % (vr(Y, 4), t5, sr(S_SRDR, 4), S_T1))
            k.e("s_waitcnt vmcnt(0) lgkmcnt(0)")
            for j in range(4):
                k.e("v_lshlrev_b32 v%d, 16, v%d" % (a0, X + j))
                k.e("v_and_b32 v%d, 0xffff0000, v%d" % (a1, X + j))
                k.e("v_lshlrev_b32 v%d, 16, v%d" % (a2, Y + j))
                k.e("v_and_b32 v%d, 0xffff0000, v%d" % (a3, Y + j))
                k.e("v_add_f32 v%d, v%d, v%d" % (a0, a0, a2))
                k.e("v_add_f32 v%d, v%d, v%d" % (a1, a1, a3))
                k.e("v_cvt_pk_bf16_f32 v%d, v%d, v%d" % (X + j, a0, a1))
        elif mode == 'final':
            k.e("ds_read_b128 %s, v%d offset:%d" % (vr(Z, 4), t4, lds_base + TILE + loff))
            k.e("buffer_load_dwordx4 %s, v%d, %s, s%d offen" % (vr(Y, 4), t5, sr(S_SRDR, 4), S_T1))
            k.e("buffer_load_dword v%d, v%d, %s, 0 offen offset:%d" % (P[2], t6, sr(S_SRDG, 4), i * RPI * 4))
            k.e("s_waitcnt vmcnt(0) lgkmcnt(0)")
            k.e("v_sub_f32 v%d, 1.0, v%d" % (P[3], P[2]))
            rnd_bf16(k, P[3])
            for j in range(4):
                k.e("v_lshlrev_b32 v%d, 16, v%d" % (a0, X + j))
                k.e("v_and_b32 v%d, 0xffff0000, v%d" % (a1, X + j))
                k.e("v_lshlrev_b32 v%d, 16, v%d" % (a2, Y + j))
                k.e("v_and_b32 v%d, 0xffff0000, v%d" % (a3, Y + j))
                k.e("v_add_f32 v%d, v%d, v%d" % (a0, a0, a2))
                k.e("v_add_f32 v%d, v%d, v%d" % (a1, a1, a3))
                k.e("v_cvt_pk_bf16_f32 v%d, v%d, v%d" % (a2, a0, a1))
                k.e("v_lshlrev_b32 v%d, 16, v%d" % (a0, a2))
                k.e("v_and_b32 v%d, 0xffff0000, v%d" % (a1, a2))
                k.e("v_mul_f32 v%d, v%d, v%d" % (a0, a0, P[3]))
                k.e("v_mul_f32 v%d, v%d, v%d" % (a1, a1, P[3]))
                k.e("v_cvt_pk_bf16_f32 v%d, v%d, v%d" % (a2, a0, a1))
                k.e("v_lshlrev_b32 v%d, 16, v%d" % (a0, a2))
                k.e("v_and_b32 v%d, 0xffff0000, v%d" % (a1, a2))
                k.e("v_lshlrev_b32 v%d, 16, v%d" % (a2, Z + j))
                k.e("v_and_b32 v%d, 0xffff0000, v%d" % (a3, Z + j))
                k.e("v_mul_f32 v%d, v%d, v%d" % (a2, a2, P[2]))
                k.e("v_mul_f32 v%d, v%d, v%d" % (a3, a3, P[2]))
                k.e("v_cvt_pk_bf16_f32 v%d, v%d, v%d" % (a3, a2, a3))
                k.e("v_lshlrev_b32 v%d, 16, v%d" % (a2, a3))
                k.e("v_and_b32 v%d, 0xffff0000, v%d" % (a3, a3))
                k.e("v_add_f32 v%d, v%d, v%d" % (a0, a0, a2))
                k.e("v_add_f32 v%d, v%d, v%d" % (a1, a1, a3))
                k.e("v_cvt_pk_bf16_f32 v%d, v%d, v%d" % (X + j, a0, a1))
        else:
            k.e("s_waitcnt lgkmcnt(0)")
        sfx = ""
        if 'stnt' in DBG: sfx = " nt"
        if 'stsc1' in DBG: sfx = " sc1"
        if 'stsc01' in DBG: sfx = " sc0 sc1"
        if 'nost' not in DBG:
            k.e("buffer_store_dwordx4 %s, v%d, %s, s%d offen%s" % (vr(X, 4), t5, sr(S_SRDC, 4), S_T1, sfx))
        k.nop(1)


def emit_gelu2(k, x0, x1, t0, t1, c1, c2):
    k.e("v_pk_mul_f32 v[%d:%d], v[%d:%d], v[%d:%d]" % (t0, t0 + 1, x0, x0 + 1, x0, x0 + 1))
    k.e("v_pk_fma_f32 v[%d:%d], v[%d:%d], v[%d:%d], 1.0 op_sel_hi:[1,1,0]" % (t0, t0 + 1, t0, t0 + 1, c1, c1 + 1))
    k.e("v_pk_mul_f32 v[%d:%d], v[%d:%d], v[%d:%d]" % (t0, t0 + 1, t0, t0 + 1, x0, x0 + 1))
    k.e("v_pk_mul_f32 v[%d:%d], v[%d:%d], v[%d:%d]" % (t0, t0 + 1, t0, t0 + 1, c2, c2 + 1))
    k.e("v_exp_f32 v%d, v%d" % (t0, t0))
    k.e("v_exp_f32 v%d, v%d" % (t0 + 1, t0 + 1))
    k.nop(0)
    k.e("v_pk_add_f32 v[%d:%d], v[%d:%d], 1.0 op_sel_hi:[1,0]" % (t0, t0 + 1, t0, t0 + 1))
    k.e("v_rcp_f32 v%d, v%d" % (t0, t0))
    k.e("v_rcp_f32 v%d, v%d" % (t0 + 1, t0 + 1))
    k.nop(0)
    k.e("v_pk_mul_f32 v[%d:%d], v[%d:%d], v[%d:%d]" % (x0, x0 + 1, x0, x0 + 1, t0, t0 + 1))


def gemm_epilogue2(k, c, r, mode):
    if 'noepi' in DBG:
        return
    t0, t1, t2, t3, t4, t5, t6 = r.vt
    RCF = c.BN * 4
    TILE = c.BM * RCF
    ep = r.ep
    CPR = c.BN // 8
    RPI = 64 // CPR
    NI = c.BM // RPI // c.NW
    sh = CPR.bit_length() - 1
    pre = mode in ('resid', 'final')
    k.c("epilogue2 " + mode)
    k.e("v_and_b32 v%d, 63, v0" % t0)
    k.e("v_lshrrev_b32 v%d, %d, v%d" % (t1, sh, t0))
    k.e("s_mul_i32 s%d, s%d, %d" % (S_T0, S_WAVE, NI * RPI))
    k.e("v_add_u32 v%d, s%d, v%d" % (t1, S_T0, t1))
    k.e("v_and_b32 v%d, %d, v%d" % (t2, CPR - 1, t0))
    k.e("v_and_b32 v%d, 7, v%d" % (t3, t1))
    k.e("v_lshlrev_b32 v%d, 1, v%d" % (t4, t2))
    k.e("v_xor_b32 v%d, v%d, v%d" % (t3, t3, t4))
    k.e("v_mul_u32_u24 v%d, %d, v%d" % (t4, RCF, t1))
    k.e("v_lshl_add_u32 v%d, v%d, 4, v%d" % (t4, t3, t4))
    k.e("v_add_u32 v%d, s%d, v%d" % (t3, S_M0, t1))
    k.e("v_mul_lo_u32 v%d, v%d, s%d" % (t5, t3, S_LDC))
    k.e("v_lshl_add_u32 v%d, v%d, 4, v%d" % (t5, t2, t5))
    k.e("s_lshl_b32 s%d, s%d, 1" % (S_T0, S_N0))
    k.e("v_add_u32 v%d, s%d, v%d" % (t5, S_T0, t5))
    k.e("v_lshlrev_b32 v%d, 2, v%d" % (t6, t3))
    X = ep; X2 = ep + 4; Z = ep + 8; Z2 = ep + 12
    T = ep + 16; G1 = ep + 18; C1 = ep + 20; C2 = ep + 22; U = ep + 24
    YB = ep + 28
    GB = YB + 4 * NI
    if pre:
        for i in range(NI):
            k.e("s_mul_i32 s%d, s%d, %d" % (S_T1, S_LDC, i * RPI))
            k.e("buffer_load_dwordx4 %s, v%d, %s, s%d offen" % (vr(YB + 4 * i, 4), t5, sr(S_SRDR, 4), S_T1))
            if mode == 'final':
                k.e("buffer_load_dword v%d, v%d, %s, 0 offen offset:%d" % (GB + i, t6, sr(S_SRDG, 4), i * RPI * 4))
    k.nop(15)
    k.nop(7)
    k.e("s_and_b32 s%d, s%d, %d" % (S_T2, S_WAVE, c.WM - 1))
    k.e("s_lshr_b32 s%d, s%d, %d" % (S_T3, S_WAVE, c.WM.bit_length() - 1))
    k.e("v_and_b32 v%d, 31, v0" % t0)
    k.e("s_mul_i32 s%d, s%d, %d" % (S_T0, S_T2, c.TM * 32))
    k.e("v_add_u32 v%d, s%d, v%d" % (t0, S_T0, t0))
    k.e("v_mul_u32_u24 v%d, %d, v%d" % (t1, RCF, t0))
    k.e("v_and_b32 v%d, 7, v0" % t0)
    k.e("v_bfe_u32 v%d, v0, 5, 1" % t2)
    k.e("v_xor_b32 v%d, v%d, v%d" % (t0, t0, t2))
    k.e("s_mul_i32 s%d, s%d, %d" % (S_T0, S_T3, c.TN * 8))
    k.e("v_xor_b32 v%d, s%d, v%d" % (t0, S_T0, t0))
    k.e("v_lshl_add_u32 v%d, v%d, 4, v%d" % (t1, t0, t1))
    nset = 2 if mode == 'final' else 1
    for which in range(nset):
        if which == 1:
            k.e("v_add_u32 v%d, %d, v%d" % (t1, TILE, t1))
        for tm in range(c.TM):
            for tn in range(c.TN):
                a = r.acc[(tn, tm)] if which == 0 else r.save + (r.acc[(tn, tm)] - r.acc_base)
                for q in range(4):
                    k.e("v_xor_b32 v%d, %d, v%d" % (t0, (2 * q + 8 * tn) << 4, t1))
                    k.e("ds_write_b128 v%d, v[%d:%d] offset:%d" % (t0, a + 4 * q, a + 4 * q + 3, tm * 32 * RCF))
    k.e("s_waitcnt lgkmcnt(0)")
    k.e("s_barrier")
    k.e("s_mov_b32 s%d, 0" % S_T1)
    k.e("s_mul_i32 s%d, s%d, %d" % (S_T3, S_LDC, RPI))
    if mode == 'gelu':
        k.e("v_mov_b32 v%d, 0x3d372713" % C1); k.e("v_mov_b32 v%d, 0x3d372713" % (C1 + 1))
        k.e("v_mov_b32 v%d, 0xc0135761" % C2); k.e("v_mov_b32 v%d, 0xc0135761" % (C2 + 1))

    def body(i):
        k.e("v_xor_b32 v%d, 16, v%d" % (t0, t4))
        k.e("ds_read_b128 %s, v%d" % (vr(X, 4), t4))
        k.e("ds_read_b128 %s, v%d" % (vr(X2, 4), t0))
        if mode == 'final':
            k.e("v_add_u32 v%d, %d, v%d" % (t1, TILE, t4))
            k.e("v_add_u32 v%d, %d, v%d" % (t2, TILE, t0))
            k.e("ds_read_b128 %s, v%d" % (vr(Z, 4), t1))
            k.e("ds_read_b128 %s, v%d" % (vr(Z2, 4), t2))
        if pre and i == 0:
            k.e("s_waitcnt vmcnt(0) lgkmcnt(0)")
        else:
            k.e("s_waitcnt lgkmcnt(0)")
        G = GB + i if pre else None
        if mode == 'final':
            k.e("v_sub_f32 v%d, 1.0, v%d" % (G1, G))
            rnd_bf16(k, G1)
        for j in range(4):
            xa = X + 2 * j
            if mode == 'store':
                k.e("v_cvt_pk_bf16_f32 v%d, v%d, v%d" % (U + j, xa, xa + 1))
                continue
            k.e("v_cvt_pk_bf16_f32 v%d, v%d, v%d" % (T, xa, xa + 1))
            k.e("v_lshlrev_b32 v%d, 16, v%d" % (xa, T))
            k.e("v_and_b32 v%d, 0xffff0000, v%d" % (xa + 1, T))
            if mode == 'gelu':
                emit_gelu2(k, xa, xa + 1, T, None, C1, C2)
            else:
                Y = YB + 4 * i
                k.e("v_lshlrev_b32 v%d, 16, v%d" % (T, Y + j))
                k.e("v_and_b32 v%d, 0xffff0000, v%d" % (T + 1, Y + j))
                k.e("v_pk_add_f32 v[%d:%d], v[%d:%d], v[%d:%d]" % (xa, xa + 1, xa, xa + 1, T, T + 1))
                if mode == 'final':
                    k.e("v_cvt_pk_bf16_f32 v%d, v%d, v%d" % (T, xa, xa + 1))
                    k.e("v_lshlrev_b32 v%d, 16, v%d" % (xa, T))
                    k.e("v_and_b32 v%d, 0xffff0000, v%d" % (xa + 1, T))
                    k.e("v_mul_f32 v%d, v%d, v%d" % (xa, xa, G1))
                    k.e("v_mul_f32 v%d, v%d, v%d" % (xa + 1, xa + 1, G1))
                    k.e("v_cvt_pk_bf16_f32 v%d, v%d, v%d" % (T, xa, xa + 1))
                    k.e("v_lshlrev_b32 v%d, 16, v%d" % (xa, T))
                    k.e("v_and_b32 v%d, 0xffff0000, v%d" % (xa + 1, T))
                    za = Z + 2 * j
                    k.e("v_cvt_pk_bf16_f32 v%d, v%d, v%d" % (T, za, za + 1))
                    k.e("v_lshlrev_b32 v%d, 16, v%d" % (za, T))
                    k.e("v_and_b32 v%d, 0xffff0000, v%d" % (za + 1, T))
                    k.e("v_mul_f32 v%d, v%d, v%d" % (za, za, G))
                    k.e("v_mul_f32 v%d, v%d, v%d" % (za + 1, za + 1, G))
                    k.e("v_cvt_pk_bf16_f32 v%d, v%d, v%d" % (T, za, za + 1))
                    k.e("v_lshlrev_b32 v%d, 16, v%d" % (za, T))
                    k.e("v_and_b32 v%d, 0xffff0000, v%d" % (za + 1, T))
                    k.e("v_pk_add_f32 v[%d:%d], v[%d:%d], v[%d:%d]" % (xa, xa + 1, xa, xa + 1, za, za + 1))
            k.e("v_cvt_pk_bf16_f32 v%d, v%d, v%d" % (U + j, xa, xa + 1))
        k.e("buffer_store_dwordx4 %s, v%d, %s, s%d offen" % (vr(U, 4), t5, sr(S_SRDC, 4), S_T1))
        k.e("v_add_u32 v%d, %d, v%d" % (t4, RPI * RCF, t4))
        if RPI == 4:
            k.e("v_xor_b32 v%d, 64, v%d" % (t4, t4))
        k.e("s_add_u32 s%d, s%d, s%d" % (S_T1, S_T1, S_T3))

    if pre:
        for i in range(NI):
            body(i)
    else:
        k.e("s_mov_b32 s%d, %d" % (S_KT, NI))
        loop = k.lab("EPL")
        k.L(loop)
        body(0)
        k.e("s_sub_u32 s%d, s%d, 1" % (S_KT, S_KT))
        k.e("s_cmp_lg_u32 s%d, 0" % S_KT)
        k.e("s_cbranch_scc1 %s" % loop)


def stamp(k, idx):
    if 'stamp' not in DBG:
        return
    k.e("s_memtime s[%d:%d]" % (80 + 2 * idx, 81 + 2 * idx))


def stamp_flush(k, n):
    if 'stamp' not in DBG:
        return
    skip = k.lab("SKIPST")
    k.e("s_waitcnt lgkmcnt(0)")
    k.e("s_cmp_lg_u32 s2, 5")
    k.e("s_cbranch_scc1 %s" % skip)
    k.e("s_cmp_lg_u32 s%d, 0" % S_WAVE)
    k.e("s_cbranch_scc1 %s" % skip)
    k.e("s_load_dwordx2 s[56:57], s[0:1], 88")
    k.e("s_waitcnt lgkmcnt(0)")
    k.e("s_mov_b32 s58, 256")
    k.e("s_mov_b32 s59, 0x00020000")
    for i in range(n):
        k.e("v_mov_b32 v1, s%d" % (80 + 2 * i))
        k.e("v_mov_b32 v2, %d" % (4 * i))
        k.e("buffer_store_dword v1, v2, s[56:59], 0 offen")
    k.L(skip)


def istamp_flush(k, n=16):
    if 'istamp' not in DBG:
        return
    skip = k.lab("SKIPST")
    k.e("s_cmp_lg_u32 s2, 5")
    k.e("s_cbranch_scc1 %s" % skip)
    k.e("s_cmp_lg_u32 s%d, 0" % S_WAVE)
    k.e("s_cbranch_scc1 %s" % skip)
    k.e("s_load_dwordx2 s[56:57], s[0:1], 88")
    k.e("s_waitcnt lgkmcnt(0)")
    k.e("s_mov_b32 s58, 256")
    k.e("s_mov_b32 s59, 0x00020000")
    for i in range(n + 1):
        k.e("v_mov_b32 v1, s%d" % (84 + i))
        k.e("v_mov_b32 v2, %d" % (4 * i))
        k.e("buffer_store_dword v1, v2, s[56:59], 0 offen")
    k.L(skip)


def rstamp_begin(k):
    if 'rstamp' in DBG:
        k.e("s_memrealtime s[70:71]")


def rstamp_end(k):
    if 'rstamp' not in DBG:
        return
    skip = k.lab("SKIPRS")
    k.e("s_memrealtime s[72:73]")
    k.e("s_waitcnt lgkmcnt(0)")
    k.e("s_cmp_lg_u32 s%d, 0" % S_WAVE)
    k.e("s_cbranch_scc1 %s" % skip)
    k.e("s_load_dwordx2 s[56:57], s[0:1], 96")
    k.e("s_waitcnt lgkmcnt(0)")
    k.e("s_add_u32 s56, s56, 0xc800000")
    k.e("s_addc_u32 s57, s57, 0")
    k.e("s_mov_b32 s58, 65536")
    k.e("s_mov_b32 s59, 0x00020000")
    k.e("s_lshl_b32 s74, s2, 3")
    k.e("v_mov_b32 v2, s70")
    k.e("v_mov_b32 v3, s72")
    k.e("v_mov_b32 v4, s74")
    k.e("buffer_store_dwordx2 v[2:3], v4, s[56:59], 0 offen")
    k.L(skip)


def gemm_head(k, nwg):
    end = k.lab("END")
    for d in DBG:
        if d.startswith('lim'):
            nwg = int(d[3:])
    k.e("s_cmp_ge_u32 s2, %d" % nwg)
    k.e("s_cbranch_scc1 %s" % end)
    if 'istamp' in DBG:
        k.e("s_memtime s[100:101]")
    k.e("v_lshrrev_b32 v1, 6, v0")
    k.nop(0)
    k.e("v_readfirstlane_b32 s%d, v1" % S_WAVE)
    return end


def setup_prefetch(k, c, r, items):
    c.PF = len(items)
    c.D = c.XI + c.WI + c.PF
    for p, (key, nb) in enumerate(items):
        make_srd(k, 64 + 4 * p, 74 + 2 * p, 0, nb)
    k.e("v_and_b32 v%d, 63, v0" % r.vpf)
    k.e("v_cmp_gt_u32 vcc, %d, v%d" % (16 // c.NW, r.vpf))
    k.e("v_lshlrev_b32 v%d, 7, v%d" % (r.vpf, r.vpf))
    k.e("v_mov_b32 v%d, 0x7ffffff0" % (r.vpf + 1))
    k.e("v_cndmask_b32 v%d, v%d, v%d, vcc" % (r.vpf, r.vpf + 1, r.vpf))
    k.e("s_mul_i32 s72, s2, %d" % c.NW)
    k.e("s_add_u32 s72, s72, s%d" % S_WAVE)
    k.e("s_mul_i32 s72, s72, s%d" % S_NK)
    k.e("s_lshl_b32 s72, s72, %d" % (8 if c.NW == 8 else 9))


def gen_gemm1():
    BIGW = 'bigw' in DBG or 'np8' in DBG
    if BIGW:
        c = GemmCfg(4, 2, 2, 2) if 'np8' in DBG else GemmCfg(2, 2, 4, 2)
        r = GemmRegs(c)
        r.ep = r.end
    else:
        c = GemmCfg(4, 2, 2, 2)
        r = GemmRegsPP(c)
    k = K("gemm1_kernel")
    end = gemm_head(k, 256)
    stamp(k, 0)
    rstamp_begin(k)
    load_ptr(k, 44, "A_x"); load_ptr(k, 46, "wqkv"); load_ptr(k, 48, "ws"); load_ptr(k, 50, "w1")
    load_ptr(k, 74, "w3"); load_ptr(k, 76, "w2")
    k.e("s_waitcnt lgkmcnt(0)")
    pb = k.lab("PB"); go = k.lab("GO")
    k.e("s_and_b32 s%d, s2, 1" % S_M0)
    k.e("s_lshl_b32 s%d, s%d, 2" % (S_M0, S_M0))
    k.e("s_bfe_u32 s%d, s2, 0x20003" % S_T0)
    k.e("s_add_u32 s%d, s%d, s%d" % (S_M0, S_M0, S_T0))
    k.e("s_lshl_b32 s%d, s%d, 8" % (S_M0, S_M0))
    k.e("s_bfe_u32 s%d, s2, 0x20001" % S_T1)
    k.e("s_lshl_b32 s%d, s%d, 3" % (S_T1, S_T1))
    k.e("s_lshr_b32 s%d, s2, 5" % S_T0)
    k.e("s_add_u32 s%d, s%d, s%d" % (S_T1, S_T1, S_T0))
    k.e("s_cmp_ge_u32 s%d, 24" % S_T1)
    k.e("s_cbranch_scc1 %s" % pb)
    make_srd(k, S_SRDX, 44, 0, SZ_ACT)
    make_srd(k, S_SRDW, 46, 0, 1024 * 3072 * 2)
    make_srd(k, S_SRDC, 48, WS_QKV, SZ_QKV)
    k.e("s_mov_b32 s%d, 2048" % S_LDX); k.e("s_mov_b32 s%d, 6144" % S_LDW); k.e("s_mov_b32 s%d, 6144" % S_LDC)
    k.e("s_mov_b32 s%d, 0" % S_FLAG)
    k.e("s_branch %s" % go)
    k.L(pb)
    make_srd(k, S_SRDX, 48, WS_LNX, SZ_ACT)
    make_srd(k, S_SRDW, 50, 0, 1024 * 1024 * 2)
    make_srd(k, S_SRDC, 48, WS_H, SZ_ACT)
    k.e("s_mov_b32 s%d, 2048" % S_LDX); k.e("s_mov_b32 s%d, 2048" % S_LDW); k.e("s_mov_b32 s%d, 2048" % S_LDC)
    k.e("s_mov_b32 s%d, 1" % S_FLAG)
    k.e("s_sub_u32 s%d, s%d, 24" % (S_T1, S_T1))
    k.L(go)
    k.e("s_mov_b32 s%d, 16" % S_NK)
    k.e("s_lshl_b32 s%d, s%d, 7" % (S_N0, S_T1))
    setup_prefetch(k, c, r, [('w3', 1024 * 3584 * 2), ('w2', 1024 * 1024 * 2)])
    gemm_lane_setup(k, c, r, 'all' if BIGW else 'dma')
    k.e("s_mul_i32 s%d, s%d, s%d" % (S_KX, S_M0, S_LDX))
    k.e("s_lshl_b32 s%d, s%d, 1" % (S_KW, S_N0))
    stamp(k, 1)
    if BIGW:
        gemm_kloop(k, c, r)
        k.e("s_barrier")
    else:
        gemm_kloop_pp(k, c, r, late_frag=True)
    istamp_flush(k)
    stamp(k, 2)
    eg = k.lab("EG")
    k.e("s_cmp_eq_u32 s%d, 1" % S_FLAG)
    k.e("s_cbranch_scc1 %s" % eg)
    gemm_epilogue2(k, c, r, 'store')
    stamp(k, 3)
    k.e('s_waitcnt vmcnt(0)')
    stamp(k, 4)
    stamp_flush(k, 5)
    rstamp_end(k)
    k.e("s_endpgm")
    k.L(eg)
    gemm_epilogue2(k, c, r, 'gelu')
    k.L(end)
    k.e("s_endpgm")
    return k, (r.end + 48 if BIGW else r.end), c.LDS, 64 * c.NW


def gen_gemm2():
    c = GemmCfg(2, 2, 2, 1)
    r = GemmRegs(c, shifted=True)
    r.ep = r.end
    k = K("gemm2_kernel")
    end = gemm_head(k, 256)
    load_ptr(k, 44, "A_x"); load_ptr(k, 46, "w2"); load_ptr(k, 48, "ws")
    k.e("s_waitcnt lgkmcnt(0)")
    make_srd(k, S_SRDX, 48, WS_H, SZ_ACT)
    make_srd(k, S_SRDW, 46, 0, 1024 * 1024 * 2)
    make_srd(k, S_SRDC, 48, WS_X1, SZ_ACT)
    make_srd(k, S_SRDR, 44, 0, SZ_ACT)
    k.e("s_mov_b32 s%d, 2048" % S_LDX); k.e("s_mov_b32 s%d, 2048" % S_LDW); k.e("s_mov_b32 s%d, 2048" % S_LDC)
    k.e("s_mov_b32 s%d, 16" % S_NK)
    k.e("s_and_b32 s%d, s2, 15" % S_M0)
    k.e("s_lshl_b32 s%d, s%d, 7" % (S_M0, S_M0))
    k.e("s_lshr_b32 s%d, s2, 4" % S_N0)
    k.e("s_lshl_b32 s%d, s%d, 6" % (S_N0, S_N0))
    gemm_lane_setup(k, c, r)
    k.e("s_mov_b32 s%d, 0" % S_KX)
    k.e("s_lshl_b32 s%d, s%d, 1" % (S_KW, S_N0))
    gemm_kloop(k, c, r, shifted=True)
    k.e('s_barrier')
    gemm_epilogue2(k, c, r, 'resid')
    k.L(end)
    k.e("s_endpgm")
    return k, r.ep + 48, c.LDS, 256


def gen_gemm4():
    c = GemmCfg(4, 2, 2, 2)
    r = GemmRegsPP(c)
    k = K("gemm4_kernel")
    end = gemm_head(k, 224)
    load_ptr(k, 46, "w3"); load_ptr(k, 48, "ws")
    load_ptr(k, 74, "w4"); load_ptr(k, 76, "wo")
    k.e("s_waitcnt lgkmcnt(0)")
    make_srd(k, S_SRDX, 48, WS_LNX1, SZ_ACT)
    make_srd(k, S_SRDW, 46, 0, 1024 * 3584 * 2)
    make_srd(k, S_SRDC, 48, WS_H3, SZ_H3)
    k.e("s_mov_b32 s%d, 2048" % S_LDX); k.e("s_mov_b32 s%d, 7168" % S_LDW); k.e("s_mov_b32 s%d, 7168" % S_LDC)
    k.e("s_mov_b32 s%d, 16" % S_NK)
    k.e("s_and_b32 s%d, s2, 7" % S_M0)
    k.e("s_lshl_b32 s%d, s%d, 8" % (S_M0, S_M0))
    k.e("s_lshr_b32 s%d, s2, 3" % S_N0)
    k.e("s_lshl_b32 s%d, s%d, 7" % (S_N0, S_N0))
    setup_prefetch(k, c, r, [('w4', 1024 * 3584 * 2), ('wo', 1024 * 1024 * 2)])
    gemm_lane_setup(k, c, r, 'dma')
    k.e("s_mul_i32 s%d, s%d, s%d" % (S_KX, S_M0, S_LDX))
    k.e("s_lshl_b32 s%d, s%d, 1" % (S_KW, S_N0))
    gemm_kloop_pp(k, c, r, late_frag=True)
    istamp_flush(k)
    gemm_epilogue2(k, c, r, 'gelu')
    k.L(end)
    k.e("s_endpgm")
    return k, r.end, c.LDS, 512


def gen_gemm5():
    c = GemmCfg(2, 4, 2, 1, NS=4)
    r = GemmRegsPP(c, nsave=32)
    k = K("gemm5_kernel")
    end = gemm_head(k, 256)
    stamp(k, 0)
    load_ptr(k, 44, "wo"); load_ptr(k, 46, "w4"); load_ptr(k, 48, "ws"); load_ptr(k, 50, "out")
    k.e("s_waitcnt lgkmcnt(0)")
    make_srd(k, S_SRDC, 50, 0, SZ_ACT)
    make_srd(k, S_SRDR, 48, WS_X1, SZ_ACT)
    make_srd(k, S_SRDG, 48, WS_G, 2048 * 4)
    make_srd(k, 52, 48, WS_PART, 128 * 65536)
    make_srd(k, 56, 48, WS_FLAG, 1024)
    k.e("s_mov_b32 s%d, 2048" % S_LDW); k.e("s_mov_b32 s%d, 2048" % S_LDC)
    k.e("s_bfe_u32 s%d, s2, 0x10003" % S_FLAG)
    k.e("s_lshr_b32 s60, s2, 4")
    k.e("s_lshl_b32 s60, s60, 3")
    k.e("s_and_b32 s61, s2, 7")
    k.e("s_add_u32 s60, s60, s61")
    k.e("s_and_b32 s%d, s60, 15" % S_M0)
    k.e("s_lshl_b32 s%d, s%d, 7" % (S_M0, S_M0))
    k.e("s_lshr_b32 s%d, s60, 4" % S_N0)
    k.e("s_lshl_b32 s%d, s%d, 7" % (S_N0, S_N0))
    h1 = k.lab("HALF1"); fin = k.lab("FIN")
    k.e("s_cmp_eq_u32 s%d, 1" % S_FLAG)
    k.e("s_cbranch_scc1 %s" % h1)
    make_srd(k, S_SRDX, 48, WS_O, SZ_ACT)
    make_srd(k, S_SRDW, 44, 0, 1024 * 1024 * 2)
    k.e("s_mov_b32 s%d, 2048" % S_LDX)
    k.e("s_mov_b32 s%d, 16" % S_NK)
    gemm_lane_setup(k, c, r)
    k.e("s_mul_i32 s%d, s%d, s%d" % (S_KX, S_M0, S_LDX))
    k.e("s_lshl_b32 s%d, s%d, 1" % (S_KW, S_N0))
    gemm_kloop_pp(k, c, r)
    stamp(k, 1)
    k.nop(15); k.nop(7)
    for i in range(r.nacc):
        k.e("v_mov_b32 v%d, v%d" % (r.save + i, r.acc_base + i))
    make_srd(k, S_SRDX, 48, WS_H3, SZ_H3)
    make_srd(k, S_SRDW, 46, 0, 3584 * 1024 * 2)
    k.e("s_mov_b32 s%d, 7168" % S_LDX)
    k.e("s_mov_b32 s%d, 20" % S_NK)
    gemm_lane_setup(k, c, r)
    k.e("s_mul_i32 s%d, s%d, s%d" % (S_KX, S_M0, S_LDX))
    k.e("s_lshl_b32 s%d, s%d, 1" % (S_KW, S_N0))
    gemm_kloop_pp(k, c, r)
    istamp_flush(k)
    stamp(k, 2)
    k.nop(15); k.nop(7)
    poll = k.lab("POLL"); got = k.lab("GOT")
    k.e("s_lshl_b32 s61, s60, 2")
    k.e("v_mov_b32 v1, s61")
    k.e("s_mov_b32 s62, 0")
    k.L(poll)
    k.e("buffer_load_dword v2, v1, s[56:59], 0 offen sc1")
    k.e("s_waitcnt vmcnt(0)")
    k.e("v_readfirstlane_b32 s63, v2")
    k.e("s_cmp_eq_u32 s63, 0x5a5a")
    k.e("s_cbranch_scc1 %s" % got)
    k.e("s_sleep 2")
    k.e("s_add_u32 s62, s62, 1")
    k.e("s_cmp_lt_u32 s62, 0x400000")
    k.e("s_cbranch_scc1 %s" % poll)
    k.L(got)
    stamp(k, 3)
    k.e("s_barrier")
    k.e("s_lshl_b32 s61, s60, 16")
    k.e("s_mul_i32 s62, s%d, 8192" % S_WAVE)
    k.e("s_add_u32 s61, s61, s62")
    k.e("v_and_b32 v1, 63, v0")
    k.e("v_lshlrev_b32 v1, 4, v1")
    F = r.FX[0][0]
    for i in range(8):
        k.e("buffer_load_dwordx4 %s, v1, s[52:55], s61 offen offset:%d sc1" % (vr(F + 4 * i, 4), (i & 3) * 1024))
        if i == 3:
            k.e("s_add_u32 s61, s61, 4096")
    k.e("s_waitcnt vmcnt(0)")
    for i in range(32):
        k.e("v_add_f32 v%d, v%d, v%d" % (r.acc_base + i, r.acc_base + i, F + i))
    gemm_epilogue2(k, c, r, 'final')
    stamp(k, 4)
    stamp_flush(k, 5)
    k.e("s_endpgm")
    k.L(h1)
    make_srd(k, S_SRDX, 48, WS_H3, SZ_H3)
    make_srd(k, S_SRDW, 46, 0, 3584 * 1024 * 2)
    k.e("s_mov_b32 s%d, 7168" % S_LDX)
    k.e("s_mov_b32 s%d, 36" % S_NK)
    gemm_lane_setup(k, c, r)
    k.e("s_mul_i32 s%d, s%d, s%d" % (S_KX, S_M0, S_LDX))
    k.e("s_add_u32 s%d, s%d, %d" % (S_KX, S_KX, 20 * 128))
    k.e("s_lshl_b32 s%d, s%d, 1" % (S_KW, S_N0))
    k.e("s_add_u32 s%d, s%d, %d" % (S_KW, S_KW, 20 * 64 * 2048))
    gemm_kloop_pp(k, c, r)
    k.nop(15); k.nop(7)
    k.e("s_lshl_b32 s61, s60, 16")
    k.e("s_mul_i32 s62, s%d, 8192" % S_WAVE)
    k.e("s_add_u32 s61, s61, s62")
    k.e("v_and_b32 v1, 63, v0")
    k.e("v_lshlrev_b32 v1, 4, v1")
    for i in range(8):
        k.e("buffer_store_dwordx4 %s, v1, s[52:55], s61 offen offset:%d sc1" % (vr(r.acc_base + 4 * i, 4), (i & 3) * 1024))
        if i == 3:
            k.e("s_add_u32 s61, s61, 4096")
    k.e("s_waitcnt vmcnt(0)")
    k.e("s_barrier")
    k.e("s_cmp_lg_u32 s%d, 0" % S_WAVE)
    k.e("s_cbranch_scc1 %s" % end)
    k.e("s_lshl_b32 s61, s60, 2")
    k.e("v_mov_b32 v1, s61")
    k.e("v_mov_b32 v2, 0x5a5a")
    k.e("v_cmp_eq_u32 vcc, 0, v0")
    k.e("s_and_saveexec_b64 s[62:63], vcc")
    k.e("buffer_store_dword v2, v1, s[56:59], 0 offen sc1")
    k.L(end)
    k.e("s_endpgm")
    return k, r.end, c.LDS, 512


def emit_softmax_pm(k, d, ep_, em_, tmp, vperm):
    mx, mn, t0, t1, sp, sm = tmp, tmp + 1, tmp + 2, tmp + 3, tmp + 4, tmp + 5
    E = tmp + 6
    for i in range(8):
        k.e("v_cvt_pk_bf16_f32 v%d, v%d, v%d" % (t0, d + 2 * i, d + 2 * i + 1))
        k.e("v_lshlrev_b32 v%d, 16, v%d" % (d + 2 * i, t0))
        k.e("v_and_b32 v%d, 0xffff0000, v%d" % (d + 2 * i + 1, t0))
    k.e("v_max_f32 v%d, v%d, v%d" % (mx, d, d + 1))
    k.e("v_min_f32 v%d, v%d, v%d" % (mn, d, d + 1))
    for i in range(1, 8):
        k.e("v_max3_f32 v%d, v%d, v%d, v%d" % (mx, mx, d + 2 * i, d + 2 * i + 1))
        k.e("v_min3_f32 v%d, v%d, v%d, v%d" % (mn, mn, d + 2 * i, d + 2 * i + 1))
    k.e("ds_bpermute_b32 v%d, v%d, v%d" % (t0, vperm, mx))
    k.e("ds_bpermute_b32 v%d, v%d, v%d" % (t1, vperm, mn))
    k.e("s_waitcnt lgkmcnt(0)")
    k.e("v_max_f32 v%d, v%d, v%d" % (mx, mx, t0))
    k.e("v_min_f32 v%d, v%d, v%d" % (mn, mn, t1))
    k.e("v_mul_f32 v%d, 0x%x, v%d" % (mx, LOG2E ^ 0x80000000, mx))
    k.e("v_mul_f32 v%d, 0x%x, v%d" % (mn, LOG2E, mn))
    k.e("v_mov_b32 v%d, 0x%x" % (t0, LOG2E))
    for i in range(16):
        k.e("v_fma_f32 v%d, v%d, v%d, v%d" % (E + i, d + i, t0, mx))
        k.e("v_fma_f32 v%d, -v%d, v%d, v%d" % (E + 16 + i, d + i, t0, mn))
        k.e("v_exp_f32 v%d, v%d" % (E + i, E + i))
        k.e("v_exp_f32 v%d, v%d" % (E + 16 + i, E + 16 + i))
    k.nop(0)
    k.e("v_add_f32 v%d, v%d, v%d" % (sp, E, E + 1))
    k.e("v_add_f32 v%d, v%d, v%d" % (sm, E + 16, E + 17))
    for i in range(2, 16):
        k.e("v_add_f32 v%d, v%d, v%d" % (sp, sp, E + i))
        k.e("v_add_f32 v%d, v%d, v%d" % (sm, sm, E + 16 + i))
    k.e("ds_bpermute_b32 v%d, v%d, v%d" % (t0, vperm, sp))
    k.e("ds_bpermute_b32 v%d, v%d, v%d" % (t1, vperm, sm))
    k.e("s_waitcnt lgkmcnt(0)")
    k.e("v_add_f32 v%d, v%d, v%d" % (sp, sp, t0))
    k.e("v_add_f32 v%d, v%d, v%d" % (sm, sm, t1))
    k.e("v_rcp_f32 v%d, v%d" % (sp, sp))
    k.e("v_rcp_f32 v%d, v%d" % (sm, sm))
    k.nop(0)
    for i in range(8):
        k.e("v_mul_f32 v%d, v%d, v%d" % (E + 2 * i, E + 2 * i, sp))
        k.e("v_mul_f32 v%d, v%d, v%d" % (E + 2 * i + 1, E + 2 * i + 1, sp))
        k.e("v_cvt_pk_bf16_f32 v%d, v%d, v%d" % (ep_ + i, E + 2 * i, E + 2 * i + 1))
        k.e("v_mul_f32 v%d, v%d, v%d" % (E + 16 + 2 * i, E + 16 + 2 * i, sm))
        k.e("v_mul_f32 v%d, v%d, v%d" % (E + 16 + 2 * i + 1, E + 16 + 2 * i + 1, sm))
        k.e("v_cvt_pk_bf16_f32 v%d, v%d, v%d" % (em_ + i, E + 16 + 2 * i, E + 16 + 2 * i + 1))


def emit_wphi_load(k, srd, s_hd, wp, vlane31, vh, t0, tmp=144):
    k.e("v_lshlrev_b32 v%d, 9, v%d" % (t0, vh))
    k.e("v_lshl_add_u32 v%d, v%d, 1, v%d" % (t0, vlane31, t0))
    k.e("s_lshl_b32 s40, s%d, 11" % s_hd)
    for t in range(2):
        for e in range(8):
            k.e("buffer_load_ushort v%d, v%d, %s, s40 offen offset:%d" % (tmp + 8 * t + e, t0, sr(srd, 4), (16 * t + e) * 64))
    k.e("s_waitcnt vmcnt(0)")
    for t in range(2):
        for e in range(0, 8, 2):
            k.e("v_lshl_or_b32 v%d, v%d, 16, v%d" % (wp + 4 * t + e // 2, tmp + 8 * t + e + 1, tmp + 8 * t + e))


def gen_kv():
    k = K("kv_kernel")
    end = k.lab("END")
    k.e("s_cmp_ge_u32 s2, 256")
    k.e("s_cbranch_scc1 %s" % end)
    load_ptr(k, 4, "ws"); load_ptr(k, 6, "w_phi")
    k.e("v_lshrrev_b32 v1, 6, v0")
    k.nop(0)
    k.e("v_readfirstlane_b32 s12, v1")
    k.e("s_waitcnt lgkmcnt(0)")
    make_srd(k, 16, 4, WS_QKV, SZ_QKV)
    make_srd(k, 20, 6, 0, 32 * 32 * 32 * 2)
    make_srd(k, 24, 4, WS_KVP, 256 * KVP_STRIDE)
    k.e("s_and_b32 s13, s2, 31")
    k.e("s_lshr_b32 s14, s2, 5")
    k.e("v_and_b32 v1, 63, v0")
    k.e("v_and_b32 v2, 31, v0")
    k.e("v_bfe_u32 v3, v0, 5, 1")
    k.e("v_xor_b32 v4, 32, v1")
    k.e("v_lshlrev_b32 v4, 2, v4")
    WP = 8
    emit_wphi_load(k, 20, 13, WP, 2, 3, 5)
    k.e("s_mul_i32 s15, s12, 6144")
    k.e("v_lshlrev_b32 v5, 8, v3")
    k.e("v_lshl_add_u32 v5, v2, 1, v5")
    k.e("v_add_u32 v5, s15, v5")
    k.e("v_lshlrev_b32 v6, 6, v2")
    k.e("v_lshl_add_u32 v6, v3, 4, v6")
    k.e("v_add_u32 v6, s15, v6")
    k.e("v_bfe_u32 v7, v0, 2, 2")
    k.e("v_lshl_add_u32 v7, v3, 3, v7")
    k.e("v_lshlrev_b32 v7, 6, v7")
    k.e("v_bfe_u32 v16, v0, 4, 1")
    k.e("v_lshl_add_u32 v7, v16, 5, v7")
    k.e("v_and_b32 v16, 3, v0")
    k.e("v_lshl_add_u32 v7, v16, 3, v7")
    k.e("v_add_u32 v7, s15, v7")
    k.e("v_add_u32 v7, 4096, v7")
    k.e("v_lshlrev_b32 v17, 4, v1")
    k.e("v_add_u32 v17, s15, v17")
    for i in range(4):
        k.e("v_mov_b32 v%d, 0x3f803f80" % (20 + i))
    D2 = [64, 80]
    D3 = [96, 112]
    for i in range(64):
        k.e("v_mov_b32 v%d, 0" % (64 + i))
    D1 = 128
    KF = 24
    VT = 32
    PP, PM = 40, 48
    AF = 56
    BF = 60
    TMP = 144
    for tile in range(2):
        k.e("s_lshl_b32 s30, s14, 8")
        k.e("s_lshl_b32 s31, s12, 6")
        k.e("s_add_u32 s30, s30, s31")
        k.e("s_add_u32 s30, s30, %d" % (tile * 32))
        k.e("s_mul_i32 s31, s30, 6144")
        k.e("s_lshl_b32 s32, s13, 6")
        k.e("s_add_u32 s31, s31, s32")
        k.e("v_mul_u32_u24 v18, 6144, v2")
        k.e("v_lshl_add_u32 v18, v3, 4, v18")
        k.e("s_add_u32 s33, s31, 2048")
        k.e("buffer_load_dwordx4 v[%d:%d], v18, s[16:19], s33 offen" % (KF, KF + 3))
        k.e("buffer_load_dwordx4 v[%d:%d], v18, s[16:19], s33 offen offset:32" % (KF + 4, KF + 7))
        k.e("v_lshrrev_b32 v19, 2, v1")
        k.e("v_mul_u32_u24 v19, 6144, v19")
        k.e("v_and_b32 v16, 3, v1")
        k.e("v_lshl_add_u32 v19, v16, 4, v19")
        k.e("s_add_u32 s33, s31, 4096")
        k.e("buffer_load_dwordx4 v[%d:%d], v19, s[16:19], s33 offen" % (VT, VT + 3))
        k.e("s_add_u32 s33, s33, %d" % (16 * 6144))
        k.e("buffer_load_dwordx4 v[%d:%d], v19, s[16:19], s33 offen" % (VT + 4, VT + 7))
        for i in range(16):
            k.e("v_mov_b32 v%d, 0" % (D1 + i))
        k.e("s_waitcnt vmcnt(0)")
        k.e("ds_write_b128 v17, v[%d:%d] offset:4096" % (VT, VT + 3))
        k.e("ds_write_b128 v17, v[%d:%d] offset:5120" % (VT + 4, VT + 7))
        for t in range(2):
            k.e("v_mfma_f32_32x32x16_bf16 %s, %s, %s, %s" % (vr(D1, 16), vr(WP + 4 * t, 4), vr(KF + 4 * t, 4), vr(D1, 16)))
        k.nop(15); k.nop(3)
        emit_softmax_pm(k, D1, PP, PM, TMP, 4)
        for half, P in ((0, PP), (1, PM)):
            for i in range(8):
                r0 = 2 * i
                f = 8 * (r0 >> 2) + (r0 & 3)
                k.e("ds_write_b16 v5, v%d offset:%d" % (P + i, half * 2048 + f * 64))
                k.e("ds_write_b16_d16_hi v5, v%d offset:%d" % (P + i, half * 2048 + (f + 1) * 64))
        k.e("s_waitcnt lgkmcnt(0)")
        for t in range(2):
            k.e("ds_read_b64_tr_b16 %s, v7 offset:%d" % (vr(BF, 2), (16 * t) * 64))
            k.e("ds_read_b64_tr_b16 %s, v7 offset:%d" % (vr(BF + 2, 2), (16 * t + 4) * 64))
            for ft in range(2):
                k.e("ds_read_b128 %s, v6 offset:%d" % (vr(AF, 4), ft * 2048 + t * 32))
                k.e("s_waitcnt lgkmcnt(0)")
                k.e("v_mfma_f32_32x32x16_bf16 %s, %s, %s, %s" % (vr(D2[ft], 16), vr(AF, 4), vr(BF, 4), vr(D2[ft], 16)))
                k.e("v_mfma_f32_32x32x16_bf16 %s, %s, %s, %s" % (vr(D3[ft], 16), vr(AF, 4), vr(20, 4), vr(D3[ft], 16)))
                k.nop(7)
        k.nop(7)
    k.nop(15); k.nop(3)
    k.e("s_mul_i32 s15, s12, 8448")
    k.e("v_lshlrev_b32 v5, 9, v3")
    k.e("v_lshl_add_u32 v5, v2, 2, v5")
    k.e("v_add_u32 v5, s15, v5")
    k.e("v_add_u32 v5, 24576, v5")
    for ft in range(2):
        for r_ in range(16):
            f = 32 * ft + 8 * (r_ >> 2) + (r_ & 3)
            k.e("ds_write_b32 v5, v%d offset:%d" % (D2[ft] + r_, f * 128))
    k.e("v_lshlrev_b32 v6, 4, v3")
    k.e("v_add_u32 v6, s15, v6")
    k.e("v_add_u32 v6, 24576, v6")
    for ft in range(2):
        for r_ in range(16):
            f = 32 * ft + 8 * (r_ >> 2) + (r_ & 3)
            k.e("ds_write_b32 v6, v%d offset:%d" % (D3[ft] + r_, 8192 + f * 4))
    k.e("s_waitcnt lgkmcnt(0)")
    k.e("s_barrier")
    k.e("s_lshl_b32 s30, s13, 3")
    k.e("s_add_u32 s30, s30, s14")
    k.e("s_mul_i32 s30, s30, %d" % KVP_STRIDE)
    k.e("v_lshlrev_b32 v5, 2, v0")
    for j in range(9):
        if j == 8:
            k.e("v_cmp_gt_u32 vcc, 64, v0")
            k.e("s_and_saveexec_b64 s[42:43], vcc")
        for w in range(4):
            k.e("ds_read_b32 v%d, v5 offset:%d" % (8 + w, 24576 + w * 8448 + j * 1024))
        k.e("s_waitcnt lgkmcnt(0)")
        k.e("v_add_f32 v8, v8, v9")
        k.e("v_add_f32 v10, v10, v11")
        k.e("v_add_f32 v8, v8, v10")
        k.e("s_add_u32 s31, s30, %d" % (j * 1024))
        k.e("buffer_store_dword v8, v5, s[24:27], s31 offen")
    k.L(end)
    k.e("s_endpgm")
    return k, 184, 24576 + 4 * 8448, 256


def gen_attn(nwaves=8):
    k = K("attn_kernel")
    end = k.lab("END")
    k.e("s_cmp_ge_u32 s2, 32")
    k.e("s_cbranch_scc1 %s" % end)
    load_ptr(k, 4, "ws"); load_ptr(k, 6, "w_phi")
    k.e("v_lshrrev_b32 v1, 6, v0")
    k.nop(0)
    k.e("v_readfirstlane_b32 s12, v1")
    k.e("s_waitcnt lgkmcnt(0)")
    make_srd(k, 16, 4, WS_QKV, SZ_QKV)
    make_srd(k, 20, 6, 0, 32 * 32 * 32 * 2)
    make_srd(k, 24, 4, WS_KVP, 256 * KVP_STRIDE)
    make_srd(k, 36, 4, WS_O, SZ_ACT)
    k.e("s_mov_b32 s13, s2")
    k.e("v_and_b32 v1, 63, v0")
    k.e("v_and_b32 v2, 31, v0")
    k.e("v_bfe_u32 v3, v0, 5, 1")
    k.e("v_xor_b32 v4, 32, v1")
    k.e("v_lshlrev_b32 v4, 2, v4")
    WP = 8
    s1done = k.lab("S1D")
    k.e("s_cmp_ge_u32 s12, 4")
    k.e("s_cbranch_scc1 %s" % s1done)
    k.e("s_mul_i32 s30, s13, %d" % (8 * KVP_STRIDE))
    k.e("v_lshlrev_b32 v5, 2, v0")
    k.e("v_lshlrev_b32 v6, 7, v2")
    k.e("v_lshrrev_b32 v7, 5, v0")
    k.e("v_lshl_add_u32 v6, v7, 1, v6")
    for j in range(8):
        for cch in range(8):
            k.e("s_add_u32 s31, s30, %d" % (cch * KVP_STRIDE + j * 1024))
            k.e("buffer_load_dword v%d, v5, s[24:27], s31 offen" % (64 + j * 8 + cch))
    k.e("v_cmp_gt_u32 vcc, 64, v0")
    k.e("s_and_saveexec_b64 s[42:43], vcc")
    for cch in range(8):
        k.e("s_add_u32 s31, s30, %d" % (cch * KVP_STRIDE + 8 * 1024))
        k.e("buffer_load_dword v%d, v5, s[24:27], s31 offen" % (128 + cch))
    k.e("s_mov_b64 exec, s[42:43]")
    k.e("s_waitcnt vmcnt(0)")
    for j in range(9):
        b = 64 + j * 8
        for cch in range(1, 8):
            k.e("v_add_f32 v%d, v%d, v%d" % (b, b, b + cch))
        k.e("v_cvt_pk_bf16_f32 v%d, v%d, v%d" % (b, b, b))
        if j < 8:
            k.e("ds_write_b16 v6, v%d offset:%d" % (b, 16 * j))
    k.e("v_lshlrev_b32 v6, 1, v0")
    k.e("v_add_u32 v6, 4096, v6")
    k.e("s_and_saveexec_b64 s[42:43], vcc")
    k.e("ds_write_b16 v6, v128")
    k.e("s_mov_b64 exec, s[42:43]")
    k.L(s1done)
    emit_wphi_load(k, 20, 13, WP, 2, 3, 5)
    k.e("s_waitcnt lgkmcnt(0)")
    k.e("s_barrier")
    k.e("v_lshlrev_b32 v5, 7, v2")
    k.e("v_lshl_add_u32 v5, v3, 3, v5")
    k.e("v_lshlrev_b32 v6, 3, v3")
    k.e("v_add_u32 v6, 4096, v6")
    QF = 24
    PP, PM = 40, 48
    AF, ZF = 56, 60
    DN, DD = 64, 80
    D1 = 128
    TMP = 144
    QN = 184
    k.e("s_mov_b32 s44, s12")
    k.e("v_mul_u32_u24 v19, 6144, v2")
    k.e("v_lshl_add_u32 v19, v3, 4, v19")
    k.e("s_lshl_b32 s32, s13, 6")
    k.e("s_mul_i32 s45, s44, %d" % (32 * 6144))
    k.e("s_add_u32 s45, s45, s32")
    k.e("buffer_load_dwordx4 v[%d:%d], v19, s[16:19], s45 offen" % (QN, QN + 3))
    k.e("buffer_load_dwordx4 v[%d:%d], v19, s[16:19], s45 offen offset:32" % (QN + 4, QN + 7))
    loop = k.lab("TL")
    k.L(loop)
    k.e("s_lshl_b32 s30, s44, 5")
    k.e("s_waitcnt vmcnt(0)")
    for i in range(8):
        k.e("v_mov_b32 v%d, v%d" % (QF + i, QN + i))
    k.e("s_add_u32 s45, s45, %d" % (nwaves * 32 * 6144))
    k.e("buffer_load_dwordx4 v[%d:%d], v19, s[16:19], s45 offen" % (QN, QN + 3))
    k.e("buffer_load_dwordx4 v[%d:%d], v19, s[16:19], s45 offen offset:32" % (QN + 4, QN + 7))
    for i in range(16):
        k.e("v_mov_b32 v%d, 0" % (D1 + i))
    for i in range(32):
        k.e("v_mov_b32 v%d, 0" % (DN + i))
    for t in range(2):
        k.e("v_mfma_f32_32x32x16_bf16 %s, %s, %s, %s" % (vr(D1, 16), vr(WP + 4 * t, 4), vr(QF + 4 * t, 4), vr(D1, 16)))
    k.nop(15); k.nop(3)
    emit_softmax_pm(k, D1, PP, PM, TMP, 4)
    for tt in range(4):
        B = (PP if tt < 2 else PM) + 4 * (tt & 1)
        k.e("ds_read_b64 %s, v5 offset:%d" % (vr(AF, 2), tt * 32))
        k.e("ds_read_b64 %s, v5 offset:%d" % (vr(AF + 2, 2), tt * 32 + 16))
        k.e("ds_read_b64 %s, v6 offset:%d" % (vr(ZF, 2), tt * 32))
        k.e("ds_read_b64 %s, v6 offset:%d" % (vr(ZF + 2, 2), tt * 32 + 16))
        k.e("s_waitcnt lgkmcnt(0)")
        k.e("v_mfma_f32_32x32x16_bf16 %s, %s, %s, %s" % (vr(DN, 16), vr(AF, 4), vr(B, 4), vr(DN, 16)))
        k.e("v_mfma_f32_32x32x16_bf16 %s, %s, %s, %s" % (vr(DD, 16), vr(ZF, 4), vr(B, 4), vr(DD, 16)))
        k.nop(7)
    k.nop(15); k.nop(3)
    rnd_bf16(k, DD)
    k.e("v_add_f32 v%d, 0x358637bd, v%d" % (DD, DD))
    rnd_bf16(k, DD)
    k.e("v_rcp_f32 v%d, v%d" % (DD + 1, DD))
    k.nop(0)
    k.e("v_lshlrev_b32 v18, 11, v2")
    k.e("v_lshl_add_u32 v18, v3, 3, v18")
    k.e("s_lshl_b32 s31, s30, 11")
    k.e("s_add_u32 s31, s31, s32")
    for q in range(4):
        for i in range(4):
            x = DN + 4 * q + i
            rnd_bf16(k, x)
            k.e("v_mul_f32 v16, v%d, v%d" % (x, DD + 1))
            k.e("v_fma_f32 v17, -v16, v%d, v%d" % (DD, x))
            k.e("v_fma_f32 v%d, v17, v%d, v16" % (x, DD + 1))
        k.e("v_cvt_pk_bf16_f32 v16, v%d, v%d" % (DN + 4 * q, DN + 4 * q + 1))
        k.e("v_cvt_pk_bf16_f32 v17, v%d, v%d" % (DN + 4 * q + 2, DN + 4 * q + 3))
        k.e("buffer_store_dwordx2 v[16:17], v18, s[36:39], s31 offen offset:%d" % (q * 16))
        k.nop(1)
    k.e("s_add_u32 s44, s44, %d" % nwaves)
    k.e("s_cmp_lt_u32 s44, 64")
    k.e("s_cbranch_scc1 %s" % loop)
    k.L(end)
    k.e("s_endpgm")
    return k, 192, 8192, 64 * nwaves


def gemm4_wrap():
    r = gen_gemm4()
    return r


def merge(name, g1, n1, g2):
    r1 = g1(); r2 = g2()
    k = K(name)
    l2 = k.lab("BODY2")
    k.e("s_cmp_ge_u32 s2, %d" % n1)
    k.e("s_cbranch_scc1 %s" % l2)
    k.lines += r1[0].lines
    k.L(l2)
    k.e("s_sub_u32 s2, s2, %d" % n1)
    k.lines += r2[0].lines
    lds = max(r1[2] if len(r1) > 2 else 0, r2[2] if len(r2) > 2 else 0)
    b1 = r1[3] if len(r1) > 3 else 256
    b2 = r2[3] if len(r2) > 3 else 256
    assert b1 == b2, (b1, b2)
    return k, max(r1[1], r2[1]), lds, b1


HEADER = open("gated_mix__linear_kernel_hedgehog__mixer_s_mlp__prompt.s.ref").read().split("; Override launch")[0]


def main(out):
    kernels = []
    launches = []

    def add(gen, grid, block=None, lds=None):
        res = gen()
        k, v = res[0], res[1]
        l = res[2] if len(res) > 2 else 0
        b = res[3] if len(res) > 3 else 256
        kernels.append((k, v))
        launches.append("; @launch kernel=%s grid=(%d,1,1) block=(%d,1,1) lds=%d" % (k.name, grid, b, l))

    add(gen_prep, 1024)
    add(gen_gemm1, 256)
    add(lambda: merge("g2kv_kernel", gen_gemm2, 256, gen_kv), 512)
    add(gen_ln1, 512)
    add(lambda: merge("g4at_kernel", gen_gemm4, 224, gen_attn), 256)
    add(gen_gemm5, 256)
    txt = [HEADER.rstrip("\n")] + launches + ['.amdgcn_target "amdgcn-amd-amdhsa--gfx950"', ".text"]
    for k, v in kernels:
        txt += k.text(v)
    txt += ['.section .rodata,"a"', ".p2align 6"]
    for k, v in kernels:
        txt += desc(k.name, v)
        txt += [".p2align 6"]
    open(out, "w").write("\n".join(txt) + "\n")


if __name__ == "__main__":
    main(sys.argv[1] if len(sys.argv) > 1 else "gated_mix__linear_kernel_hedgehog__mixer_s_mlp__prompt.s")
```
